```python
import torch

def _softmax(x, axis=-1):
    return torch.softmax(x, dim=axis)
def _gelu(x):
    return torch.nn.functional.gelu(x, approximate="tanh")
def _silu(x):
    return torch.nn.functional.silu(x)
def _sigmoid(x):
    return torch.sigmoid(x)
def _layernorm(x, axis=-1, eps=1e-5):
    m = x.mean(dim=axis, keepdim=True)
    v = x.var(dim=axis, keepdim=True, unbiased=False)
    return (x - m) / torch.sqrt(v + eps)
def _scatter_add(tgt, idx, src, axis=0):
    return tgt.clone().index_add_(axis, idx, src)
def _segment_sum(src, seg, n):
    out = torch.zeros((n,) + src.shape[1:], dtype=src.dtype)
    return out.index_add_(0, seg, src)
def _pad(x, pw):
    flat = tuple(v for pair in reversed(pw) for v in pair)
    return torch.nn.functional.pad(x, flat)

kernel_name = 'interleave_layers__gqa_block_cached__dense_activation_gelu__decode'

def setup_inputs():

    _w = (lambda a: (lambda t: t.to(torch.bfloat16) if t.is_floating_point() else t)(torch.as_tensor(a)))
    def _A_setup():
        B, Sq, D = 2, 1, 512
        Hq, Hkv, Sk, Dh = 32, 32, 4096, 128
        assert Hq % Hkv == 0, (Hq, Hkv)
        return {
            "x": _w((lambda *s: torch.randn(*s, dtype=torch.bfloat16) * 0.05)(B, Sq, D)),
            "k_cache": _w((lambda *s: torch.randn(*s, dtype=torch.bfloat16) * 0.8)(B, Hkv, Sk, Dh)),
            "v_cache": _w((lambda *s: torch.randn(*s, dtype=torch.bfloat16) * 1.6)(B, Hkv, Sk, Dh)),
            "wq": _w((lambda *s: torch.randn(*s, dtype=torch.bfloat16) * 0.8)(D, Hq * Dh) * (D ** -0.5)),
            "wo": _w((lambda *s: torch.randn(*s, dtype=torch.bfloat16) * 1.6)(Hq * Dh, D) * ((Hq * Dh) ** -0.5)),
        }
    _A_in = _A_setup()

    def _B_setup():
        B, S, D, F = 2, 1, 512, 1376
        return {
            "x": _w((lambda *s: torch.randn(*s, dtype=torch.bfloat16) * 0.05)(B, S, D)),
            "w1": _w((lambda *s: torch.randn(*s, dtype=torch.bfloat16) * 0.4)(D, F) * (D ** -0.5)),
            "b1": _w((lambda *s: torch.randn(*s, dtype=torch.bfloat16) * 0.4)(F) * 0.01),
            "w2": _w((lambda *s: torch.randn(*s, dtype=torch.bfloat16) * 0.4)(F, D) * (F ** -0.5)),
            "b2": _w((lambda *s: torch.randn(*s, dtype=torch.bfloat16) * 0.4)(D) * 0.01),
        }
    _B_in = _B_setup()

    return {
        "A_x": _A_in["x"],
        "A_k_cache": _A_in["k_cache"],
        "A_v_cache": _A_in["v_cache"],
        "A_wq": _A_in["wq"],
        "A_wo": _A_in["wo"],
        "B_x": _B_in["x"],
        "B_w1": _B_in["w1"],
        "B_b1": _B_in["b1"],
        "B_w2": _B_in["w2"],
        "B_b2": _B_in["b2"],
    }

def reference(A_x, A_k_cache, A_v_cache, A_wq, A_wo, B_x, B_w1, B_b1, B_w2, B_b2):
    def _A_ref(x, k_cache, v_cache, wq, wo):
        B, Sq, D = x.shape
        Hq, Dh = 32, 128
        Hkv = k_cache.shape[1]
        rep = Hq // Hkv
        q = (lambda x, *d: x.permute(*d))((x @ wq).reshape(B, Sq, Hq, Dh), 0, 2, 1, 3)
        k = (lambda x, n, axis: torch.repeat_interleave(x, n, dim=axis))(k_cache, rep, axis=1)
        v = (lambda x, n, axis: torch.repeat_interleave(x, n, dim=axis))(v_cache, rep, axis=1)
        scores = torch.einsum("bhqd,bhkd->bhqk", q, k) * (Dh ** -0.5)
        p = _softmax(scores, axis=-1)
        o = torch.einsum("bhqk,bhkd->bhqd", p, v)
        return (lambda x, *d: x.permute(*d))(o, 0, 2, 1, 3).reshape(B, Sq, Hq * Dh) @ wo

    def _B_ref(x, w1, b1, w2, b2):
        h = torch.einsum("bsd,df->bsf", x, w1) + b1
        h = _gelu(h)
        return torch.einsum("bsf,fd->bsd", h, w2) + b2

    x = A_x
    x = x + _A_ref(_layernorm(x, axis=-1), A_k_cache, A_v_cache, A_wq, A_wo)
    x = x + _B_ref(_layernorm(x, axis=-1), B_w1, B_b1, B_w2, B_b2)
    x = x + _A_ref(_layernorm(x, axis=-1), A_k_cache, A_v_cache, A_wq, A_wo)
    x = x + _B_ref(_layernorm(x, axis=-1), B_w1, B_b1, B_w2, B_b2)
    return x
```

```python
import re
TRANS = ("v_exp_f32", "v_log_f32", "v_rcp_f32", "v_rsq_f32", "v_sqrt_f32", "v_sin_f32", "v_cos_f32")

def regs_of(tok):
    tok = tok.strip()
    m = re.fullmatch(r"-?\|?([vas])(\d+)\|?", tok)
    if m: return [m.group(1) + m.group(2)]
    m = re.fullmatch(r"([vas])\[(\d+):(\d+)\]", tok)
    if m: return [m.group(1) + str(k) for k in range(int(m.group(2)), int(m.group(3)) + 1)]
    if tok == "vcc": return ["vcc"]
    if tok == "exec": return ["exec"]
    if tok == "m0": return ["m0"]
    return []

class Ins:
    __slots__ = ("text", "op", "kind", "w", "r", "dppr", "A", "B", "C", "Ctok", "Dtok", "pos", "states", "data", "lds")

def split_ops(s):
    out = []; depth = 0; cur = ""
    for ch in s:
        if ch == "[": depth += 1
        if ch == "]": depth -= 1
        if ch == "," and depth == 0:
            out.append(cur); cur = ""
        else: cur += ch
    out.append(cur)
    return [o.strip() for o in out]

def parse(text):
    I = Ins(); I.text = text
    t = text.split(";")[0].strip()
    parts = t.split(None, 1)
    op = parts[0]; I.op = op
    rest = parts[1] if len(parts) > 1 else ""
    ops = split_ops(rest) if rest else []
    mods = ""
    if ops:
        lp = ops[-1].split(None, 1)
        ops[-1] = lp[0]; mods = lp[1] if len(lp) > 1 else ""
    I.w = []; I.r = []; I.dppr = []; I.A = []; I.B = []; I.C = []; I.Ctok = None; I.Dtok = None; I.data = []; I.lds = False
    I.states = 1
    if op == "s_nop":
        I.kind = "nop"; I.states = int(ops[0], 0) + 1
    elif op.startswith("v_mfma") or op.startswith("v_smfmac"):
        I.kind = "mfma"; I.w = regs_of(ops[0]); I.A = regs_of(ops[1]); I.B = regs_of(ops[2]); I.Dtok = ops[0]
        if op.startswith("v_smfmac"):
            I.C = regs_of(ops[0]); I.Ctok = ops[0]; I.B = I.B + regs_of(ops[3])
        else:
            I.C = regs_of(ops[3]); I.Ctok = ops[3]
        I.r = I.A + I.B + I.C
    elif op.startswith("v_"):
        I.kind = "trans" if op.replace("_e32", "").replace("_e64", "") in TRANS else "valu"
        if op.startswith("v_permlane"):
            I.kind = "perml"; I.w = regs_of(ops[0]) + regs_of(ops[1]); I.r = list(I.w)
        elif op.startswith("v_readfirstlane") or op.startswith("v_readlane"):
            I.kind = "rdlane"; I.w = regs_of(ops[0]); I.r = sum((regs_of(o) for o in ops[1:]), [])
        else:
            I.w = regs_of(ops[0]); I.r = sum((regs_of(o) for o in ops[1:]), [])
            if op.startswith("v_fmac") or op.startswith("v_dot2c"): I.r += I.w
            if op.startswith("v_cndmask") and len(ops) == 3: I.r += ["vcc"]
            if op.endswith("_dpp"): I.dppr = regs_of(ops[1])
    elif op.startswith("ds_read"):
        I.kind = "dsr"; I.w = regs_of(ops[0]); I.r = regs_of(ops[1])
    elif op.startswith("ds_write") or op.startswith("ds_add"):
        I.kind = "dsw"; I.r = sum((regs_of(o) for o in ops), [])
    elif op.startswith("buffer_load") or op.startswith("global_load"):
        I.kind = "vml"
        if " lds" in (" " + mods) or "_lds_" in op:
            I.lds = True; I.r = sum((regs_of(o) for o in ops), []) + ["m0"]
        else:
            I.w = regs_of(ops[0]); I.r = sum((regs_of(o) for o in ops[1:]), [])
    elif op.startswith("buffer_store") or op.startswith("global_store") or op.startswith("buffer_atomic"):
        I.kind = "vms"; I.r = sum((regs_of(o) for o in ops), [])
        if op.endswith("x4") or op.endswith("x3"): I.data = regs_of(ops[0])
    elif op.startswith("s_"):
        I.kind = "salu"
        if op.startswith("s_cmp") or op.startswith("s_cbranch") or op in ("s_branch", "s_barrier", "s_waitcnt", "s_sleep", "s_endpgm", "s_setprio", "s_bitcmp1_b32", "s_bitcmp0_b32"):
            I.r = sum((regs_of(o) for o in ops), [])
        else:
            I.w = regs_of(ops[0]) if ops else []; I.r = sum((regs_of(o) for o in ops[1:]), [])
    else:
        raise ValueError("unknown op " + text)
    return I

VALUK = ("valu", "trans", "perml", "rdlane")

def need(P, C):
    n = 0
    pw = set(P.w)
    isv = lambda r: r[0] in "va" and r != "vcc"
    if P.kind in VALUK:
        vw = {r for r in pw if isv(r)}
        sw = {r for r in pw if not isv(r)}
        if C.kind == "mfma" and vw & set(C.r): n = max(n, 2)
        if C.dppr and vw & set(C.dppr): n = max(n, 2)
        if C.kind == "perml" and vw & set(C.r): n = max(n, 2)
        if C.kind == "rdlane" and vw & set(C.r): n = max(n, 1)
        if P.kind == "trans" and C.kind in ("valu", "perml", "rdlane") and vw & set(C.r): n = max(n, 1)
        if sw:
            if C.kind in VALUK and sw & set(C.r): n = max(n, 4 if C.kind == "rdlane" else 2)
            if C.kind in ("vml", "vms") and sw & set(C.r): n = max(n, 5)
    if P.kind == "mfma":
        if C.kind == "mfma":
            if pw & (set(C.A) | set(C.B)): n = max(n, 8)
            if pw & set(C.C) and not (C.Ctok == P.Dtok and C.op == P.op): n = max(n, 6)
        elif C.kind in VALUK:
            if pw & (set(C.r) | set(C.w)): n = max(n, 8)
            if set(P.C) & set(C.w): n = max(n, 3)
        elif C.kind in ("dsr", "dsw", "vml", "vms"):
            if pw & (set(C.r) | set(C.w)): n = max(n, 8)
    if P.kind == "salu" and "m0" in pw and C.lds: n = max(n, 1)
    if P.kind == "vms" and P.data:
        if set(P.data) & set(C.w): n = max(n, 2)
    return n

class Asm:
    def __init__(self):
        self.out = []
        self.hist = []
        self.pos = 0
        self.alts = []
        self.snap = {}
        self.vm = []
        self.lg = []
        self.nid = 0
        self.cond = 0
        self.nops = 0
    def raw(self, s): self.out.append(s)
    def C(self, s): self.out.append("    ; " + s)
    def _req(self, I):
        req = 0
        for P in self.hist[-24:]:
            d = self.pos - P.pos
            req = max(req, need(P, I) - d)
        for (h, pb, pl) in self.alts:
            if self.pos - pl > 24: continue
            for P in h[-24:]:
                d = (pb - P.pos) + (self.pos - pl)
                req = max(req, need(P, I) - d)
        return req
    def I(self, text):
        I = parse(text)
        req = self._req(I)
        if req > 0:
            self.nops += 1
            n = parse(f"s_nop {req-1}")
            self.out.append(f"    s_nop {req-1}    ; auto"); self.pos += n.states; n.pos = self.pos; self.hist.append(n)
        self.out.append("    " + text)
        self.pos += I.states; I.pos = self.pos; self.hist.append(I)
        ret = None
        if I.kind in ("vml", "vms"):
            self.nid += 1; self.vm.append((self.nid, self.cond > 0)); ret = self.nid
        elif I.kind in ("dsr", "dsw"):
            self.nid += 1; self.lg.append((self.nid, self.cond > 0)); ret = self.nid
        if I.op.startswith("s_cbranch") or I.op == "s_branch":
            lab = text.split()[1]
            self.snap.setdefault(lab, []).append((list(self.hist[-24:]), self.pos))
        return ret
    def L(self, lab):
        self.out.append(lab + ":")
        for (h, pb) in self.snap.get(lab, []):
            self.alts.append((h, pb, self.pos))
        self.alts = [a for a in self.alts if self.pos - a[2] <= 24]
    def _cnt(self, lst, ids):
        if not isinstance(ids, (list, tuple)): ids = [ids]
        idx = max(k for k, (i, c) in enumerate(lst) if i in ids)
        return sum(1 for (i, c) in lst[idx + 1:] if not c)
    def wvm(self, ids):
        n = min(63, self._cnt(self.vm, ids)); self.I(f"s_waitcnt vmcnt({n})")
    def wlg(self, ids):
        n = min(15, self._cnt(self.lg, ids)); self.I(f"s_waitcnt lgkmcnt({n})")
    def wvm0(self): self.I("s_waitcnt vmcnt(0)")
    def wlg0(self): self.I("s_waitcnt lgkmcnt(0)")
    def text(self): return "\n".join(self.out) + "\n"
```

```python
import sys, math
from asmlib import Asm
KNAME = "interleave_layers__gqa_block_cached__dense_activation_gelu__decode_kernel"

HEADER = open("interleave_layers__gqa_block_cached__dense_activation_gelu__decode.s.ref").read().split("; Override launch")[0]

WAREA = 39936; Z_OFF = 0; W1_OFF = 4096; V_OFF = 16384; W2_OFF = 28672
MISC = 158720; ML_LDS = MISC + 4096
REGION = 24576; QS = 0; AP = 2048; ML = 10240; XSA = 10496; XSB = 12544; HS = 14592
YP = 393216; WS_BYTES = 524288
sW, sX, sI, sREG, sYP, sMODE, sPASS, sCNT, sWB = 3, 4, 5, 6, 7, 9, 10, 11, 12
sT0, sT1, sT2, sPLO, sPHI, sTILE, sROT = 13, 14, 15, 16, 17, 18, 19
mFULL, mLO32, mEVEN, mN8, mN4, mG02, mL0, mH2, mLO16 = "s[20:21]", "s[22:23]", "s[24:25]", "s[26:27]", "s[28:29]", "s[30:31]", "s[32:33]", "s[34:35]", "s[76:77]"
rK, rV, rWQ, rWO, rW1, rW2, rWS, rT, rDBG, rOUT = 36, 40, 44, 48, 52, 56, 60, 64, 68, 72
sC, sXCC, sQSO, sWOO = 78, 79, 80, 81
sK1, sK2, sINV, sEPS = 82, 83, 84, 85
def S(r): return f"s[{r}:{r+3}]"
def V(r, n=4): return f"v[{r}:{r+n-1}]"
def Ar(r, n=4): return f"a[{r}:{r+n-1}]"
DPP = "row_mask:0xf bank_mask:0xf"
MF = "v_mfma_f32_16x16x32_bf16"
vLANE, vTR, vB1, vB2, vXR = 0, 1, 2, 3, 4
HF = 48
BLK = [64 + 32 * k for k in range(6)]
f2u = lambda x: "0x%08x" % (__import__("struct").unpack("<I", __import__("struct").pack("<f", x))[0])

class Gen:
    def __init__(self, opt):
        self.a = Asm(); self.o = opt; self.lab = 0
    def nl(self, p):
        self.lab += 1; return f"L_{p}_{self.lab}"

    def publish(self, instr):
        a = self.a
        ls, ld = self.nl("slow"), self.nl("pubd")
        a.I(f"s_cmp_lg_u32 s{sMODE}, 0")
        a.I(f"s_cbranch_scc1 {ls}")
        a.cond += 1
        a.I(instr)
        a.cond -= 1
        a.L(ld)
        self.ool.append((ls, instr + " sc1", ld))
    def barrier(self):
        self.a.I("s_barrier")
    def poll(self, loads, regs, vt, pre=None):
        a = self.a
        l = self.nl("poll")
        a.L(l)
        cur = None
        for m, ins in loads:
            if m != cur:
                a.I(f"s_mov_b64 exec, {m or mFULL}"); cur = m
            a.I(ins)
        if cur is not None: a.I(f"s_mov_b64 exec, {mFULL}")
        a.I(f"s_sub_u32 s{sCNT}, s{sCNT}, 1")
        a.I("s_cbranch_scc1 L_abort")
        a.wvm0()
        self.check(regs, vt)
        a.I(f"s_cbranch_vccnz {l}")
    def check(self, regs, vt):
        a = self.a
        r = list(regs)
        if len(r) % 2 == 1:
            a.I(f"v_max3_u32 v{vt}, v{r[0]}, v{r[1]}, v{r[2]}"); r = r[3:]
        else:
            a.I(f"v_max_u32 v{vt}, v{r[0]}, v{r[1]}"); r = r[2:]
        for k in range(0, len(r), 2):
            a.I(f"v_max3_u32 v{vt}, v{r[k]}, v{r[k+1]}, v{vt}")
        a.I(f"v_cmp_eq_u32 vcc, -1, v{vt}")
    def dma_voff(self, dst, tmp, pitch):
        a = self.a
        a.I(f"v_bfe_u32 v{dst}, v0, 3, 2")
        a.I(f"v_lshrrev_b32 v{tmp}, 5, v0")
        a.I(f"v_lshl_add_u32 v{dst}, v{dst}, 1, v{tmp}")
        a.I(f"v_bfe_u32 v{tmp}, v0, 1, 2")
        a.I(f"v_lshl_add_u32 v{dst}, v{dst}, 2, v{tmp}")
        a.I(f"v_and_b32 v{tmp}, 1, v0")
        a.I(f"v_lshlrev_b32 v{tmp}, 4, v{tmp}")
        a.I(f"s_movk_i32 s{sT2}, {pitch}")
        a.I(f"v_mad_u32_u24 v{dst}, v{dst}, s{sT2}, v{tmp}")
    def dma(self, voff, srd, soff_sgpr, ldsoff):
        a = self.a
        a.I(f"s_add_u32 m0, s{sWB}, {ldsoff}")
        return a.I(f"buffer_load_dwordx4 v{voff}, {S(srd)}, s{soff_sgpr} offen lds")
    def dma_z(self, voff, srd, sbase, step):
        a = self.a; ids = []
        for j in range(4):
            if j == 0:
                ids.append(self.dma(voff, srd, sbase, Z_OFF))
            else:
                a.I(f"s_add_u32 s{sT0}, s{sbase}, {j*step}")
                ids.append(self.dma(voff, srd, sT0, Z_OFF + j * 1024))
        return ids
    def trread(self, dst, off, acc=False):
        a = self.a
        R = Ar if acc else V
        i1 = a.I(f"ds_read_b64_tr_b16 {R(dst,2)}, v{vTR} offset:{off}")
        i2 = a.I(f"ds_read_b64_tr_b16 {R(dst+2,2)}, v{vTR} offset:{off+512}")
        return i2
    def pack_pub(self, val, tmp):
        a = self.a
        a.I(f"v_mov_b32_dpp v{tmp}, v{val} quad_perm:[1,1,3,3] {DPP}")
        a.I(f"v_cvt_pk_bf16_f32 v{tmp}, v{val}, v{tmp}")
        a.I(f"v_min_u32 v{tmp}, -2, v{tmp}")
    def pub_off(self, dst, tmp, pitch):
        a = self.a
        a.I(f"v_bfe_u32 v{dst}, v0, 4, 1")
        a.I(f"v_and_b32 v{tmp}, 15, v0")
        a.I(f"v_lshlrev_b32 v{tmp}, 1, v{tmp}")
        a.I(f"s_movk_i32 s{sT2}, {pitch}")
        a.I(f"v_mad_u32_u24 v{dst}, v{dst}, s{sT2}, v{tmp}")
    def gath_off(self, dst, tmp, pitch):
        a = self.a
        a.I(f"v_bfe_u32 v{dst}, v0, 1, 3")
        a.I(f"v_lshrrev_b32 v{tmp}, 4, v0")
        a.I(f"v_lshl_add_u32 v{dst}, v{dst}, 2, v{tmp}")
        a.I(f"v_lshlrev_b32 v{dst}, 4, v{dst}")
        a.I(f"v_and_b32 v{tmp}, 1, v0")
        a.I(f"s_movk_i32 s{sT2}, {pitch}")
        a.I(f"v_mad_u32_u24 v{dst}, v{tmp}, s{sT2}, v{dst}")

    XA, XT = 8, 12
    def ln_prep(self, ntiles, woff):
        a = self.a
        self.gath_off(5, 6, 1024)
        for r in range(8): a.I(f"v_mov_b32 v{self.XA + r}, 0x3f803f80")
        self.ops = [(t, j) for j in range(4) for t in range(ntiles)]
        self.rd = {}
        for k in range(min(4, len(self.ops))):
            t, j = self.ops[k]
            self.rd[k] = self.trread(32 + 4 * k, woff(t, j))
    def ln_mm(self, ntiles, woff):
        a = self.a
        XA, XT = self.XA, self.XT
        k = 0
        cur, nxt = XA, XT
        for j in range(4):
            c = "0" if j == 0 else None
            acc = 16
            a.I(f"{MF} {V(acc)}, {V(cur)}, {V(cur)}, {c or V(acc)}")
            if j < 3:
                for r in range(4): a.I(f"v_mov_b32_dpp v{nxt + r}, v{cur + r} row_shl:2 {DPP}")
            for t in range(ntiles):
                acc = 20 + 4 * t
                a.wlg(self.rd[k])
                b = 32 + 4 * (k % 4)
                a.I(f"{MF} {V(acc)}, {V(cur)}, {V(b)}, {c or V(acc)}")
                if k + 4 < len(self.ops):
                    t2, j2 = self.ops[k + 4]
                    self.rd[k + 4] = self.trread(b, woff(t2, j2))
                k += 1
            cur, nxt = nxt, cur
        a.I(f"s_lshl_b32 s{sT0}, s{sW}, 2")
        a.I(f"s_add_u32 s{sT0}, s{sT0}, {MISC}")
        a.I(f"v_lshl_add_u32 v5, v0, 4, s{sT0}")
        if ntiles > 1:
            a.I(f"s_lshl_b32 s{sT1}, s{sW}, 10"); a.I(f"s_add_u32 s{sT1}, s{sT1}, {MISC}")
        else:
            a.I(f"s_mov_b32 s{sT1}, {MISC}")
        a.I(f"v_lshl_add_u32 v12, v0, 4, s{sT1}")
        a.I(f"v_and_b32 v13, 15, v0")
        a.I(f"v_lshl_add_u32 v13, v13, 4, s{sT1}")
        a.I(f"v_bfe_u32 v15, v0, 4, 1")
        a.I(f"v_mul_u32_u24 v14, 272, v15")
        a.I(f"v_lshlrev_b32 v15, 4, v15")
        a.I(f"s_mov_b64 exec, {mG02}")
        a.I(f"ds_write2st64_b32 v5, v16, v17 offset0:{4*ntiles} offset1:{4*ntiles+1}")
        for t in range(ntiles):
            a.I(f"ds_write2st64_b32 v5, v{20+4*t}, v{21+4*t} offset0:{4*t} offset1:{4*t+1}")
        a.I(f"s_mov_b64 exec, {mFULL}")
        a.wlg0()
        self.barrier()
    def ln_finish(self, ntiles):
        a = self.a
        g = MISC + ntiles * 1024
        r1 = a.I(f"ds_read_b128 {V(40)}, v14 offset:{g - MISC + 0}") if False else None
        a.I(f"v_add_u32 v14, {g}, v14")
        a.I(f"v_add_u32 v15, {g + 512}, v15")
        i_sq = a.I(f"ds_read_b128 {V(40)}, v14")
        i_sm = a.I(f"ds_read_b128 {V(44)}, v15")
        i_raw = a.I(f"ds_read_b128 {V(32)}, v12")
        i_cs = a.I(f"ds_read_b128 {V(36)}, v13 offset:512")
        a.wlg(i_sm)
        a.I("v_pk_add_f32 v[40:41], v[40:41], v[42:43]")
        a.I("v_pk_add_f32 v[44:45], v[44:45], v[46:47]")
        a.I("v_add_f32 v40, v40, v41")
        a.I("v_add_f32 v44, v44, v45")
        a.I(f"v_mul_f32 v44, s{sINV}, v44")
        a.I(f"v_mov_b32 v41, s{sEPS}")
        a.I(f"v_fma_f32 v40, v40, s{sINV}, v41")
        a.I("v_fma_f32 v40, -v44, v44, v40")
        a.I(f"v_max_f32 v40, s{sEPS}, v40")
        a.I("v_rsq_f32 v40, v40")
        a.wlg(i_cs)
        a.I("v_pk_add_f32 v[32:33], v[32:33], v[34:35]")
        a.I("v_pk_add_f32 v[36:37], v[36:37], v[38:39]")
        a.I("v_add_f32 v32, v32, v33")
        a.I("v_add_f32 v36, v36, v37")
        a.I("v_fma_f32 v32, -v44, v36, v32")

    QC, MASK = 12, 8
    def qk(self, fill=None, waitk=None, order=(0, 1, 2, 3)):
        a = self.a
        n = 0
        for vi, v in enumerate(order):
            a.I(f"v_and_b32 v{self.MASK}, 15, v0")
            a.I(f"v_cmp_eq_u32 vcc, {v}, v{self.MASK}")
            a.I(f"v_cndmask_b32 v{self.MASK}, 0, -1, vcc")
            if waitk: waitk(v)
            for j in range(4):
                b = 16 + 4 * (n % 2); n += 1
                for r in range(4):
                    a.I(f"v_and_b32_dpp v{b+r}, v{self.QC+r}, v{self.MASK} quad_perm:[{j},{j},{j},{j}] {DPP}")
                for u in range(4):
                    t = 4 * v + u
                    c = "0" if (vi == 0 and j == 0) else V(32 + 4 * u)
                    a.I(f"{MF} {V(32+4*u)}, {Ar(16*t + 4*j)}, {V(b)}, {c}")
                if fill: fill()
    def xlane(self, r, t, op):
        a = self.a
        a.I(f"{op}_dpp v{r}, v{r}, v{r} quad_perm:[1,0,3,2] {DPP}")
        a.I(f"{op}_dpp v{r}, v{r}, v{r} quad_perm:[2,3,0,1] {DPP}")
        a.I(f"v_mov_b32 v{t}, v{r}")
        a.I(f"v_permlane32_swap_b32 v{t}, v{r}")
        a.I(f"{op} v{r}, v{r}, v{t}")
        a.I(f"v_mov_b32 v{t}, v{r}")
        a.I(f"v_permlane16_swap_b32 v{t}, v{r}")
        a.I(f"{op} v{r}, v{r}, v{t}")
    def sm_max(self):
        a = self.a
        a.I("v_max3_f32 v10, v32, v33, v34")
        a.I("v_max3_f32 v11, v35, v36, v37")
        for k in range(38, 46, 4):
            a.I(f"v_max3_f32 v10, v{k}, v{k+1}, v10")
            a.I(f"v_max3_f32 v11, v{k+2}, v{k+3}, v11")
        a.I("v_max3_f32 v10, v46, v47, v10")
        a.I("v_max_f32 v10, v10, v11")
        self.xlane(10, 11, "v_max_f32")
        a.I(f"v_mul_f32 v10, s{sC}, v10")
    def sm_exp(self, sig):
        L = []
        b = 32 + 8 * sig
        for k in range(8): L.append(f"v_fma_f32 v{b+k}, v{b+k}, s{sC}, -v10")
        for k in range(8): L.append(f"v_exp_f32 v{b+k}, v{b+k}")
        for k in range(4): L.append(f"v_cvt_pk_bf16_f32 v{24+4*sig+k}, v{b+2*k}, v{b+2*k+1}")
        return L
    def sm_sum(self):
        L = []
        L.append("v_pk_add_f32 v[32:33], v[32:33], v[34:35]")
        L.append("v_pk_add_f32 v[36:37], v[36:37], v[38:39]")
        L.append("v_pk_add_f32 v[40:41], v[40:41], v[42:43]")
        L.append("v_pk_add_f32 v[44:45], v[44:45], v[46:47]")
        L.append("v_pk_add_f32 v[32:33], v[32:33], v[36:37]")
        L.append("v_pk_add_f32 v[40:41], v[40:41], v[44:45]")
        L.append("v_pk_add_f32 v[32:33], v[32:33], v[40:41]")
        L.append("v_add_f32 v11, v32, v33")
        return L
    def ml_write(self):
        a = self.a
        a.I(f"s_lshl_b32 s{sT0}, s{sW}, 2"); a.I(f"s_add_u32 s{sT0}, s{sT0}, {ML_LDS}")
        a.I(f"v_mov_b32 v12, s{sT0}")
        a.I(f"s_mov_b64 exec, {mL0}")
        a.I("ds_write2_b32 v12, v10, v11 offset0:0 offset1:4")
        a.I(f"s_mov_b64 exec, {mFULL}")
    def f_read(self):
        a = self.a
        a.I(f"v_mov_b32 v9, {ML_LDS}")
        a.I(f"ds_read_b128 {V(12)}, v9")
        return a.I(f"ds_read_b128 {V(44)}, v9 offset:16")
    def f_calc(self):
        L = []
        L.append("v_max3_f32 v10, v12, v13, v14")
        L.append("v_max_f32 v10, v10, v15")
        for k in range(4): L.append(f"v_sub_f32 v{12+k}, v{12+k}, v10")
        for k in range(4): L.append(f"v_exp_f32 v{12+k}, v{12+k}")
        L.append("v_mul_f32 v11, v12, v44")
        for k in range(1, 4): L.append(f"v_fmac_f32 v11, v{12+k}, v{44+k}")
        L.append("v_min_u32 v10, -2, v10")
        L.append("v_min_u32 v11, -2, v11")
        return L

    def perm_group(self, blk, outmap=None, temps=(40, 41)):
        a = self.a
        R = lambda s, d: blk + 4 * s + d
        t1, t2 = temps[0], temps[1]
        lo = lambda dst, x, y: a.I(f"v_perm_b32 v{dst}, v{y}, v{x}, s{sPLO}")
        hi = lambda dst, x, y: a.I(f"v_perm_b32 v{dst}, v{y}, v{x}, s{sPHI}")
        for p in range(4):
            x, y = R(2*p, p), R(2*p+1, p)
            lo(t1, x, y); hi(y, x, y); a.I(f"v_mov_b32 v{x}, v{t1}")
        for p in range(4):
            for d in range(p + 1, 4):
                ax, ay = R(2*p, d), R(2*p+1, d)
                bx, by = R(2*d, p), R(2*d+1, p)
                lo(t1, ax, ay); hi(t2, ax, ay)
                lo(ax, bx, by); hi(ay, bx, by)
                a.I(f"v_mov_b32 v{bx}, v{t1}"); a.I(f"v_mov_b32 v{by}, v{t2}")

    def build(self):
        a = self.a; o = self.o
        self.ool = []
        a.raw(HEADER.rstrip())
        a.raw("; @launch grid=(256,1,1) block=(256,1,1) lds=163840")
        a.raw('.amdgcn_target "amdgcn-amd-amdhsa--gfx950"')
        a.raw(".text"); a.raw(f".globl {KNAME}"); a.raw(".p2align 8"); a.raw(f".type {KNAME},@function"); a.raw(f"{KNAME}:")
        a.I("s_cmp_ge_u32 s2, 256"); a.I("s_cbranch_scc1 L_abort")
        a.I("s_load_dwordx16 s[76:91], s[0:1], 0")
        a.I("s_load_dwordx8 s[92:99], s[0:1], 64")
        a.I("s_load_dwordx2 s[100:101], s[0:1], 96")
        a.I("v_lshrrev_b32 v1, 6, v0")
        a.I(f"v_readfirstlane_b32 s{sW}, v1")
        a.I("v_and_b32 v0, 63, v0")
        a.I(f"s_and_b32 s{sX}, s2, 7"); a.I(f"s_lshr_b32 s{sI}, s2, 3")
        a.I("v_and_b32 v5, 3, v0"); a.I("v_bfe_u32 v6, v0, 2, 2"); a.I("v_lshl_add_u32 v5, v5, 2, v6")
        a.I("v_lshrrev_b32 v6, 4, v0"); a.I("v_lshlrev_b32 v6, 4, v6"); a.I("v_lshl_add_u32 v5, v5, 8, v6")
        a.I("v_lshlrev_b32 v6, 4, v0")
        a.I(f"s_bfe_u32 s{sT0}, s{sI}, 0x10002"); a.I(f"s_lshl_b32 s{sT0}, s{sT0}, 5")
        a.I(f"s_lshl_b32 s{sT1}, s{sX}, 2"); a.I(f"s_add_u32 s{sT0}, s{sT0}, s{sT1}")
        a.I(f"s_lshr_b32 s{sT1}, s{sI}, 3"); a.I(f"s_add_u32 s{sT0}, s{sT0}, s{sT1}")
        a.I(f"s_lshl_b32 s{sT0}, s{sT0}, 4")
        a.I(f"s_and_b32 s{sT1}, s{sI}, 3"); a.I(f"s_lshl_b32 s{sT1}, s{sT1}, 2"); a.I(f"s_add_u32 s{sT0}, s{sT0}, s{sT1}")
        a.I(f"s_add_u32 s{sT0}, s{sT0}, s{sW}"); a.I(f"s_lshl_b32 s{sT0}, s{sT0}, 16")
        a.I(f"s_lshl_b32 s{sROT}, s2, 2"); a.I(f"s_add_u32 s{sROT}, s{sROT}, s{sW}")
        a.I(f"s_mul_i32 s{sROT}, s{sROT}, 0x9E3779B1"); a.I(f"s_lshr_b32 s{sROT}, s{sROT}, 28"); a.I(f"s_lshl_b32 s{sROT}, s{sROT}, 12")
        a.I(f"s_mul_i32 s{sWB}, s{sW}, {WAREA}")
        for r, sz in ((rK, 65536), (rV, 65536), (rWQ, 1 << 22), (rWO, 1 << 22), (rW1, 512 * 2752), (rW2, 1376 * 1024), (rWS, WS_BYTES), (rT, 2048), (rDBG, 256), (rOUT, 2048)):
            a.I(f"s_mov_b32 s{r+2}, {sz}"); a.I(f"s_mov_b32 s{r+3}, 0x20000")
        self.dma_voff(7, 8, 8192)
        a.I("s_waitcnt lgkmcnt(0)")
        a.I(f"s_add_u32 s{rK}, s78, s{sT0}"); a.I(f"s_addc_u32 s{rK+1}, s79, 0")
        a.I(f"s_add_u32 s{rV}, s80, s{sT0}"); a.I(f"s_addc_u32 s{rV+1}, s81, 0")
        for r, p in ((rWS, 100), (rT, 76), (rWQ, 82), (rWO, 84), (rW1, 88), (rW2, 92), (rDBG, 98), (rOUT, 96)):
            a.I(f"s_mov_b64 s[{r}:{r+1}], s[{p}:{p+1}]")
        kid = {}
        def ktile(t):
            a.I(f"s_add_u32 s{sT1}, s{sROT}, {t*4096}"); a.I(f"s_and_b32 s{sT1}, s{sT1}, 0xffff")
            for j in range(4):
                kid[t] = a.I(f"buffer_load_dwordx4 {Ar(16*t+4*j)}, v5, {S(rK)}, s{sT1} offen offset:{j*64} nt")
        a.I(f"s_cmp_lg_u32 s{sW}, 0"); a.I("s_cbranch_scc1 L_noclear")
        a.cond += 1
        for r in range(4): a.I(f"v_mov_b32 v{16+r}, -1")
        a.I(f"s_lshl_b32 s{sT1}, s2, 11")
        a.I(f"buffer_store_dwordx4 {V(16)}, v6, {S(rWS)}, s{sT1} offen sc1")
        clr = a.I(f"buffer_store_dwordx4 {V(16)}, v6, {S(rWS)}, s{sT1} offen offset:1024 sc1")
        a.cond -= 1
        a.L("L_noclear")
        a.I(f"s_lshl_b32 s{sT0}, s{sW}, 20"); a.I(f"s_lshl_b32 s{sT1}, s{sX}, 10"); a.I(f"s_add_u32 s{sT0}, s{sT0}, s{sT1}")
        a.I(f"s_lshl_b32 s{sT1}, s{sI}, 5"); a.I(f"s_add_u32 s86, s{sT0}, s{sT1}")
        wqid = self.dma_z(7, rWQ, 86, 32 * 8192)
        self.gath_off(9, 10, 1024)
        for r in range(8): a.I(f"v_mov_b32 v{20 + r}, 0x3f803f80")
        a.I("v_and_b32 v10, 15, v0")
        a.I(f"v_cmp_gt_u32 {mN8}, 8, v10"); a.I(f"v_cmp_gt_u32 {mN4}, 4, v10")
        a.I(f"s_mov_b64 {mFULL}, -1")
        a.I(f"s_lshl_b32 s{sT0}, s{sW}, 8")
        a.I(f"s_mov_b64 exec, {mN8}")
        xid = a.I(f"buffer_load_dwordx4 {V(20)}, v9, {S(rT)}, s{sT0} offen")
        a.I(f"s_mov_b64 exec, {mFULL}")
        self.pub_off(9, 10, 1024)
        a.I(f"s_lshl_b32 s{sT0}, s{sI}, 5")
        a.I(f"buffer_load_ushort v{vXR}, v9, {S(rT)}, s{sT0} offen")
        ktile(0)
        a.I(f"s_mov_b64 s[{rT}:{rT+1}], s[94:95]"); a.I(f"s_mov_b32 s{rT+2}, 1024")
        a.I("v_and_b32 v10, 15, v0"); a.I("v_lshlrev_b32 v10, 1, v10")
        a.I(f"buffer_load_ushort v{vB2}, v10, {S(rT)}, s{sT0} offen")
        a.I(f"s_mul_i32 s{sT0}, s{sI}, 3"); a.I(f"s_lshl_b32 s{sT1}, s{sI}, 1"); a.I(f"s_add_u32 s{sT1}, s{sT1}, 22")
        a.I(f"s_min_u32 s{sTILE}, s{sT0}, s{sT1}"); a.I(f"s_lshl_b32 s{sTILE}, s{sTILE}, 5")
        a.I(f"s_mov_b64 s[{rT}:{rT+1}], s[90:91]"); a.I(f"s_mov_b32 s{rT+2}, 2752")
        a.I(f"s_lshl_b32 s{sT0}, s{sW}, 5"); a.I(f"s_add_u32 s{sT0}, s{sT0}, s{sTILE}")
        bid = a.I(f"buffer_load_ushort v{vB1}, v10, {S(rT)}, s{sT0} offen")
        ktile(1); ktile(2)
        a.I(f"s_mov_b32 s{sQSO}, s86")
        a.I(f"s_getreg_b32 s{sXCC}, hwreg(HW_REG_XCC_ID, 0, 4)"); a.I(f"s_add_u32 s{sXCC}, s{sXCC}, 1")
        a.I(f"s_mov_b32 s{sC}, {f2u(math.log2(math.e) / math.sqrt(128.0))}")
        k1 = -2.0 * math.sqrt(2.0 / math.pi) * math.log2(math.e)
        a.I(f"s_mov_b32 s{sK1}, {f2u(k1)}"); a.I(f"s_mov_b32 s{sK2}, {f2u(k1 * 0.044715)}")
        a.I(f"s_mov_b32 s{sINV}, {f2u(1.0 / 512)}"); a.I(f"s_mov_b32 s{sEPS}, {f2u(1e-5)}")
        a.I(f"s_mov_b32 s{sPLO}, 0x05040100"); a.I(f"s_mov_b32 s{sPHI}, 0x07060302")
        a.I("s_mov_b32 s22, -1"); a.I("s_mov_b32 s23, 0")
        a.I("s_mov_b32 s24, 0x55555555"); a.I("s_mov_b32 s25, 0")
        a.I("s_mov_b32 s30, 0xffff"); a.I("s_mov_b32 s31, 0xffff")
        a.I("s_mov_b64 s[32:33], 1")
        a.I("s_mov_b32 s76, 0xffff"); a.I("s_mov_b32 s77, 0")
        a.I(f"s_cmp_eq_u32 s{sW}, 3"); a.I("s_cselect_b32 s34, 0x000f000f, 0x003f003f") if False else None
        a.I("s_mov_b32 s34, 0x003f003f"); a.I("s_cselect_b32 s34, 0x000f000f, s34"); a.I("s_mov_b32 s35, s34")
        a.I(f"s_mul_i32 s{sREG}, s{sX}, {2*REGION}")
        a.I(f"s_lshl_b32 s{sYP}, s{sI}, 10"); a.I(f"s_add_u32 s{sYP}, s{sYP}, {YP}")
        a.I(f"s_mov_b32 s{sPASS}, 0"); a.I(f"s_mov_b32 s{sCNT}, {o.get('timeout', 400000)}"); a.I(f"s_mov_b32 s{sMODE}, 1")
        a.I(f"s_lshl_b32 s{sT0}, s{sX}, 19"); a.I(f"s_lshl_b32 s{sT1}, s{sW}, 17"); a.I(f"s_add_u32 s{sT0}, s{sT0}, s{sT1}")
        a.I(f"s_lshl_b32 s{sT1}, s{sI}, 5"); a.I(f"s_add_u32 s{sWOO}, s{sT0}, s{sT1}")
        a.I(f"v_lshl_add_u32 v{vTR}, v0, 3, s{sWB}")
        a.I(f"s_cmp_lg_u32 s{sW}, 0"); a.I("s_cbranch_scc1 L_noflag")
        a.cond += 1
        a.wvm(clr)
        a.I(f"v_mov_b32 v10, s{sXCC}"); a.I("v_mov_b32 v11, s2")
        a.I(f"s_mov_b64 exec, {mL0}")
        a.I(f"buffer_store_byte v10, v11, {S(rDBG)}, 0 offen sc1")
        a.I(f"s_mov_b64 exec, {mFULL}")
        a.cond -= 1
        a.L("L_noflag")
        a.C("Q1")
        a.wvm([bid] + wqid + [xid])
        a.I(f"v_lshlrev_b32 v{vXR}, 16, v{vXR}"); a.I(f"v_lshlrev_b32 v{vB1}, 16, v{vB1}"); a.I(f"v_lshlrev_b32 v{vB2}, 16, v{vB2}")
        zoff = lambda t, j: Z_OFF + j * 1024
        self.ops = [(0, j) for j in range(4)]; self.rd = {}
        for k in range(4): self.rd[k] = self.trread(32 + 4 * k, zoff(0, k))
        for r in range(8): a.I(f"v_mov_b32 v{8 + r}, v{20 + r}")
        a.I("v_mov_b32 v28, v5")
        self.ln_mm(1, zoff)
        a.I(f"s_cmp_lg_u32 s{sW}, 0"); a.I("s_cbranch_scc1 L_q1nf")
        a.cond += 1
        self.ln_finish(1)
        a.I("v_mul_f32 v32, v32, v40")
        self.pack_pub(32, 47)
        a.cond -= 1
        a.L("L_q1nf")
        a.I("v_mov_b32 v5, v28")
        self.dma_voff(7, 8, 1024)
        self.dma_z(7, rWO, sWOO, 32 * 1024)
        for t in range(3, 9): ktile(t)
        a.C("flags check")
        a.I("v_lshlrev_b32 v9, 2, v0")
        def flagchk():
            a.I("v_subrev_u32 v11, 0x01010101, v10")
            a.I("v_not_b32 v12, v10")
            a.I("v_and_b32 v11, v11, v12")
            a.I("v_and_b32 v11, 0x80808080, v11")
            a.I("v_cmp_ne_u32 vcc, 0, v11")
        fid = a.I(f"buffer_load_dword v10, v9, {S(rDBG)}, 0 offen sc1")
        ktile(9)
        a.wvm(fid)
        flagchk()
        a.I("s_cbranch_vccz L_flagok")
        a.L("L_flagpoll")
        a.cond += 1
        a.I(f"buffer_load_dword v10, v9, {S(rDBG)}, 0 offen sc1")
        a.I(f"s_sub_u32 s{sCNT}, s{sCNT}, 1"); a.I("s_cbranch_scc1 L_abort")
        a.wvm0()
        flagchk()
        a.I("s_cbranch_vccnz L_flagpoll")
        a.cond -= 1
        a.L("L_flagok")
        a.I(f"s_and_b32 s{sT0}, s{sX}, 3"); a.I(f"s_lshl_b32 s{sT0}, s{sT0}, 3")
        a.I(f"v_lshrrev_b32 v10, s{sT0}, v10"); a.I("v_and_b32 v10, 0xff, v10")
        a.I(f"v_cmp_ne_u32 vcc, s{sXCC}, v10")
        a.I(f"s_cmp_lt_u32 s{sX}, 4"); a.I(f"s_mov_b32 s{sT0}, 0xaaaaaaaa"); a.I(f"s_cselect_b32 s{sT0}, 0x55555555, s{sT0}")
        a.I(f"s_or_b32 s{sT1}, vcc_lo, vcc_hi"); a.I(f"s_and_b32 s{sMODE}, s{sT1}, s{sT0}")
        if o.get("force_slow"): a.I(f"s_mov_b32 s{sMODE}, 1")
        a.I(f"s_cmp_lg_u32 s{sW}, 0"); a.I("s_cbranch_scc1 L_q1np")
        a.cond += 1
        self.q_publish(47)
        a.cond -= 1
        a.L("L_q1np")
        for t in range(10, 16): ktile(t)
        self.dma_voff(9, 10, 2752)
        a.I(f"s_mul_i32 s87, s{sW}, {128*2752}"); a.I(f"s_add_u32 s87, s87, s{sTILE}")
        for t in range(3):
            for j in range(4):
                a.I(f"s_add_u32 s{sT0}, s87, {j*32*2752 + t*32}")
                self.dma(9, rW1, sT0, W1_OFF + (t * 4 + j) * 1024)
        a.I(f"s_mul_i32 s87, s{sW}, {11*32*1024}"); a.I(f"s_lshl_b32 s{sT0}, s{sI}, 5"); a.I(f"s_add_u32 s87, s87, s{sT0}")
        def w2dma(j):
            if j == 10:
                a.I(f"s_cmp_eq_u32 s{sW}, 3"); a.I("s_cbranch_scc1 L_now2"); a.cond += 1
            a.I(f"s_add_u32 s{sT0}, s87, {j*32*1024}")
            self.dma(7, rW2, sT0, W2_OFF + j * 1024)
            if j == 10:
                a.cond -= 1; a.L("L_now2")
        vid = {}
        def vload(c, e):
            sig, v = c >> 2, c & 3
            blk = BLK[c if c < 6 else c - 6]
            t = 4 * v + 2 * sig + (e >> 2)
            if e % 4 == 0:
                a.I(f"s_add_u32 s{sT1}, s{sROT}, {t*4096}"); a.I(f"s_and_b32 s88, s{sT1}, 0xffff")
            vid[(c, e)] = a.I(f"buffer_load_dwordx4 {V(blk + 4*e)}, v6, {S(rV)}, s88 offen offset:{(e&3)*1024} nt")
        a.C("q1 gather")
        self.q_gather_prep()
        a.I(f"s_mov_b64 exec, {mN4}")
        qins = f"buffer_load_dwordx4 {V(self.QC)}, v9, {S(rWS)}, s{sT2} offen sc1"
        a.I(f"s_mov_b32 s89, s{sT2}")
        qins = qins.replace(f"s{sT2} offen", "s89 offen")
        qid = a.I(qins)
        a.I(f"s_mov_b64 exec, {mFULL}")
        for j in range(6): w2dma(j)
        a.wvm(qid)
        self.check(range(self.QC, self.QC + 4), 10)
        a.I("s_cbranch_vccz L_q1ok")
        a.cond += 1
        self.poll([(mN4, qins)], range(self.QC, self.QC + 4), 10)
        a.cond -= 1
        a.L("L_q1ok")
        fl = [lambda j=j: w2dma(j) for j in range(6, 11)] + [lambda e=e: vload(0, e) for e in range(8)] + [lambda e=e: vload(1, e) for e in range(8)]
        def fill():
            if fl: fl.pop(0)()
        self.qk(fill=fill, waitk=lambda v: a.wvm(kid[4 * v + 3]))
        while fl: fl.pop(0)()
        self.sm_max()
        for s in self.sm_exp(0) + self.sm_exp(1) + self.sm_sum(): a.I(s)
        self.xlane(11, 12, "v_add_f32")
        self.ml_write()
        a.I(f"v_lshl_add_u32 v9, v0, 4, s{sWB}")
        a.I("v_and_b32 v8, 15, v0"); a.I("v_cmp_eq_u32 vcc, 0, v8"); a.I("v_cndmask_b32 v8, 0, -1, vcc")
        first = True
        for c in range(8):
            sig, v = c >> 2, c & 3
            if c + 2 < 8:
                if c + 2 >= 6: a.wlg0()
                for e in range(8): vload(c + 2, e)
            blk = BLK[c if c < 6 else c - 6]
            if c == 7:
                a.wlg0(); self.barrier()
                fr = self.f_read(); a.wlg(fr)
                for s in self.f_calc(): a.I(s)
            a.wvm(vid[(c, 7)])
            self.perm_group(blk)
            for rho in range(4):
                b = 16 + 4 * (rho % 2)
                for r in range(4):
                    a.I(f"v_and_b32_dpp v{b+r}, v{24+4*sig+r}, v8 quad_perm:[{v},{v},{v},{v}] {DPP}")
                a.I(f"v_mov_b32_dpp v8, v8 quad_perm:[3,0,1,2] {DPP}")
                a.I(f"{MF} {V(32)}, {V(b)}, {V(blk + 4*rho)}, {'0' if first else V(32)}")
                a.I(f"{MF} {V(36)}, {V(b)}, {V(blk + 4*(rho+4))}, {'0' if first else V(36)}")
                first = False
            if c == 0:
                for e in range(8): a.I(f"ds_write_b128 v9, {V(blk + 4*e)} offset:{V_OFF + e*1024}")
            if c == 1:
                for e in range(4): a.I(f"ds_write_b128 v9, {V(blk + 4*e)} offset:{V_OFF + (8+e)*1024}")
                for r in range(16): a.I(f"v_mov_b32 v{HF + r}, v{blk + 16 + r}")
        for j in range(4): self.trread(16 + 4 * j, Z_OFF + j * 1024)
        a.I(f"s_lshl_b32 s{sT0}, s{sW}, 9"); a.I(f"s_add_u32 s{sT0}, s{sT0}, {MISC}")
        a.I(f"v_lshl_add_u32 v9, v0, 5, s{sT0}")
        a.I(f"s_mov_b64 exec, {mLO16}")
        a.I(f"ds_write_b128 v9, {V(32)}"); a.I(f"ds_write_b128 v9, {V(36)} offset:16")
        a.I(f"s_mov_b64 exec, {mFULL}")
        self.tail()
        for ls, ins, ld in self.ool:
            a.L(ls); a.I(ins); a.I(f"s_branch {ld}")
        a.L("L_abort"); a.I("s_endpgm")
        a.raw('.section .rodata,"a"'); a.raw(".p2align 6"); a.raw(f".amdhsa_kernel {KNAME}")
        for s in (".amdhsa_next_free_vgpr 512", ".amdhsa_next_free_sgpr 102", ".amdhsa_accum_offset 256", ".amdhsa_group_segment_fixed_size 0",
                  ".amdhsa_kernarg_size 104", ".amdhsa_user_sgpr_count 2", ".amdhsa_user_sgpr_kernarg_segment_ptr 1", ".amdhsa_system_sgpr_workgroup_id_x 1"):
            a.raw("  " + s)
        a.raw(".end_amdhsa_kernel")
        return a.text()

    def q_publish(self, pv):
        a = self.a
        self.pub_off(9, 10, 256)
        a.I(f"s_lshr_b32 s{sT0}, s{sI}, 3"); a.I(f"s_lshl_b32 s{sT0}, s{sT0}, 9")
        a.I(f"s_and_b32 s{sT1}, s{sI}, 7"); a.I(f"s_lshl_b32 s{sT1}, s{sT1}, 5")
        a.I(f"s_add_u32 s{sT0}, s{sT0}, s{sT1}"); a.I(f"s_add_u32 s{sT0}, s{sT0}, s{sREG}")
        a.I(f"s_mov_b64 exec, {mEVEN}")
        self.publish(f"buffer_store_dword v{pv}, v9, {S(rWS)}, s{sT0} offen")
        a.I(f"s_mov_b64 exec, {mFULL}")
    def q_gather_prep(self):
        a = self.a
        a.I("v_and_b32 v9, 15, v0"); a.I("v_lshrrev_b32 v10, 4, v0"); a.I("v_lshl_add_u32 v9, v9, 2, v10"); a.I("v_lshlrev_b32 v9, 4, v9")
        for r in range(4): a.I(f"v_mov_b32 v{self.QC + r}, 0")
        a.I(f"s_lshr_b32 s{sT2}, s{sI}, 2"); a.I(f"s_lshl_b32 s{sT2}, s{sT2}, 8"); a.I(f"s_add_u32 s{sT2}, s{sT2}, s{sREG}")

    def tail(self):
        a = self.a; o = self.o
        a.L("L_fin")
        a.C("attention finish")
        a.I(f"v_lshlrev_b32 v8, 3, v0"); a.I(f"v_add_u32 v8, {MISC}, v8")
        a.I(f"s_lshl_b32 s{sT0}, s{sI}, 8"); a.I(f"s_add_u32 s{sT0}, s{sT0}, s{sREG}"); a.I(f"s_add_u32 s{sT0}, s{sT0}, {AP}")
        a.I(f"s_lshl_b32 s{sT1}, s{sI}, 3"); a.I(f"s_add_u32 s{sT1}, s{sT1}, s{sREG}"); a.I(f"s_add_u32 s{sT1}, s{sT1}, {ML}")
        a.I("v_lshlrev_b32 v7, 2, v0")
        a.wlg0(); self.barrier()
        a.I(f"s_cmp_lg_u32 s{sW}, 0"); a.I("s_cbranch_scc1 L_fin_done")
        a.cond += 1
        ids = [a.I(f"ds_read_b64 {V(40+2*w, 2)}, v8 offset:{w*512}") for w in range(4)]
        a.wlg(ids[0])
        a.I("v_mul_f32 v40, v12, v40"); a.I("v_mul_f32 v41, v12, v41")
        for w in range(1, 4):
            a.wlg(ids[w])
            a.I(f"v_fmac_f32 v40, v{12+w}, v{40+2*w}"); a.I(f"v_fmac_f32 v41, v{12+w}, v{41+2*w}")
        a.I("v_cvt_pk_bf16_f32 v9, v40, v41"); a.I("v_min_u32 v9, -2, v9")
        self.publish(f"buffer_store_dword v9, v7, {S(rWS)}, s{sT0} offen")
        a.I(f"s_mov_b64 exec, {mL0}")
        self.publish(f"buffer_store_dwordx2 v[10:11], v7, {S(rWS)}, s{sT1} offen")
        a.I(f"s_mov_b64 exec, {mFULL}")
        a.cond -= 1
        a.L("L_fin_done")
        a.C("stage O")
        a.I("v_and_b32 v5, 7, v0"); a.I("v_bfe_u32 v6, v0, 3, 1"); a.I("v_lshl_add_u32 v5, v5, 2, v6")
        a.I("v_lshrrev_b32 v6, 4, v0"); a.I("v_lshl_add_u32 v5, v5, 2, v6"); a.I("v_lshlrev_b32 v5, 4, v5")
        a.I("v_bfe_u32 v6, v0, 4, 1"); a.I("v_and_b32 v7, 3, v0"); a.I("v_lshl_add_u32 v6, v6, 2, v7"); a.I("v_lshlrev_b32 v6, 3, v6")
        a.I(f"s_lshl_b32 s{sT0}, s{sW}, 11"); a.I(f"s_add_u32 s{sT0}, s{sT0}, s{sREG}"); a.I(f"s_add_u32 s{sT0}, s{sT0}, {AP}")
        a.I(f"s_lshl_b32 s{sT1}, s{sW}, 6"); a.I(f"s_add_u32 s{sT1}, s{sT1}, s{sREG}"); a.I(f"s_add_u32 s{sT1}, s{sT1}, {ML}")
        a.I(f"s_lshl_b32 s{sT2}, s{sW}, 2"); a.I(f"s_add_u32 s{sT2}, s{sT2}, {MISC}")
        a.I(f"v_lshl_add_u32 v7, v0, 4, s{sT2}")
        self.barrier()
        self.poll([(None, f"buffer_load_dwordx2 v[44:45], v6, {S(rWS)}, s{sT1} offen sc1"),
                   (None, f"buffer_load_dwordx4 {V(32)}, v5, {S(rWS)}, s{sT0} offen sc1"),
                   (None, f"buffer_load_dwordx4 {V(36)}, v5, {S(rWS)}, s{sT0} offen offset:128 sc1")],
                  [44, 45] + list(range(32, 40)), 8)
        a.I(f"{MF} {V(40)}, {V(32)}, {V(16)}, 0")
        a.I(f"v_max_f32_dpp v46, v44, v44 quad_perm:[1,0,3,2] {DPP}")
        a.I(f"{MF} {V(40)}, {V(36)}, {V(24)}, {V(40)}")
        for r in range(4): a.I(f"v_mov_b32_dpp v{32+r}, v{32+r} row_shl:8 {DPP}")
        a.I(f"v_max_f32_dpp v46, v46, v46 quad_perm:[2,3,0,1] {DPP}")
        a.I(f"v_mov_b32_dpp v36, v36 row_shl:8 {DPP}")
        a.I(f"{MF} {V(40)}, {V(32)}, {V(20)}, {V(40)}")
        for r in range(1, 4): a.I(f"v_mov_b32_dpp v{36+r}, v{36+r} row_shl:8 {DPP}")
        a.I("v_sub_f32 v44, v44, v46")
        a.I("v_exp_f32 v44, v44")
        a.I(f"{MF} {V(40)}, {V(36)}, {V(28)}, {V(40)}")
        a.I("v_mul_f32 v45, v44, v45")
        a.I(f"v_add_f32_dpp v45, v45, v45 quad_perm:[1,0,3,2] {DPP}")
        a.I(f"v_add_f32_dpp v45, v45, v45 quad_perm:[2,3,0,1] {DPP}")
        a.I("v_rcp_f32 v45, v45")
        a.I("v_mul_f32 v44, v44, v45")
        a.I(f"v_mul_f32_dpp v46, v44, v40 quad_perm:[0,0,0,0] {DPP}")
        for r in range(1, 4): a.I(f"v_fmac_f32_dpp v46, v44, v{40+r} quad_perm:[{r},{r},{r},{r}] {DPP}")
        a.I(f"s_mov_b64 exec, {mLO32}")
        a.I("ds_write_b32 v7, v46")
        a.I(f"s_mov_b64 exec, {mFULL}")
        a.I(f"v_lshlrev_b32 v7, 4, v0"); a.I(f"v_add_u32 v7, {MISC}, v7")
        a.I("v_lshlrev_b32 v5, 2, v0")
        a.I(f"s_lshl_b32 s{sT0}, s{sX}, 7"); a.I(f"s_add_u32 s{sT0}, s{sT0}, s{sYP}")
        a.wlg0(); self.barrier()
        a.I(f"s_cmp_lg_u32 s{sW}, 0"); a.I("s_cbranch_scc1 L_o_done")
        a.cond += 1
        a.I(f"ds_read_b128 {V(40)}, v7"); a.wlg0()
        a.I("v_pk_add_f32 v[40:41], v[40:41], v[42:43]"); a.I("v_add_f32 v40, v40, v41"); a.I("v_min_u32 v40, -2, v40")
        a.I(f"s_mov_b64 exec, {mLO32}")
        a.I(f"buffer_store_dword v40, v5, {S(rWS)}, s{sT0} offen sc1")
        a.I(f"s_mov_b64 exec, {mFULL}")
        a.cond -= 1
        a.L("L_o_done")
        a.I(f"s_mul_i32 s{sT0}, s{sPASS}, s{sX}"); a.I(f"s_cmp_lg_u32 s{sT0}, 0"); a.I("s_cbranch_scc1 L_abort")
        a.I(f"s_cmp_lg_u32 s{sPASS}, 0"); a.I("s_cbranch_scc1 L_nowq")
        a.cond += 1
        self.dma_voff(7, 8, 8192)
        self.dma_z(7, rWQ, sQSO, 32 * 8192)
        a.cond -= 1
        a.L("L_nowq")
        a.C("stage R")
        a.I(f"s_cmp_lg_u32 s{sW}, 0"); a.I("s_cbranch_scc1 L_r_done")
        a.cond += 1
        self.pub_off(6, 7, 1024)
        a.I(f"s_lshl_b32 s{sT0}, s{sI}, 5"); a.I(f"s_add_u32 s{sT0}, s{sT0}, s{sREG}"); a.I(f"s_add_u32 s{sT0}, s{sT0}, {XSA}")
        for r in range(8): a.I(f"v_mov_b32 v{32+r}, 0")
        if o.get("d_cross", 6): a.I(f"s_sleep {o.get('d_cross', 6)}")
        self.poll([(mLO32, f"buffer_load_dword v{32+x}, v5, {S(rWS)}, s{sYP} offen offset:{x*128} sc1") for x in range(8)], range(32, 40), 8)
        a.I("v_pk_add_f32 v[32:33], v[32:33], v[34:35]"); a.I("v_pk_add_f32 v[36:37], v[36:37], v[38:39]")
        a.I("v_pk_add_f32 v[32:33], v[32:33], v[36:37]")
        a.I("v_add_f32 v32, v32, v33"); a.I(f"v_add_f32 v32, v32, v{vXR}")
        self.pack_pub(32, 33)
        a.I(f"s_mov_b64 exec, {mEVEN}")
        self.publish(f"buffer_store_dword v33, v6, {S(rWS)}, s{sT0} offen")
        a.I(f"s_mov_b64 exec, {mFULL}")
        a.I(f"v_cvt_pk_bf16_f32 v{vXR}, v32, v32"); a.I(f"v_and_b32 v{vXR}, 0xffff0000, v{vXR}")
        a.cond -= 1
        a.L("L_r_done")
        a.C("stage H")
        w1off = lambda t, j: W1_OFF + (t * 4 + j) * 1024
        self.ln_prep(3, w1off)
        self.pub_off(7, 6, 2752)
        a.I(f"s_lshl_b32 s{sT0}, s{sW}, 8"); a.I(f"s_add_u32 s{sT0}, s{sT0}, s{sREG}"); a.I(f"s_add_u32 s{sT0}, s{sT0}, {XSA}")
        self.barrier()
        self.poll([(mN8, f"buffer_load_dwordx4 {V(self.XA)}, v5, {S(rWS)}, s{sT0} offen sc1")], range(self.XA, self.XA + 4), 6)
        self.ln_mm(3, w1off)
        a.I(f"s_cmp_lt_u32 s{sI}, 22"); a.I(f"s_cselect_b32 s{sT0}, 3, 2"); a.I(f"s_cmp_ge_u32 s{sW}, s{sT0}"); a.I("s_cbranch_scc1 L_h_done")
        a.cond += 1
        a.I(f"s_lshl_b32 s{sT0}, s{sW}, 5"); a.I(f"s_add_u32 s{sT0}, s{sT0}, s{sTILE}"); a.I(f"s_add_u32 s{sT0}, s{sT0}, s{sREG}"); a.I(f"s_add_u32 s{sT0}, s{sT0}, {HS}")
        self.ln_finish(3)
        a.I(f"v_fma_f32 v32, v32, v40, v{vB1}")
        a.I(f"v_mov_b32 v34, s{sK1}")
        a.I("v_mul_f32 v33, v32, v32")
        a.I(f"v_fma_f32 v33, v33, s{sK2}, v34")
        a.I("v_mul_f32 v33, v33, v32")
        a.I("v_exp_f32 v33, v33")
        a.I("v_add_f32 v33, 1.0, v33")
        a.I("v_rcp_f32 v33, v33")
        a.I("v_mul_f32 v32, v32, v33")
        self.pack_pub(32, 33)
        a.I(f"s_mov_b64 exec, {mEVEN}")
        self.publish(f"buffer_store_dword v33, v7, {S(rWS)}, s{sT0} offen")
        a.I(f"s_mov_b64 exec, {mFULL}")
        a.cond -= 1
        a.L("L_h_done")
        a.C("stage X2")
        self.gath_off(5, 6, 2752)
        for r in range(4): a.I(f"v_mov_b32 v{12 + r}, 0")
        rd = {}
        for k in range(6): rd[k] = self.trread(24 + 4 * k, W2_OFF + k * 1024)
        a.I(f"s_mul_i32 s{sT0}, s{sW}, 704"); a.I(f"s_add_u32 s{sT0}, s{sT0}, s{sREG}"); a.I(f"s_add_u32 s{sT0}, s{sT0}, {HS}")
        self.barrier()
        self.poll([(None, f"buffer_load_dwordx4 {V(8)}, v5, {S(rWS)}, s{sT0} offen sc1"),
                   (mH2, f"buffer_load_dwordx4 {V(12)}, v5, {S(rWS)}, s{sT0} offen offset:512 sc1")], range(8, 16), 6)
        cur, nxt = 8, 16
        for k in range(11):
            if k == 8: cur, nxt = 12, 16
            if k == 10:
                a.I(f"s_cmp_eq_u32 s{sW}, 3"); a.I("s_cbranch_scc1 L_x2skip"); a.cond += 1
            a.wlg(rd[k])
            b = 24 + 4 * (k % 6)
            a.I(f"{MF} {V(20)}, {V(cur)}, {V(b)}, {'0' if k == 0 else V(20)}")
            if k == 10:
                a.cond -= 1; a.L("L_x2skip")
            if k + 6 < 11: rd[k + 6] = self.trread(b, W2_OFF + (k + 6) * 1024)
            if k not in (7, 10):
                for r in range(4): a.I(f"v_mov_b32_dpp v{nxt + r}, v{cur + r} row_shl:2 {DPP}")
                cur, nxt = nxt, cur
        a.I(f"s_lshl_b32 s{sT0}, s{sW}, 2"); a.I(f"s_add_u32 s{sT0}, s{sT0}, {MISC}")
        a.I(f"v_lshl_add_u32 v5, v0, 4, s{sT0}")
        a.I(f"v_lshlrev_b32 v7, 4, v0"); a.I(f"v_add_u32 v7, {MISC}, v7")
        self.pub_off(6, 8, 1024)
        a.I(f"v_add_f32 v9, v{vXR}, v{vB2}")
        a.I(f"s_lshl_b32 s{sT1}, s{sI}, 5"); a.I(f"s_add_u32 s{sT0}, s{sT1}, s{sREG}"); a.I(f"s_add_u32 s{sT0}, s{sT0}, {XSB}")
        a.I(f"s_mov_b64 exec, {mLO16}")
        a.I("ds_write2st64_b32 v5, v20, v21 offset0:0 offset1:1")
        a.I(f"s_mov_b64 exec, {mFULL}")
        a.wlg0(); self.barrier()
        a.I(f"s_cmp_lg_u32 s{sW}, 0"); a.I("s_cbranch_scc1 L_x2_done")
        a.cond += 1
        a.I(f"ds_read_b128 {V(32)}, v7"); a.wlg0()
        a.I("v_pk_add_f32 v[32:33], v[32:33], v[34:35]"); a.I("v_add_f32 v32, v32, v33"); a.I("v_add_f32 v32, v32, v9")
        self.pack_pub(32, 33)
        a.I(f"s_mov_b64 exec, {mEVEN}")
        a.I(f"s_cmp_lg_u32 s{sPASS}, 0"); a.I("s_cbranch_scc1 L_final")
        self.publish(f"buffer_store_dword v33, v6, {S(rWS)}, s{sT0} offen")
        a.I(f"s_mov_b64 exec, {mFULL}")
        a.I(f"v_cvt_pk_bf16_f32 v{vXR}, v32, v32"); a.I(f"v_and_b32 v{vXR}, 0xffff0000, v{vXR}")
        a.cond -= 1
        a.L("L_x2_done")
        a.I(f"s_cmp_lg_u32 s{sPASS}, 0"); a.I("s_cbranch_scc1 L_abort")
        a.C("stage Q2")
        zoff = lambda t, j: Z_OFF + j * 1024
        a.wvm0()
        self.ln_prep(1, zoff)
        a.I(f"s_lshl_b32 s{sT0}, s{sW}, 8"); a.I(f"s_add_u32 s{sT0}, s{sT0}, s{sREG}"); a.I(f"s_add_u32 s{sT0}, s{sT0}, {XSB}")
        self.barrier()
        self.poll([(mN8, f"buffer_load_dwordx4 {V(self.XA)}, v5, {S(rWS)}, s{sT0} offen sc1")], range(self.XA, self.XA + 4), 6)
        a.I(f"s_mov_b32 s{sPASS}, 1"); a.I(f"s_add_u32 s{sREG}, s{sREG}, {REGION}"); a.I(f"s_add_u32 s{sYP}, s{sYP}, 32768")
        self.ln_mm(1, zoff)
        a.I(f"s_cmp_lg_u32 s{sW}, 0"); a.I("s_cbranch_scc1 L_q2_done")
        a.cond += 1
        self.ln_finish(1)
        a.I("v_mul_f32 v32, v32, v40")
        self.pack_pub(32, 47)
        self.q_publish(47)
        a.cond -= 1
        a.L("L_q2_done")
        a.C("attention 2")
        self.q_gather_prep()
        self.dma_voff(7, 10, 1024)
        a.I(f"s_lshr_b32 s{sT2}, s{sI}, 2"); a.I(f"s_lshl_b32 s{sT2}, s{sT2}, 8"); a.I(f"s_add_u32 s89, s{sT2}, s{sREG}")
        self.barrier()
        self.poll([(mN4, f"buffer_load_dwordx4 {V(self.QC)}, v9, {S(rWS)}, s89 offen sc1")], range(self.QC, self.QC + 4), 10)
        zl = [0]
        def fillz():
            if zl[0] == 0: self.dma_z(7, rWO, sWOO, 32 * 1024)
            zl[0] += 1
        self.qk(fill=fillz, order=(3, 2, 0, 1))
        a.I(f"v_lshl_add_u32 v9, v0, 4, s{sWB}")
        lv = [a.I(f"ds_read_b128 {Ar(176 + 4*e)}, v9 offset:{V_OFF + e*1024}") for e in range(12)]
        self.sm_max()
        for s in self.sm_exp(0): a.I(s)
        fl = self.sm_exp(1) + self.sm_sum()
        post = []
        def opnd(c, e):
            if c == 0: return Ar(176 + 4 * e)
            if c == 1: return Ar(176 + 32 + 4 * e) if e < 4 else V(HF + 4 * (e - 4))
            return V(BLK[c if c < 6 else c - 6] + 4 * e)
        order = [2, 3, 4, 5, 6, 7, 0, 1]
        def build(c, b):
            sig, v = c >> 2, c & 3
            if v == 0: return 24 + 4 * sig
            for r in range(4): a.I(f"v_mov_b32_dpp v{b+r}, v{24+4*sig+r} row_shl:{v} {DPP}")
            return b
        A = build(order[0], 16)
        for gi, c in enumerate(order):
            An = None
            for e in range(8):
                if c == 0 and e == 0: a.wlg(lv[-1])
                a.I(f"{MF} {Ar(224 + 4*e)}, {V(A)}, {opnd(c, e)}, {'0' if gi == 0 else Ar(224 + 4*e)}")
                if gi <= 1:
                    for _ in range(2):
                        if fl: a.I(fl.pop(0))
                if e == 5 and gi + 1 < 8:
                    if gi == 1:
                        while fl: a.I(fl.pop(0))
                    An = build(order[gi + 1], 16 + 4 * ((gi + 1) % 2))
                if gi == 2 and e == 0:
                    self.xlane(11, 12, "v_add_f32"); self.ml_write()
                if gi == 3 and e == 0:
                    a.wlg0(); self.barrier(); fr = self.f_read()
                if gi == 4 and e == 0:
                    a.wlg(fr); post = self.f_calc()
                if gi >= 4 and post:
                    for _ in range(2):
                        if post: a.I(post.pop(0))
            A = An
        a.wvm0()
        for j in range(4): self.trread(16 + 4 * j, Z_OFF + j * 1024)
        a.I(f"s_lshl_b32 s{sT0}, s{sW}, 9"); a.I(f"s_add_u32 s{sT0}, s{sT0}, {MISC}")
        a.I(f"v_lshl_add_u32 v9, v0, 5, s{sT0}")
        a.I(f"s_mov_b64 exec, {mLO16}")
        for e in range(0, 8, 2):
            a.I(f"ds_write2_b32 v9, a{224 + 4*e}, a{228 + 4*e} offset0:{e} offset1:{e+1}")
        a.I(f"s_mov_b64 exec, {mFULL}")
        a.I("s_branch L_fin")
        a.L("L_final")
        a.I(f"buffer_store_dword v33, v6, {S(rOUT)}, s{sT1} offen")
        a.I("s_endpgm")

if __name__ == "__main__":
    opt = {}
    out = sys.argv[1] if len(sys.argv) > 1 else "interleave_layers__gqa_block_cached__dense_activation_gelu__decode.s"
    for kv in sys.argv[2:]:
        k, v = kv.split("="); opt[k] = int(v)
    g = Gen(opt)
    t = g.build()
    open(out, "w").write(t)
    print("lines", t.count("\n"), "auto nops", g.a.nops)
```

```python
import sys, math
from asmlib import Asm
KNAME = "interleave_layers__gqa_block_cached__dense_activation_gelu__decode_kernel"

HEADER = open("interleave_layers__gqa_block_cached__dense_activation_gelu__decode.s.ref").read().split("; Override launch")[0]

WAREA = 39936; Z_OFF = 0; W1_OFF = 4096; V_OFF = 16384; W2_OFF = 28672
MISC = 158720; ML_LDS = MISC + 4096
REGION = 24576; QS = 0; AP = 2048; ML = 10240; XSA = 10496; XSB = 12544; HS = 14592
YP = 393216; WS_BYTES = 524288
sW, sX, sI, sREG, sYP, sMODE, sPASS, sCNT, sWB = 3, 4, 5, 6, 7, 9, 10, 11, 12
sT0, sT1, sT2, sPLO, sPHI, sTILE, sROT = 13, 14, 15, 16, 17, 18, 19
mFULL, mLO32, mEVEN, mN8, mN4, mG02, mL0, mH2, mLO16 = "s[20:21]", "s[22:23]", "s[24:25]", "s[26:27]", "s[28:29]", "s[30:31]", "s[32:33]", "s[34:35]", "s[76:77]"
rK, rV, rWQ, rWO, rW1, rW2, rWS, rT, rDBG, rOUT = 36, 40, 44, 48, 52, 56, 60, 64, 68, 72
sC, sXCC, sQSO, sWOO = 78, 79, 80, 81
sK1, sK2, sINV, sEPS = 82, 83, 84, 85
def S(r): return f"s[{r}:{r+3}]"
def V(r, n=4): return f"v[{r}:{r+n-1}]"
def Ar(r, n=4): return f"a[{r}:{r+n-1}]"
DPP = "row_mask:0xf bank_mask:0xf"
MF = "v_mfma_f32_16x16x32_bf16"
vLANE, vTR, vB1, vB2, vXR = 0, 1, 2, 3, 4
HF = 48
BLK = [64 + 32 * k for k in range(6)]
f2u = lambda x: "0x%08x" % (__import__("struct").unpack("<I", __import__("struct").pack("<f", x))[0])

class Gen:
    def __init__(self, opt):
        self.a = Asm(); self.o = opt; self.lab = 0
    def nl(self, p):
        self.lab += 1; return f"L_{p}_{self.lab}"

    def stamp(self, name):
        st = self.o.get("stamps", [])
        a = self.a
        hits = [k for k, x in enumerate(st) if x.split("@")[0] == name]
        if not hits: return
        a.I("s_memrealtime s[64:65]")
        a.I("s_waitcnt lgkmcnt(0)")
        for k in hits:
            if "@" in st[k]:
                a.I(f"s_cmp_eq_u32 s{sPASS}, {st[k].split('@')[1]}")
                a.I(f"s_cselect_b32 s{90+k}, s64, s{90+k}")
            else:
                a.I(f"s_mov_b32 s{90+k}, s64")
    def stamp_out(self):
        if not self.o.get("stamps"): return
        a = self.a
        a.I("s_mov_b64 exec, 1")
        a.I(f"s_lshl_b32 s64, s2, 2"); a.I(f"s_add_u32 s64, s64, s{sW}"); a.I("s_lshl_b32 s64, s64, 6"); a.I("s_add_u32 s64, s64, 0x70000")
        a.I("v_mov_b32 v20, 0")
        for k in range(12): a.I(f"v_mov_b32 v{8+k}, s{90+k}")
        for k in range(3): a.I(f"buffer_store_dwordx4 {V(8+4*k)}, v20, {S(rWS)}, s64 offen offset:{16*k}")
    def publish(self, instr):
        a = self.a
        ls, ld = self.nl("slow"), self.nl("pubd")
        a.I(f"s_cmp_lg_u32 s{sMODE}, 0")
        a.I(f"s_cbranch_scc1 {ls}")
        a.cond += 1
        a.I(instr)
        a.cond -= 1
        a.L(ld)
        self.ool.append((ls, instr + " sc1", ld))
    def barrier(self):
        self.a.I("s_barrier")
    def poll(self, loads, regs, vt, pre=None):
        a = self.a
        l = self.nl("poll")
        a.L(l)
        cur = None
        for m, ins in loads:
            if m != cur:
                a.I(f"s_mov_b64 exec, {m or mFULL}"); cur = m
            a.I(ins)
        if cur is not None: a.I(f"s_mov_b64 exec, {mFULL}")
        a.I(f"s_sub_u32 s{sCNT}, s{sCNT}, 1")
        a.I("s_cbranch_scc1 L_abort")
        a.wvm0()
        self.check(regs, vt)
        a.I(f"s_cbranch_vccnz {l}")
    def check(self, regs, vt):
        a = self.a
        r = list(regs)
        if len(r) % 2 == 1:
            a.I(f"v_max3_u32 v{vt}, v{r[0]}, v{r[1]}, v{r[2]}"); r = r[3:]
        else:
            a.I(f"v_max_u32 v{vt}, v{r[0]}, v{r[1]}"); r = r[2:]
        for k in range(0, len(r), 2):
            a.I(f"v_max3_u32 v{vt}, v{r[k]}, v{r[k+1]}, v{vt}")
        a.I(f"v_cmp_eq_u32 vcc, -1, v{vt}")
    def dma_voff(self, dst, tmp, pitch):
        a = self.a
        a.I(f"v_bfe_u32 v{dst}, v0, 3, 2")
        a.I(f"v_lshrrev_b32 v{tmp}, 5, v0")
        a.I(f"v_lshl_add_u32 v{dst}, v{dst}, 1, v{tmp}")
        a.I(f"v_bfe_u32 v{tmp}, v0, 1, 2")
        a.I(f"v_lshl_add_u32 v{dst}, v{dst}, 2, v{tmp}")
        a.I(f"v_and_b32 v{tmp}, 1, v0")
        a.I(f"v_lshlrev_b32 v{tmp}, 4, v{tmp}")
        a.I(f"s_movk_i32 s{sT2}, {pitch}")
        a.I(f"v_mad_u32_u24 v{dst}, v{dst}, s{sT2}, v{tmp}")
    def dma(self, voff, srd, soff_sgpr, ldsoff):
        a = self.a
        a.I(f"s_add_u32 m0, s{sWB}, {ldsoff}")
        key = {rWQ: "pq", rWO: "po", rW1: "p1", rW2: "p2"}[srd]
        pol = ["", " nt", " sc1", " sc1 nt", " sc0 sc1 nt"][self.o.get(key, self.o.get("wpol", 0))]
        if self.o.get("now") and srd in (rW1, rW2): return None
        if self.o.get("nowo") and srd == rWO: return None
        if self.o.get("nowq") and srd == rWQ: return None
        return a.I(f"buffer_load_dwordx4 v{voff}, {S(srd)}, s{soff_sgpr} offen{pol} lds")
    def dma_z(self, voff, srd, sbase, step):
        a = self.a; ids = []
        for j in range(4):
            if j == 0:
                ids.append(self.dma(voff, srd, sbase, Z_OFF))
            else:
                a.I(f"s_add_u32 s{sT0}, s{sbase}, {j*step}")
                ids.append(self.dma(voff, srd, sT0, Z_OFF + j * 1024))
        return ids
    def trread(self, dst, off, acc=False):
        a = self.a
        R = Ar if acc else V
        i1 = a.I(f"ds_read_b64_tr_b16 {R(dst,2)}, v{vTR} offset:{off}")
        i2 = a.I(f"ds_read_b64_tr_b16 {R(dst+2,2)}, v{vTR} offset:{off+512}")
        return i2
    def pack_pub(self, val, tmp):
        a = self.a
        a.I(f"v_mov_b32_dpp v{tmp}, v{val} quad_perm:[1,1,3,3] {DPP}")
        a.I(f"v_cvt_pk_bf16_f32 v{tmp}, v{val}, v{tmp}")
        a.I(f"v_min_u32 v{tmp}, -2, v{tmp}")
    def pub_off(self, dst, tmp, pitch):
        a = self.a
        a.I(f"v_bfe_u32 v{dst}, v0, 4, 1")
        a.I(f"v_and_b32 v{tmp}, 15, v0")
        a.I(f"v_lshlrev_b32 v{tmp}, 1, v{tmp}")
        a.I(f"s_movk_i32 s{sT2}, {pitch}")
        a.I(f"v_mad_u32_u24 v{dst}, v{dst}, s{sT2}, v{tmp}")
    def gath_off(self, dst, tmp, pitch):
        a = self.a
        a.I(f"v_bfe_u32 v{dst}, v0, 1, 3")
        a.I(f"v_lshrrev_b32 v{tmp}, 4, v0")
        a.I(f"v_lshl_add_u32 v{dst}, v{dst}, 2, v{tmp}")
        a.I(f"v_lshlrev_b32 v{dst}, 4, v{dst}")
        a.I(f"v_and_b32 v{tmp}, 1, v0")
        a.I(f"s_movk_i32 s{sT2}, {pitch}")
        a.I(f"v_mad_u32_u24 v{dst}, v{tmp}, s{sT2}, v{dst}")

    XA, XT = 8, 12
    def ln_prep(self, ntiles, woff):
        a = self.a
        self.gath_off(5, 6, 1024)
        for r in range(8): a.I(f"v_mov_b32 v{self.XA + r}, 0x3f803f80")
        self.ops = [(t, j) for j in range(4) for t in range(ntiles)]
        self.rd = {}
        for k in range(min(4, len(self.ops))):
            t, j = self.ops[k]
            self.rd[k] = self.trread(32 + 4 * k, woff(t, j))
    def ln_mm(self, ntiles, woff):
        a = self.a
        XA, XT = self.XA, self.XT
        k = 0
        cur, nxt = XA, XT
        for j in range(4):
            c = "0" if j == 0 else None
            acc = 16
            a.I(f"{MF} {V(acc)}, {V(cur)}, {V(cur)}, {c or V(acc)}")
            if j < 3:
                for r in range(4): a.I(f"v_mov_b32_dpp v{nxt + r}, v{cur + r} row_shl:2 {DPP}")
            for t in range(ntiles):
                acc = 20 + 4 * t
                a.wlg(self.rd[k])
                b = 32 + 4 * (k % 4)
                a.I(f"{MF} {V(acc)}, {V(cur)}, {V(b)}, {c or V(acc)}")
                if k + 4 < len(self.ops):
                    t2, j2 = self.ops[k + 4]
                    self.rd[k + 4] = self.trread(b, woff(t2, j2))
                k += 1
            cur, nxt = nxt, cur
        a.I(f"s_lshl_b32 s{sT0}, s{sW}, 2")
        a.I(f"s_add_u32 s{sT0}, s{sT0}, {MISC}")
        a.I(f"v_lshl_add_u32 v5, v0, 4, s{sT0}")
        if ntiles > 1:
            a.I(f"s_lshl_b32 s{sT1}, s{sW}, 10"); a.I(f"s_add_u32 s{sT1}, s{sT1}, {MISC}")
        else:
            a.I(f"s_mov_b32 s{sT1}, {MISC}")
        a.I(f"v_lshl_add_u32 v12, v0, 4, s{sT1}")
        a.I(f"v_and_b32 v13, 15, v0")
        a.I(f"v_lshl_add_u32 v13, v13, 4, s{sT1}")
        a.I(f"v_bfe_u32 v15, v0, 4, 1")
        a.I(f"v_mul_u32_u24 v14, 272, v15")
        a.I(f"v_lshlrev_b32 v15, 4, v15")
        a.I(f"s_mov_b64 exec, {mG02}")
        a.I(f"ds_write2st64_b32 v5, v16, v17 offset0:{4*ntiles} offset1:{4*ntiles+1}")
        for t in range(ntiles):
            a.I(f"ds_write2st64_b32 v5, v{20+4*t}, v{21+4*t} offset0:{4*t} offset1:{4*t+1}")
        a.I(f"s_mov_b64 exec, {mFULL}")
        a.wlg0()
        self.barrier()
    def ln_finish(self, ntiles):
        a = self.a
        g = MISC + ntiles * 1024
        r1 = a.I(f"ds_read_b128 {V(40)}, v14 offset:{g - MISC + 0}") if False else None
        a.I(f"v_add_u32 v14, {g}, v14")
        a.I(f"v_add_u32 v15, {g + 512}, v15")
        i_sq = a.I(f"ds_read_b128 {V(40)}, v14")
        i_sm = a.I(f"ds_read_b128 {V(44)}, v15")
        i_raw = a.I(f"ds_read_b128 {V(32)}, v12")
        i_cs = a.I(f"ds_read_b128 {V(36)}, v13 offset:512")
        a.wlg(i_sm)
        a.I("v_pk_add_f32 v[40:41], v[40:41], v[42:43]")
        a.I("v_pk_add_f32 v[44:45], v[44:45], v[46:47]")
        a.I("v_add_f32 v40, v40, v41")
        a.I("v_add_f32 v44, v44, v45")
        a.I(f"v_mul_f32 v44, s{sINV}, v44")
        a.I(f"v_mov_b32 v41, s{sEPS}")
        a.I(f"v_fma_f32 v40, v40, s{sINV}, v41")
        a.I("v_fma_f32 v40, -v44, v44, v40")
        a.I(f"v_max_f32 v40, s{sEPS}, v40")
        a.I("v_rsq_f32 v40, v40")
        a.wlg(i_cs)
        a.I("v_pk_add_f32 v[32:33], v[32:33], v[34:35]")
        a.I("v_pk_add_f32 v[36:37], v[36:37], v[38:39]")
        a.I("v_add_f32 v32, v32, v33")
        a.I("v_add_f32 v36, v36, v37")
        a.I("v_fma_f32 v32, -v44, v36, v32")

    QC, MASK = 12, 8
    def qk(self, fill=None, waitk=None, order=(0, 1, 2, 3)):
        a = self.a
        n = 0
        for vi, v in enumerate(order):
            a.I(f"v_and_b32 v{self.MASK}, 15, v0")
            a.I(f"v_cmp_eq_u32 vcc, {v}, v{self.MASK}")
            a.I(f"v_cndmask_b32 v{self.MASK}, 0, -1, vcc")
            if waitk: waitk(v)
            for j in range(4):
                b = 16 + 4 * (n % 2); n += 1
                for r in range(4):
                    a.I(f"v_and_b32_dpp v{b+r}, v{self.QC+r}, v{self.MASK} quad_perm:[{j},{j},{j},{j}] {DPP}")
                for u in range(4):
                    t = 4 * v + u
                    c = "0" if (vi == 0 and j == 0) else V(32 + 4 * u)
                    a.I(f"{MF} {V(32+4*u)}, {Ar(16*t + 4*j)}, {V(b)}, {c}")
                if fill: fill()
    def xlane(self, r, t, op):
        a = self.a
        a.I(f"{op}_dpp v{r}, v{r}, v{r} quad_perm:[1,0,3,2] {DPP}")
        a.I(f"{op}_dpp v{r}, v{r}, v{r} quad_perm:[2,3,0,1] {DPP}")
        a.I(f"v_mov_b32 v{t}, v{r}")
        a.I(f"v_permlane32_swap_b32 v{t}, v{r}")
        a.I(f"{op} v{r}, v{r}, v{t}")
        a.I(f"v_mov_b32 v{t}, v{r}")
        a.I(f"v_permlane16_swap_b32 v{t}, v{r}")
        a.I(f"{op} v{r}, v{r}, v{t}")
    def sm_max(self):
        a = self.a
        a.I("v_max3_f32 v10, v32, v33, v34")
        a.I("v_max3_f32 v11, v35, v36, v37")
        for k in range(38, 46, 4):
            a.I(f"v_max3_f32 v10, v{k}, v{k+1}, v10")
            a.I(f"v_max3_f32 v11, v{k+2}, v{k+3}, v11")
        a.I("v_max3_f32 v10, v46, v47, v10")
        a.I("v_max_f32 v10, v10, v11")
        self.xlane(10, 11, "v_max_f32")
        a.I(f"v_mul_f32 v10, s{sC}, v10")
    def sm_exp(self, sig):
        L = []
        b = 32 + 8 * sig
        for k in range(8): L.append(f"v_fma_f32 v{b+k}, v{b+k}, s{sC}, -v10")
        for k in range(8): L.append(f"v_exp_f32 v{b+k}, v{b+k}")
        for k in range(4): L.append(f"v_cvt_pk_bf16_f32 v{24+4*sig+k}, v{b+2*k}, v{b+2*k+1}")
        return L
    def sm_sum(self):
        L = []
        L.append("v_pk_add_f32 v[32:33], v[32:33], v[34:35]")
        L.append("v_pk_add_f32 v[36:37], v[36:37], v[38:39]")
        L.append("v_pk_add_f32 v[40:41], v[40:41], v[42:43]")
        L.append("v_pk_add_f32 v[44:45], v[44:45], v[46:47]")
        L.append("v_pk_add_f32 v[32:33], v[32:33], v[36:37]")
        L.append("v_pk_add_f32 v[40:41], v[40:41], v[44:45]")
        L.append("v_pk_add_f32 v[32:33], v[32:33], v[40:41]")
        L.append("v_add_f32 v11, v32, v33")
        return L
    def ml_write(self):
        a = self.a
        a.I(f"s_lshl_b32 s{sT0}, s{sW}, 2"); a.I(f"s_add_u32 s{sT0}, s{sT0}, {ML_LDS}")
        a.I(f"v_mov_b32 v12, s{sT0}")
        a.I(f"s_mov_b64 exec, {mL0}")
        a.I("ds_write2_b32 v12, v10, v11 offset0:0 offset1:4")
        a.I(f"s_mov_b64 exec, {mFULL}")
    def f_read(self):
        a = self.a
        a.I(f"v_mov_b32 v9, {ML_LDS}")
        a.I(f"ds_read_b128 {V(12)}, v9")
        return a.I(f"ds_read_b128 {V(44)}, v9 offset:16")
    def f_calc(self):
        L = []
        L.append("v_max3_f32 v10, v12, v13, v14")
        L.append("v_max_f32 v10, v10, v15")
        for k in range(4): L.append(f"v_sub_f32 v{12+k}, v{12+k}, v10")
        for k in range(4): L.append(f"v_exp_f32 v{12+k}, v{12+k}")
        L.append("v_mul_f32 v11, v12, v44")
        for k in range(1, 4): L.append(f"v_fmac_f32 v11, v{12+k}, v{44+k}")
        L.append("v_min_u32 v10, -2, v10")
        L.append("v_min_u32 v11, -2, v11")
        return L

    def perm_group(self, blk, outmap=None, temps=(40, 41)):
        a = self.a
        R = lambda s, d: blk + 4 * s + d
        t1, t2 = temps[0], temps[1]
        lo = lambda dst, x, y: a.I(f"v_perm_b32 v{dst}, v{y}, v{x}, s{sPLO}")
        hi = lambda dst, x, y: a.I(f"v_perm_b32 v{dst}, v{y}, v{x}, s{sPHI}")
        for p in range(4):
            x, y = R(2*p, p), R(2*p+1, p)
            lo(t1, x, y); hi(y, x, y); a.I(f"v_mov_b32 v{x}, v{t1}")
        for p in range(4):
            for d in range(p + 1, 4):
                ax, ay = R(2*p, d), R(2*p+1, d)
                bx, by = R(2*d, p), R(2*d+1, p)
                lo(t1, ax, ay); hi(t2, ax, ay)
                lo(ax, bx, by); hi(ay, bx, by)
                a.I(f"v_mov_b32 v{bx}, v{t1}"); a.I(f"v_mov_b32 v{by}, v{t2}")

    def build(self):
        a = self.a; o = self.o
        self.ool = []
        KV = "" if o.get("kvdef") else " nt"
        a.raw(HEADER.rstrip())
        a.raw("; @launch grid=(256,1,1) block=(256,1,1) lds=163840")
        a.raw('.amdgcn_target "amdgcn-amd-amdhsa--gfx950"')
        a.raw(".text"); a.raw(f".globl {KNAME}"); a.raw(".p2align 8"); a.raw(f".type {KNAME},@function"); a.raw(f"{KNAME}:")
        a.I("s_cmp_ge_u32 s2, 256"); a.I("s_cbranch_scc1 L_exit")
        if o.get("stamps"): a.I("s_memrealtime s[8:9]")
        a.I("s_load_dwordx16 s[76:91], s[0:1], 0")
        a.I("s_load_dwordx8 s[92:99], s[0:1], 64")
        a.I("s_load_dwordx2 s[100:101], s[0:1], 96")
        a.I("v_lshrrev_b32 v1, 6, v0")
        a.I(f"v_readfirstlane_b32 s{sW}, v1")
        a.I("v_and_b32 v0, 63, v0")
        a.I(f"s_and_b32 s{sX}, s2, 7"); a.I(f"s_lshr_b32 s{sI}, s2, 3")
        a.I("v_and_b32 v5, 3, v0"); a.I("v_bfe_u32 v6, v0, 2, 2"); a.I("v_lshl_add_u32 v5, v5, 2, v6")
        a.I("v_lshrrev_b32 v6, 4, v0"); a.I("v_lshlrev_b32 v6, 4, v6"); a.I("v_lshl_add_u32 v5, v5, 8, v6")
        a.I("v_lshlrev_b32 v6, 4, v0")
        a.I(f"s_bfe_u32 s{sT0}, s{sI}, 0x10002"); a.I(f"s_lshl_b32 s{sT0}, s{sT0}, 5")
        a.I(f"s_lshl_b32 s{sT1}, s{sX}, 2"); a.I(f"s_add_u32 s{sT0}, s{sT0}, s{sT1}")
        a.I(f"s_lshr_b32 s{sT1}, s{sI}, 3"); a.I(f"s_add_u32 s{sT0}, s{sT0}, s{sT1}")
        a.I(f"s_lshl_b32 s{sT0}, s{sT0}, 4")
        a.I(f"s_and_b32 s{sT1}, s{sI}, 3"); a.I(f"s_lshl_b32 s{sT1}, s{sT1}, 2"); a.I(f"s_add_u32 s{sT0}, s{sT0}, s{sT1}")
        a.I(f"s_add_u32 s{sT0}, s{sT0}, s{sW}"); a.I(f"s_lshl_b32 s{sT0}, s{sT0}, 16")
        a.I(f"s_lshl_b32 s{sROT}, s2, 2"); a.I(f"s_add_u32 s{sROT}, s{sROT}, s{sW}")
        a.I(f"s_mul_i32 s{sROT}, s{sROT}, 0x9E3779B1"); a.I(f"s_lshr_b32 s{sROT}, s{sROT}, 28"); a.I(f"s_lshl_b32 s{sROT}, s{sROT}, 12")
        a.I(f"s_mul_i32 s{sWB}, s{sW}, {WAREA}")
        for r, sz in ((rK, 65536), (rV, 65536), (rWQ, 1 << 22), (rWO, 1 << 22), (rW1, 512 * 2752), (rW2, 1376 * 1024), (rWS, WS_BYTES), (rT, 2048), (rDBG, 256), (rOUT, 2048)):
            a.I(f"s_mov_b32 s{r+2}, {sz}"); a.I(f"s_mov_b32 s{r+3}, 0x20000")
        self.dma_voff(7, 8, 8192)
        a.I("s_waitcnt lgkmcnt(0)")
        a.I(f"s_add_u32 s{rK}, s78, s{sT0}"); a.I(f"s_addc_u32 s{rK+1}, s79, 0")
        a.I(f"s_add_u32 s{rV}, s80, s{sT0}"); a.I(f"s_addc_u32 s{rV+1}, s81, 0")
        for r, p in ((rWS, 100), (rT, 76), (rWQ, 82), (rWO, 84), (rW1, 88), (rW2, 92), (rDBG, 98), (rOUT, 96)):
            a.I(f"s_mov_b64 s[{r}:{r+1}], s[{p}:{p+1}]")
        kid = {}
        def ktile(t):
            a.I(f"s_add_u32 s{sT1}, s{sROT}, {t*4096}"); a.I(f"s_and_b32 s{sT1}, s{sT1}, 0xffff")
            for j in range(4):
                kid[t] = a.I(f"buffer_load_dwordx4 {Ar(16*t+4*j)}, v5, {S(rK)}, s{sT1} offen offset:{j*64}{KV}")
        a.I(f"s_cmp_lg_u32 s{sW}, 0"); a.I("s_cbranch_scc1 L_noclear")
        a.cond += 1
        for r in range(4): a.I(f"v_mov_b32 v{16+r}, -1")
        a.I(f"s_lshl_b32 s{sT1}, s2, 11")
        a.I(f"buffer_store_dwordx4 {V(16)}, v6, {S(rWS)}, s{sT1} offen sc1")
        clr = a.I(f"buffer_store_dwordx4 {V(16)}, v6, {S(rWS)}, s{sT1} offen offset:1024 sc1")
        a.cond -= 1
        a.L("L_noclear")
        a.I(f"s_lshl_b32 s{sT0}, s{sW}, 20"); a.I(f"s_lshl_b32 s{sT1}, s{sX}, 10"); a.I(f"s_add_u32 s{sT0}, s{sT0}, s{sT1}")
        a.I(f"s_lshl_b32 s{sT1}, s{sI}, 5"); a.I(f"s_add_u32 s86, s{sT0}, s{sT1}")
        wqid = self.dma_z(7, rWQ, 86, 32 * 8192)
        self.gath_off(9, 10, 1024)
        for r in range(8): a.I(f"v_mov_b32 v{20 + r}, 0x3f803f80")
        a.I("v_and_b32 v10, 15, v0")
        a.I(f"v_cmp_gt_u32 {mN8}, 8, v10"); a.I(f"v_cmp_gt_u32 {mN4}, 4, v10")
        a.I(f"s_mov_b64 {mFULL}, -1")
        a.I(f"s_lshl_b32 s{sT0}, s{sW}, 8")
        a.I(f"s_mov_b64 exec, {mN8}")
        xid = a.I(f"buffer_load_dwordx4 {V(20)}, v9, {S(rT)}, s{sT0} offen")
        a.I(f"s_mov_b64 exec, {mFULL}")
        self.pub_off(9, 10, 1024)
        a.I(f"s_lshl_b32 s{sT0}, s{sI}, 5")
        a.I(f"buffer_load_ushort v{vXR}, v9, {S(rT)}, s{sT0} offen")
        ktile(0)
        a.I(f"s_mov_b64 s[{rT}:{rT+1}], s[94:95]"); a.I(f"s_mov_b32 s{rT+2}, 1024")
        a.I("v_and_b32 v10, 15, v0"); a.I("v_lshlrev_b32 v10, 1, v10")
        a.I(f"buffer_load_ushort v{vB2}, v10, {S(rT)}, s{sT0} offen")
        a.I(f"s_mul_i32 s{sT0}, s{sI}, 3"); a.I(f"s_lshl_b32 s{sT1}, s{sI}, 1"); a.I(f"s_add_u32 s{sT1}, s{sT1}, 22")
        a.I(f"s_min_u32 s{sTILE}, s{sT0}, s{sT1}"); a.I(f"s_lshl_b32 s{sTILE}, s{sTILE}, 5")
        a.I(f"s_mov_b64 s[{rT}:{rT+1}], s[90:91]"); a.I(f"s_mov_b32 s{rT+2}, 2752")
        a.I(f"s_lshl_b32 s{sT0}, s{sW}, 5"); a.I(f"s_add_u32 s{sT0}, s{sT0}, s{sTILE}")
        bid = a.I(f"buffer_load_ushort v{vB1}, v10, {S(rT)}, s{sT0} offen")
        if o.get("prew"):
            a.I(f"s_lshl_b32 s{sT0}, s2, 2"); a.I(f"s_add_u32 s{sT0}, s{sT0}, s{sW}"); a.I(f"s_mul_i32 s{sT0}, s{sT0}, 1376")
            for k, r in enumerate((rW1, rW2)):
                a.I(f"buffer_load_dwordx4 {V(BLK[5] + 8*k)}, v6, {S(r)}, s{sT0} offen")
                a.I(f"buffer_load_dwordx4 {V(BLK[5] + 8*k + 4)}, v6, {S(r)}, s{sT0} offen offset:1024")
        nk0 = o.get("nk0", 3); nk1 = o.get("nk1", 9)
        for t in range(1, nk0): ktile(t)
        if o.get("stamps"):
            for k in range(12): a.I(f"s_mov_b32 s{90+k}, 0")
            for k, x in enumerate(o["stamps"]):
                if x == "start": a.I(f"s_mov_b32 s{90+k}, s8")
        a.I(f"s_mov_b32 s{sQSO}, s86")
        a.I(f"s_getreg_b32 s{sXCC}, hwreg(HW_REG_XCC_ID, 0, 4)"); a.I(f"s_add_u32 s{sXCC}, s{sXCC}, 1")
        a.I(f"s_mov_b32 s{sC}, {f2u(math.log2(math.e) / math.sqrt(128.0))}")
        k1 = -2.0 * math.sqrt(2.0 / math.pi) * math.log2(math.e)
        a.I(f"s_mov_b32 s{sK1}, {f2u(k1)}"); a.I(f"s_mov_b32 s{sK2}, {f2u(k1 * 0.044715)}")
        a.I(f"s_mov_b32 s{sINV}, {f2u(1.0 / 512)}"); a.I(f"s_mov_b32 s{sEPS}, {f2u(1e-5)}")
        a.I(f"s_mov_b32 s{sPLO}, 0x05040100"); a.I(f"s_mov_b32 s{sPHI}, 0x07060302")
        a.I("s_mov_b32 s22, -1"); a.I("s_mov_b32 s23, 0")
        a.I("s_mov_b32 s24, 0x55555555"); a.I("s_mov_b32 s25, 0")
        a.I("s_mov_b32 s30, 0xffff"); a.I("s_mov_b32 s31, 0xffff")
        a.I("s_mov_b64 s[32:33], 1")
        a.I("s_mov_b32 s76, 0xffff"); a.I("s_mov_b32 s77, 0")
        a.I(f"s_cmp_eq_u32 s{sW}, 3"); a.I("s_cselect_b32 s34, 0x000f000f, 0x003f003f") if False else None
        a.I("s_mov_b32 s34, 0x003f003f"); a.I("s_cselect_b32 s34, 0x000f000f, s34"); a.I("s_mov_b32 s35, s34")
        a.I(f"s_mul_i32 s{sREG}, s{sX}, {2*REGION}")
        a.I(f"s_lshl_b32 s{sYP}, s{sI}, 10"); a.I(f"s_add_u32 s{sYP}, s{sYP}, {YP}")
        a.I(f"s_mov_b32 s{sPASS}, 0"); a.I(f"s_mov_b32 s{sCNT}, {o.get('timeout', 400000)}"); a.I(f"s_mov_b32 s{sMODE}, 1")
        a.I(f"s_lshl_b32 s{sT0}, s{sX}, 19"); a.I(f"s_lshl_b32 s{sT1}, s{sW}, 17"); a.I(f"s_add_u32 s{sT0}, s{sT0}, s{sT1}")
        a.I(f"s_lshl_b32 s{sT1}, s{sI}, 5"); a.I(f"s_add_u32 s{sWOO}, s{sT0}, s{sT1}")
        a.I(f"v_lshl_add_u32 v{vTR}, v0, 3, s{sWB}")
        a.I(f"s_cmp_lg_u32 s{sW}, 0"); a.I("s_cbranch_scc1 L_noflag")
        a.cond += 1
        a.wvm(clr)
        a.I(f"v_mov_b32 v10, s{sXCC}"); a.I("v_mov_b32 v11, s2")
        a.I(f"s_mov_b64 exec, {mL0}")
        a.I(f"buffer_store_byte v10, v11, {S(rDBG)}, 0 offen sc1")
        a.I(f"s_mov_b64 exec, {mFULL}")
        a.cond -= 1
        a.L("L_noflag")
        a.C("Q1")
        self.stamp("q1in")
        a.wvm([bid] + [x for x in wqid if x] + [xid])
        a.I(f"v_lshlrev_b32 v{vXR}, 16, v{vXR}"); a.I(f"v_lshlrev_b32 v{vB1}, 16, v{vB1}"); a.I(f"v_lshlrev_b32 v{vB2}, 16, v{vB2}")
        zoff = lambda t, j: Z_OFF + j * 1024
        self.ops = [(0, j) for j in range(4)]; self.rd = {}
        for k in range(4): self.rd[k] = self.trread(32 + 4 * k, zoff(0, k))
        for r in range(8): a.I(f"v_mov_b32 v{8 + r}, v{20 + r}")
        a.I("v_mov_b32 v28, v5")
        self.ln_mm(1, zoff)
        a.I(f"s_cmp_lg_u32 s{sW}, 0"); a.I("s_cbranch_scc1 L_q1nf")
        a.cond += 1
        self.ln_finish(1)
        a.I("v_mul_f32 v32, v32, v40")
        self.pack_pub(32, 47)
        a.cond -= 1
        a.L("L_q1nf")
        self.stamp("q1done")
        a.I("v_mov_b32 v5, v28")
        self.dma_voff(7, 8, 1024)
        self.dma_z(7, rWO, sWOO, 32 * 1024)
        for t in range(nk0, nk1): ktile(t)
        a.C("flags check")
        a.I("v_lshlrev_b32 v9, 2, v0")
        def flagchk():
            a.I("v_subrev_u32 v11, 0x01010101, v10")
            a.I("v_not_b32 v12, v10")
            a.I("v_and_b32 v11, v11, v12")
            a.I("v_and_b32 v11, 0x80808080, v11")
            a.I("v_cmp_ne_u32 vcc, 0, v11")
        fid = a.I(f"buffer_load_dword v10, v9, {S(rDBG)}, 0 offen sc1")
        ktile(nk1)
        a.wvm(fid)
        flagchk()
        a.I("s_cbranch_vccz L_flagok")
        a.L("L_flagpoll")
        a.cond += 1
        a.I(f"buffer_load_dword v10, v9, {S(rDBG)}, 0 offen sc1")
        a.I(f"s_sub_u32 s{sCNT}, s{sCNT}, 1"); a.I("s_cbranch_scc1 L_abort")
        a.wvm0()
        flagchk()
        a.I("s_cbranch_vccnz L_flagpoll")
        a.cond -= 1
        a.L("L_flagok")
        self.stamp("flagok")
        a.I(f"s_and_b32 s{sT0}, s{sX}, 3"); a.I(f"s_lshl_b32 s{sT0}, s{sT0}, 3")
        a.I(f"v_lshrrev_b32 v10, s{sT0}, v10"); a.I("v_and_b32 v10, 0xff, v10")
        a.I(f"v_cmp_ne_u32 vcc, s{sXCC}, v10")
        a.I(f"s_cmp_lt_u32 s{sX}, 4"); a.I(f"s_mov_b32 s{sT0}, 0xaaaaaaaa"); a.I(f"s_cselect_b32 s{sT0}, 0x55555555, s{sT0}")
        a.I(f"s_or_b32 s{sT1}, vcc_lo, vcc_hi"); a.I(f"s_and_b32 s{sMODE}, s{sT1}, s{sT0}")
        if o.get("force_slow"): a.I(f"s_mov_b32 s{sMODE}, 1")
        a.I(f"s_cmp_lg_u32 s{sW}, 0"); a.I("s_cbranch_scc1 L_q1np")
        a.cond += 1
        self.q_publish(47)
        a.cond -= 1
        a.L("L_q1np")
        for t in range(nk1 + 1, 16): ktile(t)
        self.dma_voff(9, 10, 2752)
        a.I(f"s_mul_i32 s87, s{sW}, {128*2752}"); a.I(f"s_add_u32 s87, s87, s{sTILE}")
        for t in range(3):
            for j in range(4):
                a.I(f"s_add_u32 s{sT0}, s87, {j*32*2752 + t*32}")
                self.dma(9, rW1, sT0, W1_OFF + (t * 4 + j) * 1024)
        a.I(f"s_mul_i32 s87, s{sW}, {11*32*1024}"); a.I(f"s_lshl_b32 s{sT0}, s{sI}, 5"); a.I(f"s_add_u32 s87, s87, s{sT0}")
        def w2dma(j):
            if j == 10:
                a.I(f"s_cmp_eq_u32 s{sW}, 3"); a.I("s_cbranch_scc1 L_now2"); a.cond += 1
            a.I(f"s_add_u32 s{sT0}, s87, {j*32*1024}")
            self.dma(7, rW2, sT0, W2_OFF + j * 1024)
            if j == 10:
                a.cond -= 1; a.L("L_now2")
        vid = {}
        def vload(c, e):
            sig, v = c >> 2, c & 3
            blk = BLK[c if c < 6 else c - 6]
            t = 4 * v + 2 * sig + (e >> 2)
            if e % 4 == 0:
                a.I(f"s_add_u32 s{sT1}, s{sROT}, {t*4096}"); a.I(f"s_and_b32 s88, s{sT1}, 0xffff")
            vid[(c, e)] = a.I(f"buffer_load_dwordx4 {V(blk + 4*e)}, v6, {S(rV)}, s88 offen offset:{(e&3)*1024}{KV}")
        a.C("q1 gather")
        self.q_gather_prep()
        a.I(f"s_mov_b64 exec, {mN4}")
        qins = f"buffer_load_dwordx4 {V(self.QC)}, v9, {S(rWS)}, s{sT2} offen sc1"
        a.I(f"s_mov_b32 s89, s{sT2}")
        qins = qins.replace(f"s{sT2} offen", "s89 offen")
        qid = a.I(qins)
        a.I(f"s_mov_b64 exec, {mFULL}")
        for j in range(6): w2dma(j)
        a.wvm(qid)
        self.check(range(self.QC, self.QC + 4), 10)
        a.I("s_cbranch_vccz L_q1ok")
        a.cond += 1
        self.poll([(mN4, qins)], range(self.QC, self.QC + 4), 10)
        a.cond -= 1
        a.L("L_q1ok")
        self.stamp("q1ok")
        fl = [lambda j=j: w2dma(j) for j in range(6, 11)] + [lambda e=e: vload(0, e) for e in range(8)] + [lambda e=e: vload(1, e) for e in range(8)]
        def fill():
            if fl: fl.pop(0)()
        self.qk(fill=fill, waitk=lambda v: a.wvm(kid[4 * v + 3]))
        while fl: fl.pop(0)()
        self.sm_max()
        for s in self.sm_exp(0) + self.sm_exp(1) + self.sm_sum(): a.I(s)
        self.xlane(11, 12, "v_add_f32")
        self.ml_write()
        a.I(f"v_lshl_add_u32 v9, v0, 4, s{sWB}")
        a.I("v_and_b32 v8, 15, v0"); a.I("v_cmp_eq_u32 vcc, 0, v8"); a.I("v_cndmask_b32 v8, 0, -1, vcc")
        self.stamp("sm1")
        first = True
        for c in range(8):
            sig, v = c >> 2, c & 3
            if c + 2 < 8:
                if c + 2 >= 6: a.wlg0()
                for e in range(8): vload(c + 2, e)
            blk = BLK[c if c < 6 else c - 6]
            if c == 7:
                self.stamp("g6done")
                a.wlg0(); self.barrier()
                fr = self.f_read(); a.wlg(fr)
                for s in self.f_calc(): a.I(s)
            a.wvm(vid[(c, 7)])
            if c == 7: self.stamp("vlast")
            self.perm_group(blk)
            for rho in range(4):
                b = 16 + 4 * (rho % 2)
                for r in range(4):
                    a.I(f"v_and_b32_dpp v{b+r}, v{24+4*sig+r}, v8 quad_perm:[{v},{v},{v},{v}] {DPP}")
                a.I(f"v_mov_b32_dpp v8, v8 quad_perm:[3,0,1,2] {DPP}")
                a.I(f"{MF} {V(32)}, {V(b)}, {V(blk + 4*rho)}, {'0' if first else V(32)}")
                a.I(f"{MF} {V(36)}, {V(b)}, {V(blk + 4*(rho+4))}, {'0' if first else V(36)}")
                first = False
            if c == 0:
                for e in range(8): a.I(f"ds_write_b128 v9, {V(blk + 4*e)} offset:{V_OFF + e*1024}")
            if c == 1:
                for e in range(4): a.I(f"ds_write_b128 v9, {V(blk + 4*e)} offset:{V_OFF + (8+e)*1024}")
                for r in range(16): a.I(f"v_mov_b32 v{HF + r}, v{blk + 16 + r}")
        for j in range(4): self.trread(16 + 4 * j, Z_OFF + j * 1024)
        a.I(f"s_lshl_b32 s{sT0}, s{sW}, 9"); a.I(f"s_add_u32 s{sT0}, s{sT0}, {MISC}")
        a.I(f"v_lshl_add_u32 v9, v0, 5, s{sT0}")
        a.I(f"s_mov_b64 exec, {mLO16}")
        a.I(f"ds_write_b128 v9, {V(32)}"); a.I(f"ds_write_b128 v9, {V(36)} offset:16")
        a.I(f"s_mov_b64 exec, {mFULL}")
        self.tail()
        for ls, ins, ld in self.ool:
            a.L(ls); a.I(ins); a.I(f"s_branch {ld}")
        a.L("L_abort"); self.stamp_out(); a.L("L_exit"); a.I("s_endpgm")
        a.raw('.section .rodata,"a"'); a.raw(".p2align 6"); a.raw(f".amdhsa_kernel {KNAME}")
        for s in (".amdhsa_next_free_vgpr 512", ".amdhsa_next_free_sgpr 102", ".amdhsa_accum_offset 256", ".amdhsa_group_segment_fixed_size 0",
                  ".amdhsa_kernarg_size 104", ".amdhsa_user_sgpr_count 2", ".amdhsa_user_sgpr_kernarg_segment_ptr 1", ".amdhsa_system_sgpr_workgroup_id_x 1"):
            a.raw("  " + s)
        a.raw(".end_amdhsa_kernel")
        return a.text()

    def q_publish(self, pv):
        a = self.a
        self.pub_off(9, 10, 256)
        a.I(f"s_lshr_b32 s{sT0}, s{sI}, 3"); a.I(f"s_lshl_b32 s{sT0}, s{sT0}, 9")
        a.I(f"s_and_b32 s{sT1}, s{sI}, 7"); a.I(f"s_lshl_b32 s{sT1}, s{sT1}, 5")
        a.I(f"s_add_u32 s{sT0}, s{sT0}, s{sT1}"); a.I(f"s_add_u32 s{sT0}, s{sT0}, s{sREG}")
        a.I(f"s_mov_b64 exec, {mEVEN}")
        self.publish(f"buffer_store_dword v{pv}, v9, {S(rWS)}, s{sT0} offen")
        a.I(f"s_mov_b64 exec, {mFULL}")
    def q_gather_prep(self):
        a = self.a
        a.I("v_and_b32 v9, 15, v0"); a.I("v_lshrrev_b32 v10, 4, v0"); a.I("v_lshl_add_u32 v9, v9, 2, v10"); a.I("v_lshlrev_b32 v9, 4, v9")
        for r in range(4): a.I(f"v_mov_b32 v{self.QC + r}, 0")
        a.I(f"s_lshr_b32 s{sT2}, s{sI}, 2"); a.I(f"s_lshl_b32 s{sT2}, s{sT2}, 8"); a.I(f"s_add_u32 s{sT2}, s{sT2}, s{sREG}")

    def tail(self):
        a = self.a; o = self.o
        a.L("L_fin")
        a.C("attention finish")
        self.stamp("fin")
        a.I(f"v_lshlrev_b32 v8, 3, v0"); a.I(f"v_add_u32 v8, {MISC}, v8")
        a.I(f"s_lshl_b32 s{sT0}, s{sI}, 8"); a.I(f"s_add_u32 s{sT0}, s{sT0}, s{sREG}"); a.I(f"s_add_u32 s{sT0}, s{sT0}, {AP}")
        a.I(f"s_lshl_b32 s{sT1}, s{sI}, 3"); a.I(f"s_add_u32 s{sT1}, s{sT1}, s{sREG}"); a.I(f"s_add_u32 s{sT1}, s{sT1}, {ML}")
        a.I("v_lshlrev_b32 v7, 2, v0")
        a.wlg0(); self.barrier()
        a.I(f"s_cmp_lg_u32 s{sW}, 0"); a.I("s_cbranch_scc1 L_fin_done")
        a.cond += 1
        ids = [a.I(f"ds_read_b64 {V(40+2*w, 2)}, v8 offset:{w*512}") for w in range(4)]
        a.wlg(ids[0])
        a.I("v_mul_f32 v40, v12, v40"); a.I("v_mul_f32 v41, v12, v41")
        for w in range(1, 4):
            a.wlg(ids[w])
            a.I(f"v_fmac_f32 v40, v{12+w}, v{40+2*w}"); a.I(f"v_fmac_f32 v41, v{12+w}, v{41+2*w}")
        a.I("v_cvt_pk_bf16_f32 v9, v40, v41"); a.I("v_min_u32 v9, -2, v9")
        self.publish(f"buffer_store_dword v9, v7, {S(rWS)}, s{sT0} offen")
        a.I(f"s_mov_b64 exec, {mL0}")
        self.publish(f"buffer_store_dwordx2 v[10:11], v7, {S(rWS)}, s{sT1} offen")
        a.I(f"s_mov_b64 exec, {mFULL}")
        a.cond -= 1
        a.L("L_fin_done")
        self.stamp("finpub")
        a.C("stage O")
        a.I("v_and_b32 v5, 7, v0"); a.I("v_bfe_u32 v6, v0, 3, 1"); a.I("v_lshl_add_u32 v5, v5, 2, v6")
        a.I("v_lshrrev_b32 v6, 4, v0"); a.I("v_lshl_add_u32 v5, v5, 2, v6"); a.I("v_lshlrev_b32 v5, 4, v5")
        a.I("v_bfe_u32 v6, v0, 4, 1"); a.I("v_and_b32 v7, 3, v0"); a.I("v_lshl_add_u32 v6, v6, 2, v7"); a.I("v_lshlrev_b32 v6, 3, v6")
        a.I(f"s_lshl_b32 s{sT0}, s{sW}, 11"); a.I(f"s_add_u32 s{sT0}, s{sT0}, s{sREG}"); a.I(f"s_add_u32 s{sT0}, s{sT0}, {AP}")
        a.I(f"s_lshl_b32 s{sT1}, s{sW}, 6"); a.I(f"s_add_u32 s{sT1}, s{sT1}, s{sREG}"); a.I(f"s_add_u32 s{sT1}, s{sT1}, {ML}")
        a.I(f"s_lshl_b32 s{sT2}, s{sW}, 2"); a.I(f"s_add_u32 s{sT2}, s{sT2}, {MISC}")
        a.I(f"v_lshl_add_u32 v7, v0, 4, s{sT2}")
        self.barrier()
        self.poll([(None, f"buffer_load_dwordx2 v[44:45], v6, {S(rWS)}, s{sT1} offen sc1"),
                   (None, f"buffer_load_dwordx4 {V(32)}, v5, {S(rWS)}, s{sT0} offen sc1"),
                   (None, f"buffer_load_dwordx4 {V(36)}, v5, {S(rWS)}, s{sT0} offen offset:128 sc1")],
                  [44, 45] + list(range(32, 40)), 8)
        self.stamp("e1")
        a.I(f"{MF} {V(40)}, {V(32)}, {V(16)}, 0")
        a.I(f"v_max_f32_dpp v46, v44, v44 quad_perm:[1,0,3,2] {DPP}")
        a.I(f"{MF} {V(40)}, {V(36)}, {V(24)}, {V(40)}")
        for r in range(4): a.I(f"v_mov_b32_dpp v{32+r}, v{32+r} row_shl:8 {DPP}")
        a.I(f"v_max_f32_dpp v46, v46, v46 quad_perm:[2,3,0,1] {DPP}")
        a.I(f"v_mov_b32_dpp v36, v36 row_shl:8 {DPP}")
        a.I(f"{MF} {V(40)}, {V(32)}, {V(20)}, {V(40)}")
        for r in range(1, 4): a.I(f"v_mov_b32_dpp v{36+r}, v{36+r} row_shl:8 {DPP}")
        a.I("v_sub_f32 v44, v44, v46")
        a.I("v_exp_f32 v44, v44")
        a.I(f"{MF} {V(40)}, {V(36)}, {V(28)}, {V(40)}")
        a.I("v_mul_f32 v45, v44, v45")
        a.I(f"v_add_f32_dpp v45, v45, v45 quad_perm:[1,0,3,2] {DPP}")
        a.I(f"v_add_f32_dpp v45, v45, v45 quad_perm:[2,3,0,1] {DPP}")
        a.I("v_rcp_f32 v45, v45")
        a.I("v_mul_f32 v44, v44, v45")
        a.I(f"v_mul_f32_dpp v46, v44, v40 quad_perm:[0,0,0,0] {DPP}")
        for r in range(1, 4): a.I(f"v_fmac_f32_dpp v46, v44, v{40+r} quad_perm:[{r},{r},{r},{r}] {DPP}")
        a.I(f"s_mov_b64 exec, {mLO32}")
        a.I("ds_write_b32 v7, v46")
        a.I(f"s_mov_b64 exec, {mFULL}")
        a.I(f"v_lshlrev_b32 v7, 4, v0"); a.I(f"v_add_u32 v7, {MISC}, v7")
        a.I("v_lshlrev_b32 v5, 2, v0")
        a.I(f"s_lshl_b32 s{sT0}, s{sX}, 7"); a.I(f"s_add_u32 s{sT0}, s{sT0}, s{sYP}")
        a.wlg0(); self.barrier()
        a.I(f"s_cmp_lg_u32 s{sW}, 0"); a.I("s_cbranch_scc1 L_o_done")
        a.cond += 1
        a.I(f"ds_read_b128 {V(40)}, v7"); a.wlg0()
        a.I("v_pk_add_f32 v[40:41], v[40:41], v[42:43]"); a.I("v_add_f32 v40, v40, v41"); a.I("v_min_u32 v40, -2, v40")
        a.I(f"s_mov_b64 exec, {mLO32}")
        a.I(f"buffer_store_dword v40, v5, {S(rWS)}, s{sT0} offen sc1")
        a.I(f"s_mov_b64 exec, {mFULL}")
        a.cond -= 1
        a.L("L_o_done")
        self.stamp("opub")
        a.I(f"s_mul_i32 s{sT0}, s{sPASS}, s{sX}"); a.I(f"s_cmp_lg_u32 s{sT0}, 0"); a.I("s_cbranch_scc1 L_abort")
        a.I(f"s_cmp_lg_u32 s{sPASS}, 0"); a.I("s_cbranch_scc1 L_nowq")
        a.cond += 1
        self.dma_voff(7, 8, 8192)
        self.dma_z(7, rWQ, sQSO, 32 * 8192)
        a.cond -= 1
        a.L("L_nowq")
        a.C("stage R")
        a.I(f"s_cmp_lg_u32 s{sW}, 0"); a.I("s_cbranch_scc1 L_r_done")
        a.cond += 1
        self.pub_off(6, 7, 1024)
        a.I(f"s_lshl_b32 s{sT0}, s{sI}, 5"); a.I(f"s_add_u32 s{sT0}, s{sT0}, s{sREG}"); a.I(f"s_add_u32 s{sT0}, s{sT0}, {XSA}")
        for r in range(8): a.I(f"v_mov_b32 v{32+r}, 0")
        if o.get("d_cross", 6): a.I(f"s_sleep {o.get('d_cross', 6)}")
        self.poll([(mLO32, f"buffer_load_dword v{32+x}, v5, {S(rWS)}, s{sYP} offen offset:{x*128} sc1") for x in range(8)], range(32, 40), 8)
        self.stamp("e2a")
        a.I("v_pk_add_f32 v[32:33], v[32:33], v[34:35]"); a.I("v_pk_add_f32 v[36:37], v[36:37], v[38:39]")
        a.I("v_pk_add_f32 v[32:33], v[32:33], v[36:37]")
        a.I("v_add_f32 v32, v32, v33"); a.I(f"v_add_f32 v32, v32, v{vXR}")
        self.pack_pub(32, 33)
        a.I(f"s_mov_b64 exec, {mEVEN}")
        self.publish(f"buffer_store_dword v33, v6, {S(rWS)}, s{sT0} offen")
        a.I(f"s_mov_b64 exec, {mFULL}")
        a.I(f"v_cvt_pk_bf16_f32 v{vXR}, v32, v32"); a.I(f"v_and_b32 v{vXR}, 0xffff0000, v{vXR}")
        a.cond -= 1
        a.L("L_r_done")
        self.stamp("rpub")
        a.C("stage H")
        w1off = lambda t, j: W1_OFF + (t * 4 + j) * 1024
        self.ln_prep(3, w1off)
        self.pub_off(7, 6, 2752)
        a.I(f"s_lshl_b32 s{sT0}, s{sW}, 8"); a.I(f"s_add_u32 s{sT0}, s{sT0}, s{sREG}"); a.I(f"s_add_u32 s{sT0}, s{sT0}, {XSA}")
        self.barrier()
        self.poll([(mN8, f"buffer_load_dwordx4 {V(self.XA)}, v5, {S(rWS)}, s{sT0} offen sc1")], range(self.XA, self.XA + 4), 6)
        self.stamp("e2b")
        self.ln_mm(3, w1off)
        a.I(f"s_cmp_lt_u32 s{sI}, 22"); a.I(f"s_cselect_b32 s{sT0}, 3, 2"); a.I(f"s_cmp_ge_u32 s{sW}, s{sT0}"); a.I("s_cbranch_scc1 L_h_done")
        a.cond += 1
        a.I(f"s_lshl_b32 s{sT0}, s{sW}, 5"); a.I(f"s_add_u32 s{sT0}, s{sT0}, s{sTILE}"); a.I(f"s_add_u32 s{sT0}, s{sT0}, s{sREG}"); a.I(f"s_add_u32 s{sT0}, s{sT0}, {HS}")
        self.ln_finish(3)
        a.I(f"v_fma_f32 v32, v32, v40, v{vB1}")
        a.I(f"v_mov_b32 v34, s{sK1}")
        a.I("v_mul_f32 v33, v32, v32")
        a.I(f"v_fma_f32 v33, v33, s{sK2}, v34")
        a.I("v_mul_f32 v33, v33, v32")
        a.I("v_exp_f32 v33, v33")
        a.I("v_add_f32 v33, 1.0, v33")
        a.I("v_rcp_f32 v33, v33")
        a.I("v_mul_f32 v32, v32, v33")
        self.pack_pub(32, 33)
        a.I(f"s_mov_b64 exec, {mEVEN}")
        self.publish(f"buffer_store_dword v33, v7, {S(rWS)}, s{sT0} offen")
        a.I(f"s_mov_b64 exec, {mFULL}")
        a.cond -= 1
        a.L("L_h_done")
        self.stamp("hpub")
        a.C("stage X2")
        self.gath_off(5, 6, 2752)
        for r in range(4): a.I(f"v_mov_b32 v{12 + r}, 0")
        rd = {}
        for k in range(6): rd[k] = self.trread(24 + 4 * k, W2_OFF + k * 1024)
        a.I(f"s_mul_i32 s{sT0}, s{sW}, 704"); a.I(f"s_add_u32 s{sT0}, s{sT0}, s{sREG}"); a.I(f"s_add_u32 s{sT0}, s{sT0}, {HS}")
        self.barrier()
        self.poll([(None, f"buffer_load_dwordx4 {V(8)}, v5, {S(rWS)}, s{sT0} offen sc1"),
                   (mH2, f"buffer_load_dwordx4 {V(12)}, v5, {S(rWS)}, s{sT0} offen offset:512 sc1")], range(8, 16), 6)
        self.stamp("e3")
        cur, nxt = 8, 16
        for k in range(11):
            if k == 8: cur, nxt = 12, 16
            if k == 10:
                a.I(f"s_cmp_eq_u32 s{sW}, 3"); a.I("s_cbranch_scc1 L_x2skip"); a.cond += 1
            a.wlg(rd[k])
            b = 24 + 4 * (k % 6)
            a.I(f"{MF} {V(20)}, {V(cur)}, {V(b)}, {'0' if k == 0 else V(20)}")
            if k == 10:
                a.cond -= 1; a.L("L_x2skip")
            if k + 6 < 11: rd[k + 6] = self.trread(b, W2_OFF + (k + 6) * 1024)
            if k not in (7, 10):
                for r in range(4): a.I(f"v_mov_b32_dpp v{nxt + r}, v{cur + r} row_shl:2 {DPP}")
                cur, nxt = nxt, cur
        a.I(f"s_lshl_b32 s{sT0}, s{sW}, 2"); a.I(f"s_add_u32 s{sT0}, s{sT0}, {MISC}")
        a.I(f"v_lshl_add_u32 v5, v0, 4, s{sT0}")
        a.I(f"v_lshlrev_b32 v7, 4, v0"); a.I(f"v_add_u32 v7, {MISC}, v7")
        self.pub_off(6, 8, 1024)
        a.I(f"v_add_f32 v9, v{vXR}, v{vB2}")
        a.I(f"s_lshl_b32 s{sT1}, s{sI}, 5"); a.I(f"s_add_u32 s{sT0}, s{sT1}, s{sREG}"); a.I(f"s_add_u32 s{sT0}, s{sT0}, {XSB}")
        a.I(f"s_mov_b64 exec, {mLO16}")
        a.I("ds_write2st64_b32 v5, v20, v21 offset0:0 offset1:1")
        a.I(f"s_mov_b64 exec, {mFULL}")
        a.wlg0(); self.barrier()
        a.I(f"s_cmp_lg_u32 s{sW}, 0"); a.I("s_cbranch_scc1 L_x2_done")
        a.cond += 1
        a.I(f"ds_read_b128 {V(32)}, v7"); a.wlg0()
        a.I("v_pk_add_f32 v[32:33], v[32:33], v[34:35]"); a.I("v_add_f32 v32, v32, v33"); a.I("v_add_f32 v32, v32, v9")
        self.pack_pub(32, 33)
        a.I(f"s_mov_b64 exec, {mEVEN}")
        a.I(f"s_cmp_lg_u32 s{sPASS}, 0"); a.I("s_cbranch_scc1 L_final")
        self.publish(f"buffer_store_dword v33, v6, {S(rWS)}, s{sT0} offen")
        a.I(f"s_mov_b64 exec, {mFULL}")
        a.I(f"v_cvt_pk_bf16_f32 v{vXR}, v32, v32"); a.I(f"v_and_b32 v{vXR}, 0xffff0000, v{vXR}")
        a.cond -= 1
        a.L("L_x2_done")
        self.stamp("xpub")
        a.I(f"s_cmp_lg_u32 s{sPASS}, 0"); a.I("s_cbranch_scc1 L_abort")
        a.C("stage Q2")
        zoff = lambda t, j: Z_OFF + j * 1024
        a.wvm0()
        self.ln_prep(1, zoff)
        a.I(f"s_lshl_b32 s{sT0}, s{sW}, 8"); a.I(f"s_add_u32 s{sT0}, s{sT0}, s{sREG}"); a.I(f"s_add_u32 s{sT0}, s{sT0}, {XSB}")
        self.barrier()
        self.poll([(mN8, f"buffer_load_dwordx4 {V(self.XA)}, v5, {S(rWS)}, s{sT0} offen sc1")], range(self.XA, self.XA + 4), 6)
        self.stamp("e4")
        a.I(f"s_mov_b32 s{sPASS}, 1"); a.I(f"s_add_u32 s{sREG}, s{sREG}, {REGION}"); a.I(f"s_add_u32 s{sYP}, s{sYP}, 32768")
        self.ln_mm(1, zoff)
        a.I(f"s_cmp_lg_u32 s{sW}, 0"); a.I("s_cbranch_scc1 L_q2_done")
        a.cond += 1
        self.ln_finish(1)
        a.I("v_mul_f32 v32, v32, v40")
        self.pack_pub(32, 47)
        self.q_publish(47)
        a.cond -= 1
        a.L("L_q2_done")
        self.stamp("qpub")
        a.C("attention 2")
        self.q_gather_prep()
        self.dma_voff(7, 10, 1024)
        a.I(f"s_lshr_b32 s{sT2}, s{sI}, 2"); a.I(f"s_lshl_b32 s{sT2}, s{sT2}, 8"); a.I(f"s_add_u32 s89, s{sT2}, s{sREG}")
        self.barrier()
        self.poll([(mN4, f"buffer_load_dwordx4 {V(self.QC)}, v9, {S(rWS)}, s89 offen sc1")], range(self.QC, self.QC + 4), 10)
        self.stamp("e5")
        zl = [0]
        def fillz():
            if zl[0] == 0: self.dma_z(7, rWO, sWOO, 32 * 1024)
            zl[0] += 1
        self.qk(fill=fillz, order=(3, 2, 0, 1))
        self.stamp("qk2")
        a.I(f"v_lshl_add_u32 v9, v0, 4, s{sWB}")
        lv = [a.I(f"ds_read_b128 {Ar(176 + 4*e)}, v9 offset:{V_OFF + e*1024}") for e in range(12)]
        self.sm_max()
        for s in self.sm_exp(0): a.I(s)
        fl = self.sm_exp(1) + self.sm_sum()
        post = []
        def opnd(c, e):
            if c == 0: return Ar(176 + 4 * e)
            if c == 1: return Ar(176 + 32 + 4 * e) if e < 4 else V(HF + 4 * (e - 4))
            return V(BLK[c if c < 6 else c - 6] + 4 * e)
        order = [2, 3, 4, 5, 6, 7, 0, 1]
        def build(c, b):
            sig, v = c >> 2, c & 3
            if v == 0: return 24 + 4 * sig
            for r in range(4): a.I(f"v_mov_b32_dpp v{b+r}, v{24+4*sig+r} row_shl:{v} {DPP}")
            return b
        self.stamp("sm2")
        A = build(order[0], 16)
        for gi, c in enumerate(order):
            An = None
            for e in range(8):
                if c == 0 and e == 0: a.wlg(lv[-1])
                a.I(f"{MF} {Ar(224 + 4*e)}, {V(A)}, {opnd(c, e)}, {'0' if gi == 0 else Ar(224 + 4*e)}")
                if gi <= 1:
                    for _ in range(2):
                        if fl: a.I(fl.pop(0))
                if e == 5 and gi + 1 < 8:
                    if gi == 1:
                        while fl: a.I(fl.pop(0))
                    An = build(order[gi + 1], 16 + 4 * ((gi + 1) % 2))
                if gi == 2 and e == 0:
                    self.xlane(11, 12, "v_add_f32"); self.ml_write()
                if gi == 3 and e == 0:
                    a.wlg0(); self.barrier(); fr = self.f_read()
                if gi == 4 and e == 0:
                    a.wlg(fr); post = self.f_calc()
                if gi >= 4 and post:
                    for _ in range(2):
                        if post: a.I(post.pop(0))
            A = An
        a.wvm0()
        for j in range(4): self.trread(16 + 4 * j, Z_OFF + j * 1024)
        a.I(f"s_lshl_b32 s{sT0}, s{sW}, 9"); a.I(f"s_add_u32 s{sT0}, s{sT0}, {MISC}")
        a.I(f"v_lshl_add_u32 v9, v0, 5, s{sT0}")
        a.I(f"s_mov_b64 exec, {mLO16}")
        for e in range(0, 8, 2):
            a.I(f"ds_write2_b32 v9, a{224 + 4*e}, a{228 + 4*e} offset0:{e} offset1:{e+1}")
        a.I(f"s_mov_b64 exec, {mFULL}")
        a.I("s_branch L_fin")
        a.L("L_final")
        a.I(f"buffer_store_dword v33, v6, {S(rOUT)}, s{sT1} offen")
        if o.get("stamps"):
            a.wvm0(); self.stamp("end"); a.I("s_branch L_abort")
        a.I("s_endpgm")

if __name__ == "__main__":
    opt = {}
    out = sys.argv[1] if len(sys.argv) > 1 else "interleave_layers__gqa_block_cached__dense_activation_gelu__decode.s"
    for kv in sys.argv[2:]:
        k, v = kv.split("="); opt[k] = v.split(",") if k == "stamps" else int(v)
    g = Gen(opt)
    t = g.build()
    open(out, "w").write(t)
    print("lines", t.count("\n"), "auto nops", g.a.nops)
```

```python
import sys, math
from asmlib import Asm
KNAME = "interleave_layers__gqa_block_cached__dense_activation_gelu__decode_kernel"

HEADER = open("interleave_layers__gqa_block_cached__dense_activation_gelu__decode.s.ref").read().split("; Override launch")[0]

WAREA = 39936; Z_OFF = 0; W1_OFF = 4096; V_OFF = 16384; W2_OFF = 28672
MISC = 158720; ML_LDS = MISC + 4096
REGION = 24576; QS = 0; AP = 2048; ML = 10240; XSA = 10496; XSB = 12544; HS = 14592
YP = 393216; WS_BYTES = 524288
sW, sX, sI, sREG, sYP, sMODE, sPASS, sCNT, sWB = 3, 4, 5, 6, 7, 9, 10, 11, 12
sT0, sT1, sT2, sPLO, sPHI, sTILE, sROT = 13, 14, 15, 16, 17, 18, 19
mFULL, mLO32, mEVEN, mN8, mN4, mG02, mL0, mH2, mLO16 = "s[20:21]", "s[22:23]", "s[24:25]", "s[26:27]", "s[28:29]", "s[30:31]", "s[32:33]", "s[34:35]", "s[76:77]"
rK, rV, rWQ, rWO, rW1, rW2, rWS, rT, rDBG, rOUT = 36, 40, 44, 48, 52, 56, 60, 64, 68, 72
sC, sXCC, sQSO, sWOO = 78, 79, 80, 81
sK1, sK2, sINV, sEPS = 82, 83, 84, 85
def S(r): return f"s[{r}:{r+3}]"
def V(r, n=4): return f"v[{r}:{r+n-1}]"
def Ar(r, n=4): return f"a[{r}:{r+n-1}]"
DPP = "row_mask:0xf bank_mask:0xf"
MF = "v_mfma_f32_16x16x32_bf16"
vLANE, vTR, vB1, vB2, vXR = 0, 1, 2, 3, 4
HF = 48
BLK = [64 + 32 * k for k in range(6)]
f2u = lambda x: "0x%08x" % (__import__("struct").unpack("<I", __import__("struct").pack("<f", x))[0])

class Gen:
    def __init__(self, opt):
        self.a = Asm(); self.o = opt; self.lab = 0
    def nl(self, p):
        self.lab += 1; return f"L_{p}_{self.lab}"

    def stamp(self, name):
        st = self.o.get("stamps", [])
        a = self.a
        hits = [k for k, x in enumerate(st) if x.split("@")[0] == name]
        if not hits: return
        a.I("s_memrealtime s[64:65]")
        a.I("s_waitcnt lgkmcnt(0)")
        for k in hits:
            if "@" in st[k]:
                a.I(f"s_cmp_eq_u32 s{sPASS}, {st[k].split('@')[1]}")
                a.I(f"s_cselect_b32 s{90+k}, s64, s{90+k}")
            else:
                a.I(f"s_mov_b32 s{90+k}, s64")
    def stamp_out(self):
        if not self.o.get("stamps"): return
        a = self.a
        a.I("s_mov_b64 exec, 1")
        a.I(f"s_lshl_b32 s64, s2, 2"); a.I(f"s_add_u32 s64, s64, s{sW}"); a.I("s_lshl_b32 s64, s64, 6"); a.I("s_add_u32 s64, s64, 0x70000")
        a.I("v_mov_b32 v20, 0")
        for k in range(12): a.I(f"v_mov_b32 v{8+k}, s{90+k}")
        for k in range(3): a.I(f"buffer_store_dwordx4 {V(8+4*k)}, v20, {S(rWS)}, s64 offen offset:{16*k}")
        if self.o.get("dbgst"):
            a.I(f"s_lshl_b32 s64, s2, 2"); a.I(f"s_add_u32 s64, s64, s{sW}"); a.I("s_cmp_lg_u32 s64, 0"); a.I("s_cbranch_scc1 L_exit")
            a.I("s_nop 1")
            for k in range(1, 12): a.I(f"v_subrev_u32 v{8+k}, s90, v{8+k}")
            for k in range(3): a.I(f"buffer_store_dwordx4 {V(8+4*k)}, v20, {S(rDBG)}, 0 offen offset:{16*k}")
    def publish(self, instr):
        a = self.a
        ls, ld = self.nl("slow"), self.nl("pubd")
        a.I(f"s_cmp_lg_u32 s{sMODE}, 0")
        a.I(f"s_cbranch_scc1 {ls}")
        a.cond += 1
        a.I(instr)
        a.cond -= 1
        a.L(ld)
        self.ool.append((ls, instr + " sc1", ld))
    def barrier(self):
        self.a.I("s_barrier")
    def poll(self, loads, regs, vt, pre=None):
        a = self.a
        l = self.nl("poll")
        a.L(l)
        cur = None
        for m, ins in loads:
            if m != cur:
                a.I(f"s_mov_b64 exec, {m or mFULL}"); cur = m
            a.I(ins)
        if cur is not None: a.I(f"s_mov_b64 exec, {mFULL}")
        a.I(f"s_sub_u32 s{sCNT}, s{sCNT}, 1")
        a.I("s_cbranch_scc1 L_abort")
        a.wvm0()
        self.check(regs, vt)
        a.I(f"s_cbranch_vccnz {l}")
    def check(self, regs, vt):
        a = self.a
        r = list(regs)
        if len(r) % 2 == 1:
            a.I(f"v_max3_u32 v{vt}, v{r[0]}, v{r[1]}, v{r[2]}"); r = r[3:]
        else:
            a.I(f"v_max_u32 v{vt}, v{r[0]}, v{r[1]}"); r = r[2:]
        for k in range(0, len(r), 2):
            a.I(f"v_max3_u32 v{vt}, v{r[k]}, v{r[k+1]}, v{vt}")
        a.I(f"v_cmp_eq_u32 vcc, -1, v{vt}")
    def dma_voff(self, dst, tmp, pitch):
        a = self.a
        a.I(f"v_bfe_u32 v{dst}, v0, 3, 2")
        a.I(f"v_lshrrev_b32 v{tmp}, 5, v0")
        a.I(f"v_lshl_add_u32 v{dst}, v{dst}, 1, v{tmp}")
        a.I(f"v_bfe_u32 v{tmp}, v0, 1, 2")
        a.I(f"v_lshl_add_u32 v{dst}, v{dst}, 2, v{tmp}")
        a.I(f"v_and_b32 v{tmp}, 1, v0")
        a.I(f"v_lshlrev_b32 v{tmp}, 4, v{tmp}")
        a.I(f"s_movk_i32 s{sT2}, {pitch}")
        a.I(f"v_mad_u32_u24 v{dst}, v{dst}, s{sT2}, v{tmp}")
    def dma(self, voff, srd, soff_sgpr, ldsoff):
        a = self.a
        a.I(f"s_add_u32 m0, s{sWB}, {ldsoff}")
        key = {rWQ: "pq", rWO: "po", rW1: "p1", rW2: "p2"}[srd]
        pol = ["", " nt", " sc1", " sc1 nt", " sc0 sc1 nt"][self.o.get(key, self.o.get("wpol", 0))]
        if self.o.get("now") and srd in (rW1, rW2): return None
        if self.o.get("nowo") and srd == rWO: return None
        if self.o.get("nowq") and srd == rWQ: return None
        return a.I(f"buffer_load_dwordx4 v{voff}, {S(srd)}, s{soff_sgpr} offen{pol} lds")
    def dma_z(self, voff, srd, sbase, step):
        a = self.a; ids = []
        for j in range(4):
            if j == 0:
                ids.append(self.dma(voff, srd, sbase, Z_OFF))
            else:
                a.I(f"s_add_u32 s{sT0}, s{sbase}, {j*step}")
                ids.append(self.dma(voff, srd, sT0, Z_OFF + j * 1024))
        return ids
    def trread(self, dst, off, acc=False):
        a = self.a
        R = Ar if acc else V
        i1 = a.I(f"ds_read_b64_tr_b16 {R(dst,2)}, v{vTR} offset:{off}")
        i2 = a.I(f"ds_read_b64_tr_b16 {R(dst+2,2)}, v{vTR} offset:{off+512}")
        return i2
    def pack_pub(self, val, tmp):
        a = self.a
        a.I(f"v_mov_b32_dpp v{tmp}, v{val} quad_perm:[1,1,3,3] {DPP}")
        a.I(f"v_cvt_pk_bf16_f32 v{tmp}, v{val}, v{tmp}")
        a.I(f"v_min_u32 v{tmp}, -2, v{tmp}")
    def pub_off(self, dst, tmp, pitch):
        a = self.a
        a.I(f"v_bfe_u32 v{dst}, v0, 4, 1")
        a.I(f"v_and_b32 v{tmp}, 15, v0")
        a.I(f"v_lshlrev_b32 v{tmp}, 1, v{tmp}")
        a.I(f"s_movk_i32 s{sT2}, {pitch}")
        a.I(f"v_mad_u32_u24 v{dst}, v{dst}, s{sT2}, v{tmp}")
    def gath_off(self, dst, tmp, pitch):
        a = self.a
        a.I(f"v_bfe_u32 v{dst}, v0, 1, 3")
        a.I(f"v_lshrrev_b32 v{tmp}, 4, v0")
        a.I(f"v_lshl_add_u32 v{dst}, v{dst}, 2, v{tmp}")
        a.I(f"v_lshlrev_b32 v{dst}, 4, v{dst}")
        a.I(f"v_and_b32 v{tmp}, 1, v0")
        a.I(f"s_movk_i32 s{sT2}, {pitch}")
        a.I(f"v_mad_u32_u24 v{dst}, v{tmp}, s{sT2}, v{dst}")

    XA, XT = 8, 12
    def ln_prep(self, ntiles, woff):
        a = self.a
        self.gath_off(5, 6, 1024)
        for r in range(8): a.I(f"v_mov_b32 v{self.XA + r}, 0x3f803f80")
        self.ops = [(t, j) for j in range(4) for t in range(ntiles)]
        self.rd = {}
        for k in range(min(4, len(self.ops))):
            t, j = self.ops[k]
            self.rd[k] = self.trread(32 + 4 * k, woff(t, j))
    def ln_mm(self, ntiles, woff):
        a = self.a
        XA, XT = self.XA, self.XT
        k = 0
        cur, nxt = XA, XT
        for j in range(4):
            c = "0" if j == 0 else None
            acc = 16
            a.I(f"{MF} {V(acc)}, {V(cur)}, {V(cur)}, {c or V(acc)}")
            if j < 3:
                for r in range(4): a.I(f"v_mov_b32_dpp v{nxt + r}, v{cur + r} row_shl:2 {DPP}")
            for t in range(ntiles):
                acc = 20 + 4 * t
                a.wlg(self.rd[k])
                b = 32 + 4 * (k % 4)
                a.I(f"{MF} {V(acc)}, {V(cur)}, {V(b)}, {c or V(acc)}")
                if k + 4 < len(self.ops):
                    t2, j2 = self.ops[k + 4]
                    self.rd[k + 4] = self.trread(b, woff(t2, j2))
                k += 1
            cur, nxt = nxt, cur
        a.I(f"s_lshl_b32 s{sT0}, s{sW}, 2")
        a.I(f"s_add_u32 s{sT0}, s{sT0}, {MISC}")
        a.I(f"v_lshl_add_u32 v5, v0, 4, s{sT0}")
        if ntiles > 1:
            a.I(f"s_lshl_b32 s{sT1}, s{sW}, 10"); a.I(f"s_add_u32 s{sT1}, s{sT1}, {MISC}")
        else:
            a.I(f"s_mov_b32 s{sT1}, {MISC}")
        a.I(f"v_lshl_add_u32 v12, v0, 4, s{sT1}")
        a.I(f"v_and_b32 v13, 15, v0")
        a.I(f"v_lshl_add_u32 v13, v13, 4, s{sT1}")
        a.I(f"v_bfe_u32 v15, v0, 4, 1")
        a.I(f"v_mul_u32_u24 v14, 272, v15")
        a.I(f"v_lshlrev_b32 v15, 4, v15")
        a.I(f"s_mov_b64 exec, {mG02}")
        a.I(f"ds_write2st64_b32 v5, v16, v17 offset0:{4*ntiles} offset1:{4*ntiles+1}")
        for t in range(ntiles):
            a.I(f"ds_write2st64_b32 v5, v{20+4*t}, v{21+4*t} offset0:{4*t} offset1:{4*t+1}")
        a.I(f"s_mov_b64 exec, {mFULL}")
        a.wlg0()
        self.barrier()
    def ln_finish(self, ntiles):
        a = self.a
        g = MISC + ntiles * 1024
        r1 = a.I(f"ds_read_b128 {V(40)}, v14 offset:{g - MISC + 0}") if False else None
        a.I(f"v_add_u32 v14, {g}, v14")
        a.I(f"v_add_u32 v15, {g + 512}, v15")
        i_sq = a.I(f"ds_read_b128 {V(40)}, v14")
        i_sm = a.I(f"ds_read_b128 {V(44)}, v15")
        i_raw = a.I(f"ds_read_b128 {V(32)}, v12")
        i_cs = a.I(f"ds_read_b128 {V(36)}, v13 offset:512")
        a.wlg(i_sm)
        a.I("v_pk_add_f32 v[40:41], v[40:41], v[42:43]")
        a.I("v_pk_add_f32 v[44:45], v[44:45], v[46:47]")
        a.I("v_add_f32 v40, v40, v41")
        a.I("v_add_f32 v44, v44, v45")
        a.I(f"v_mul_f32 v44, s{sINV}, v44")
        a.I(f"v_mov_b32 v41, s{sEPS}")
        a.I(f"v_fma_f32 v40, v40, s{sINV}, v41")
        a.I("v_fma_f32 v40, -v44, v44, v40")
        a.I(f"v_max_f32 v40, s{sEPS}, v40")
        a.I("v_rsq_f32 v40, v40")
        a.wlg(i_cs)
        a.I("v_pk_add_f32 v[32:33], v[32:33], v[34:35]")
        a.I("v_pk_add_f32 v[36:37], v[36:37], v[38:39]")
        a.I("v_add_f32 v32, v32, v33")
        a.I("v_add_f32 v36, v36, v37")
        a.I("v_fma_f32 v32, -v44, v36, v32")

    QC, MASK = 12, 8
    def qk(self, fill=None, waitk=None, order=(0, 1, 2, 3)):
        a = self.a
        n = 0
        for vi, v in enumerate(order):
            a.I(f"v_and_b32 v{self.MASK}, 15, v0")
            a.I(f"v_cmp_eq_u32 vcc, {v}, v{self.MASK}")
            a.I(f"v_cndmask_b32 v{self.MASK}, 0, -1, vcc")
            if waitk: waitk(v)
            for j in range(4):
                b = 16 + 4 * (n % 2); n += 1
                for r in range(4):
                    a.I(f"v_and_b32_dpp v{b+r}, v{self.QC+r}, v{self.MASK} quad_perm:[{j},{j},{j},{j}] {DPP}")
                for u in range(4):
                    t = 4 * v + u
                    c = "0" if (vi == 0 and j == 0) else V(32 + 4 * u)
                    a.I(f"{MF} {V(32+4*u)}, {Ar(16*t + 4*j)}, {V(b)}, {c}")
                if fill: fill()
    def xlane(self, r, t, op):
        a = self.a
        a.I(f"{op}_dpp v{r}, v{r}, v{r} quad_perm:[1,0,3,2] {DPP}")
        a.I(f"{op}_dpp v{r}, v{r}, v{r} quad_perm:[2,3,0,1] {DPP}")
        a.I(f"v_mov_b32 v{t}, v{r}")
        a.I(f"v_permlane32_swap_b32 v{t}, v{r}")
        a.I(f"{op} v{r}, v{r}, v{t}")
        a.I(f"v_mov_b32 v{t}, v{r}")
        a.I(f"v_permlane16_swap_b32 v{t}, v{r}")
        a.I(f"{op} v{r}, v{r}, v{t}")
    def sm_max(self):
        a = self.a
        a.I("v_max3_f32 v10, v32, v33, v34")
        a.I("v_max3_f32 v11, v35, v36, v37")
        for k in range(38, 46, 4):
            a.I(f"v_max3_f32 v10, v{k}, v{k+1}, v10")
            a.I(f"v_max3_f32 v11, v{k+2}, v{k+3}, v11")
        a.I("v_max3_f32 v10, v46, v47, v10")
        a.I("v_max_f32 v10, v10, v11")
        self.xlane(10, 11, "v_max_f32")
        a.I(f"v_mul_f32 v10, s{sC}, v10")
    def sm_exp(self, sig):
        L = []
        b = 32 + 8 * sig
        for k in range(8): L.append(f"v_fma_f32 v{b+k}, v{b+k}, s{sC}, -v10")
        for k in range(8): L.append(f"v_exp_f32 v{b+k}, v{b+k}")
        for k in range(4): L.append(f"v_cvt_pk_bf16_f32 v{24+4*sig+k}, v{b+2*k}, v{b+2*k+1}")
        return L
    def sm_sum(self):
        L = []
        L.append("v_pk_add_f32 v[32:33], v[32:33], v[34:35]")
        L.append("v_pk_add_f32 v[36:37], v[36:37], v[38:39]")
        L.append("v_pk_add_f32 v[40:41], v[40:41], v[42:43]")
        L.append("v_pk_add_f32 v[44:45], v[44:45], v[46:47]")
        L.append("v_pk_add_f32 v[32:33], v[32:33], v[36:37]")
        L.append("v_pk_add_f32 v[40:41], v[40:41], v[44:45]")
        L.append("v_pk_add_f32 v[32:33], v[32:33], v[40:41]")
        L.append("v_add_f32 v11, v32, v33")
        return L
    def ml_write(self):
        a = self.a
        a.I(f"s_lshl_b32 s{sT0}, s{sW}, 2"); a.I(f"s_add_u32 s{sT0}, s{sT0}, {ML_LDS}")
        a.I(f"v_mov_b32 v12, s{sT0}")
        a.I(f"s_mov_b64 exec, {mL0}")
        a.I("ds_write2_b32 v12, v10, v11 offset0:0 offset1:4")
        a.I(f"s_mov_b64 exec, {mFULL}")
    def f_read(self):
        a = self.a
        a.I(f"v_mov_b32 v9, {ML_LDS}")
        a.I(f"ds_read_b128 {V(12)}, v9")
        return a.I(f"ds_read_b128 {V(44)}, v9 offset:16")
    def f_calc(self):
        L = []
        L.append("v_max3_f32 v10, v12, v13, v14")
        L.append("v_max_f32 v10, v10, v15")
        for k in range(4): L.append(f"v_sub_f32 v{12+k}, v{12+k}, v10")
        for k in range(4): L.append(f"v_exp_f32 v{12+k}, v{12+k}")
        L.append("v_mul_f32 v11, v12, v44")
        for k in range(1, 4): L.append(f"v_fmac_f32 v11, v{12+k}, v{44+k}")
        L.append("v_min_u32 v10, -2, v10")
        L.append("v_min_u32 v11, -2, v11")
        return L

    def perm_group(self, blk, outmap=None, temps=(40, 41)):
        a = self.a
        R = lambda s, d: blk + 4 * s + d
        t1, t2 = temps[0], temps[1]
        lo = lambda dst, x, y: a.I(f"v_perm_b32 v{dst}, v{y}, v{x}, s{sPLO}")
        hi = lambda dst, x, y: a.I(f"v_perm_b32 v{dst}, v{y}, v{x}, s{sPHI}")
        for p in range(4):
            x, y = R(2*p, p), R(2*p+1, p)
            lo(t1, x, y); hi(y, x, y); a.I(f"v_mov_b32 v{x}, v{t1}")
        for p in range(4):
            for d in range(p + 1, 4):
                ax, ay = R(2*p, d), R(2*p+1, d)
                bx, by = R(2*d, p), R(2*d+1, p)
                lo(t1, ax, ay); hi(t2, ax, ay)
                lo(ax, bx, by); hi(ay, bx, by)
                a.I(f"v_mov_b32 v{bx}, v{t1}"); a.I(f"v_mov_b32 v{by}, v{t2}")

    def build(self):
        a = self.a; o = self.o
        self.ool = []
        KV = "" if o.get("kvdef") else " nt"
        a.raw(HEADER.rstrip())
        a.raw("; @launch grid=(256,1,1) block=(256,1,1) lds=163840")
        a.raw('.amdgcn_target "amdgcn-amd-amdhsa--gfx950"')
        a.raw(".text"); a.raw(f".globl {KNAME}"); a.raw(".p2align 8"); a.raw(f".type {KNAME},@function"); a.raw(f"{KNAME}:")
        a.I("s_cmp_ge_u32 s2, 256"); a.I("s_cbranch_scc1 L_exit")
        if o.get("stamps"): a.I("s_memrealtime s[8:9]")
        a.I("s_load_dwordx16 s[76:91], s[0:1], 0")
        a.I("s_load_dwordx8 s[92:99], s[0:1], 64")
        a.I("s_load_dwordx2 s[100:101], s[0:1], 96")
        a.I("v_lshrrev_b32 v1, 6, v0")
        a.I(f"v_readfirstlane_b32 s{sW}, v1")
        a.I("v_and_b32 v0, 63, v0")
        a.I(f"s_and_b32 s{sX}, s2, 7"); a.I(f"s_lshr_b32 s{sI}, s2, 3")
        a.I("v_and_b32 v5, 3, v0"); a.I("v_bfe_u32 v6, v0, 2, 2"); a.I("v_lshl_add_u32 v5, v5, 2, v6")
        a.I("v_lshrrev_b32 v6, 4, v0"); a.I("v_lshlrev_b32 v6, 4, v6"); a.I("v_lshl_add_u32 v5, v5, 8, v6")
        a.I("v_lshlrev_b32 v6, 4, v0")
        a.I(f"s_bfe_u32 s{sT0}, s{sI}, 0x10002"); a.I(f"s_lshl_b32 s{sT0}, s{sT0}, 5")
        a.I(f"s_lshl_b32 s{sT1}, s{sX}, 2"); a.I(f"s_add_u32 s{sT0}, s{sT0}, s{sT1}")
        a.I(f"s_lshr_b32 s{sT1}, s{sI}, 3"); a.I(f"s_add_u32 s{sT0}, s{sT0}, s{sT1}")
        a.I(f"s_lshl_b32 s{sT0}, s{sT0}, 4")
        a.I(f"s_and_b32 s{sT1}, s{sI}, 3"); a.I(f"s_lshl_b32 s{sT1}, s{sT1}, 2"); a.I(f"s_add_u32 s{sT0}, s{sT0}, s{sT1}")
        a.I(f"s_add_u32 s{sT0}, s{sT0}, s{sW}"); a.I(f"s_lshl_b32 s{sT0}, s{sT0}, 16")
        a.I(f"s_lshl_b32 s{sROT}, s2, 2"); a.I(f"s_add_u32 s{sROT}, s{sROT}, s{sW}")
        a.I(f"s_mul_i32 s{sROT}, s{sROT}, 0x9E3779B1"); a.I(f"s_lshr_b32 s{sROT}, s{sROT}, 28"); a.I(f"s_lshl_b32 s{sROT}, s{sROT}, 12")
        a.I(f"s_mul_i32 s{sWB}, s{sW}, {WAREA}")
        for r, sz in ((rK, 65536), (rV, 65536), (rWQ, 1 << 22), (rWO, 1 << 22), (rW1, 512 * 2752), (rW2, 1376 * 1024), (rWS, WS_BYTES), (rT, 2048), (rDBG, 256), (rOUT, 2048)):
            a.I(f"s_mov_b32 s{r+2}, {sz}"); a.I(f"s_mov_b32 s{r+3}, 0x20000")
        self.dma_voff(7, 8, 8192)
        a.I("s_waitcnt lgkmcnt(0)")
        a.I(f"s_add_u32 s{rK}, s78, s{sT0}"); a.I(f"s_addc_u32 s{rK+1}, s79, 0")
        a.I(f"s_add_u32 s{rV}, s80, s{sT0}"); a.I(f"s_addc_u32 s{rV+1}, s81, 0")
        for r, p in ((rWS, 100), (rT, 76), (rWQ, 82), (rWO, 84), (rW1, 88), (rW2, 92), (rDBG, 98), (rOUT, 96)):
            a.I(f"s_mov_b64 s[{r}:{r+1}], s[{p}:{p+1}]")
        kid = {}
        def ktile(t):
            a.I(f"s_add_u32 s{sT1}, s{sROT}, {t*4096}"); a.I(f"s_and_b32 s{sT1}, s{sT1}, 0xffff")
            for j in range(4):
                kid[t] = a.I(f"buffer_load_dwordx4 {Ar(16*t+4*j)}, v5, {S(rK)}, s{sT1} offen offset:{j*64}{KV}")
        a.I(f"s_cmp_lg_u32 s{sW}, 0"); a.I("s_cbranch_scc1 L_noclear")
        a.cond += 1
        for r in range(4): a.I(f"v_mov_b32 v{16+r}, -1")
        a.I(f"s_lshl_b32 s{sT1}, s2, 11")
        a.I(f"buffer_store_dwordx4 {V(16)}, v6, {S(rWS)}, s{sT1} offen sc1")
        clr = a.I(f"buffer_store_dwordx4 {V(16)}, v6, {S(rWS)}, s{sT1} offen offset:1024 sc1")
        a.cond -= 1
        a.L("L_noclear")
        a.I(f"s_lshl_b32 s{sT0}, s{sW}, 20"); a.I(f"s_lshl_b32 s{sT1}, s{sX}, 10"); a.I(f"s_add_u32 s{sT0}, s{sT0}, s{sT1}")
        a.I(f"s_lshl_b32 s{sT1}, s{sI}, 5"); a.I(f"s_add_u32 s86, s{sT0}, s{sT1}")
        wqid = self.dma_z(7, rWQ, 86, 32 * 8192)
        self.gath_off(9, 10, 1024)
        for r in range(8): a.I(f"v_mov_b32 v{20 + r}, 0x3f803f80")
        a.I("v_and_b32 v10, 15, v0")
        a.I(f"v_cmp_gt_u32 {mN8}, 8, v10"); a.I(f"v_cmp_gt_u32 {mN4}, 4, v10")
        a.I(f"s_mov_b64 {mFULL}, -1")
        a.I(f"s_lshl_b32 s{sT0}, s{sW}, 8")
        a.I(f"s_mov_b64 exec, {mN8}")
        xid = a.I(f"buffer_load_dwordx4 {V(20)}, v9, {S(rT)}, s{sT0} offen")
        a.I(f"s_mov_b64 exec, {mFULL}")
        self.pub_off(9, 10, 1024)
        a.I(f"s_lshl_b32 s{sT0}, s{sI}, 5")
        a.I(f"buffer_load_ushort v{vXR}, v9, {S(rT)}, s{sT0} offen")
        ktile(0)
        a.I(f"s_mov_b64 s[{rT}:{rT+1}], s[94:95]"); a.I(f"s_mov_b32 s{rT+2}, 1024")
        a.I("v_and_b32 v10, 15, v0"); a.I("v_lshlrev_b32 v10, 1, v10")
        a.I(f"buffer_load_ushort v{vB2}, v10, {S(rT)}, s{sT0} offen")
        a.I(f"s_mul_i32 s{sT0}, s{sI}, 3"); a.I(f"s_lshl_b32 s{sT1}, s{sI}, 1"); a.I(f"s_add_u32 s{sT1}, s{sT1}, 22")
        a.I(f"s_min_u32 s{sTILE}, s{sT0}, s{sT1}"); a.I(f"s_lshl_b32 s{sTILE}, s{sTILE}, 5")
        a.I(f"s_mov_b64 s[{rT}:{rT+1}], s[90:91]"); a.I(f"s_mov_b32 s{rT+2}, 2752")
        a.I(f"s_lshl_b32 s{sT0}, s{sW}, 5"); a.I(f"s_add_u32 s{sT0}, s{sT0}, s{sTILE}")
        bid = a.I(f"buffer_load_ushort v{vB1}, v10, {S(rT)}, s{sT0} offen")
        if o.get("prew"):
            a.I(f"s_lshl_b32 s{sT0}, s2, 2"); a.I(f"s_add_u32 s{sT0}, s{sT0}, s{sW}"); a.I(f"s_mul_i32 s{sT0}, s{sT0}, 1376")
            for k, r in enumerate((rW1, rW2)):
                a.I(f"buffer_load_dwordx4 {V(BLK[5] + 8*k)}, v6, {S(r)}, s{sT0} offen")
                a.I(f"buffer_load_dwordx4 {V(BLK[5] + 8*k + 4)}, v6, {S(r)}, s{sT0} offen offset:1024")
        nk0 = o.get("nk0", 3); nk1 = o.get("nk1", 9)
        for t in range(1, nk0): ktile(t)
        if o.get("stamps"):
            for k in range(12): a.I(f"s_mov_b32 s{90+k}, 0")
            for k, x in enumerate(o["stamps"]):
                if x == "start": a.I(f"s_mov_b32 s{90+k}, s8")
        a.I(f"s_mov_b32 s{sQSO}, s86")
        a.I(f"s_getreg_b32 s{sXCC}, hwreg(HW_REG_XCC_ID, 0, 4)"); a.I(f"s_add_u32 s{sXCC}, s{sXCC}, 1")
        a.I(f"s_mov_b32 s{sC}, {f2u(math.log2(math.e) / math.sqrt(128.0))}")
        k1 = -2.0 * math.sqrt(2.0 / math.pi) * math.log2(math.e)
        a.I(f"s_mov_b32 s{sK1}, {f2u(k1)}"); a.I(f"s_mov_b32 s{sK2}, {f2u(k1 * 0.044715)}")
        a.I(f"s_mov_b32 s{sINV}, {f2u(1.0 / 512)}"); a.I(f"s_mov_b32 s{sEPS}, {f2u(1e-5)}")
        a.I(f"s_mov_b32 s{sPLO}, 0x05040100"); a.I(f"s_mov_b32 s{sPHI}, 0x07060302")
        a.I("s_mov_b32 s22, -1"); a.I("s_mov_b32 s23, 0")
        a.I("s_mov_b32 s24, 0x55555555"); a.I("s_mov_b32 s25, 0")
        a.I("s_mov_b32 s30, 0xffff"); a.I("s_mov_b32 s31, 0xffff")
        a.I("s_mov_b64 s[32:33], 1")
        a.I("s_mov_b32 s76, 0xffff"); a.I("s_mov_b32 s77, 0")
        a.I(f"s_cmp_eq_u32 s{sW}, 3"); a.I("s_cselect_b32 s34, 0x000f000f, 0x003f003f") if False else None
        a.I("s_mov_b32 s34, 0x003f003f"); a.I("s_cselect_b32 s34, 0x000f000f, s34"); a.I("s_mov_b32 s35, s34")
        a.I(f"s_mul_i32 s{sREG}, s{sX}, {2*REGION}")
        a.I(f"s_lshl_b32 s{sYP}, s{sI}, 10"); a.I(f"s_add_u32 s{sYP}, s{sYP}, {YP}")
        a.I(f"s_mov_b32 s{sPASS}, 0"); a.I(f"s_mov_b32 s{sCNT}, {o.get('timeout', 400000)}"); a.I(f"s_mov_b32 s{sMODE}, 1")
        a.I(f"s_lshl_b32 s{sT0}, s{sX}, 19"); a.I(f"s_lshl_b32 s{sT1}, s{sW}, 17"); a.I(f"s_add_u32 s{sT0}, s{sT0}, s{sT1}")
        a.I(f"s_lshl_b32 s{sT1}, s{sI}, 5"); a.I(f"s_add_u32 s{sWOO}, s{sT0}, s{sT1}")
        a.I(f"v_lshl_add_u32 v{vTR}, v0, 3, s{sWB}")
        a.I(f"s_cmp_lg_u32 s{sW}, 0"); a.I("s_cbranch_scc1 L_noflag")
        a.cond += 1
        a.wvm(clr)
        a.I(f"v_mov_b32 v10, s{sXCC}"); a.I("v_mov_b32 v11, s2")
        a.I(f"s_mov_b64 exec, {mL0}")
        a.I(f"buffer_store_byte v10, v11, {S(rDBG)}, 0 offen sc1")
        a.I(f"s_mov_b64 exec, {mFULL}")
        a.cond -= 1
        a.L("L_noflag")
        a.C("Q1")
        self.stamp("q1in")
        a.wvm([bid] + [x for x in wqid if x] + [xid])
        a.I(f"v_lshlrev_b32 v{vXR}, 16, v{vXR}"); a.I(f"v_lshlrev_b32 v{vB1}, 16, v{vB1}"); a.I(f"v_lshlrev_b32 v{vB2}, 16, v{vB2}")
        zoff = lambda t, j: Z_OFF + j * 1024
        self.ops = [(0, j) for j in range(4)]; self.rd = {}
        for k in range(4): self.rd[k] = self.trread(32 + 4 * k, zoff(0, k))
        for r in range(8): a.I(f"v_mov_b32 v{8 + r}, v{20 + r}")
        a.I("v_mov_b32 v28, v5")
        self.ln_mm(1, zoff)
        a.I(f"s_cmp_lg_u32 s{sW}, 0"); a.I("s_cbranch_scc1 L_q1nf")
        a.cond += 1
        self.ln_finish(1)
        a.I("v_mul_f32 v32, v32, v40")
        self.pack_pub(32, 47)
        a.cond -= 1
        a.L("L_q1nf")
        self.stamp("q1done")
        a.I("v_mov_b32 v5, v28")
        self.dma_voff(7, 8, 1024)
        self.dma_z(7, rWO, sWOO, 32 * 1024)
        for t in range(nk0, nk1): ktile(t)
        a.C("flags check")
        a.I("v_lshlrev_b32 v9, 2, v0")
        def flagchk():
            a.I("v_subrev_u32 v11, 0x01010101, v10")
            a.I("v_not_b32 v12, v10")
            a.I("v_and_b32 v11, v11, v12")
            a.I("v_and_b32 v11, 0x80808080, v11")
            a.I("v_cmp_ne_u32 vcc, 0, v11")
        fid = a.I(f"buffer_load_dword v10, v9, {S(rDBG)}, 0 offen sc1")
        ktile(nk1)
        a.wvm(fid)
        flagchk()
        a.I("s_cbranch_vccz L_flagok")
        a.L("L_flagpoll")
        a.cond += 1
        a.I(f"buffer_load_dword v10, v9, {S(rDBG)}, 0 offen sc1")
        a.I(f"s_sub_u32 s{sCNT}, s{sCNT}, 1"); a.I("s_cbranch_scc1 L_abort")
        a.wvm0()
        flagchk()
        a.I("s_cbranch_vccnz L_flagpoll")
        a.cond -= 1
        a.L("L_flagok")
        self.stamp("flagok")
        a.I(f"s_and_b32 s{sT0}, s{sX}, 3"); a.I(f"s_lshl_b32 s{sT0}, s{sT0}, 3")
        a.I(f"v_lshrrev_b32 v10, s{sT0}, v10"); a.I("v_and_b32 v10, 0xff, v10")
        a.I(f"v_cmp_ne_u32 vcc, s{sXCC}, v10")
        a.I(f"s_cmp_lt_u32 s{sX}, 4"); a.I(f"s_mov_b32 s{sT0}, 0xaaaaaaaa"); a.I(f"s_cselect_b32 s{sT0}, 0x55555555, s{sT0}")
        a.I(f"s_or_b32 s{sT1}, vcc_lo, vcc_hi"); a.I(f"s_and_b32 s{sMODE}, s{sT1}, s{sT0}")
        if o.get("force_slow"): a.I(f"s_mov_b32 s{sMODE}, 1")
        a.I(f"s_cmp_lg_u32 s{sW}, 0"); a.I("s_cbranch_scc1 L_q1np")
        a.cond += 1
        self.q_publish(47)
        a.cond -= 1
        a.L("L_q1np")
        for t in range(nk1 + 1, 16): ktile(t)
        self.dma_voff(9, 10, 2752)
        a.I(f"s_mul_i32 s87, s{sW}, {128*2752}"); a.I(f"s_add_u32 s87, s87, s{sTILE}")
        for t in range(3):
            for j in range(4):
                a.I(f"s_add_u32 s{sT0}, s87, {j*32*2752 + t*32}")
                self.dma(9, rW1, sT0, W1_OFF + (t * 4 + j) * 1024)
        a.I(f"s_mul_i32 s87, s{sW}, {11*32*1024}"); a.I(f"s_lshl_b32 s{sT0}, s{sI}, 5"); a.I(f"s_add_u32 s87, s87, s{sT0}")
        def w2dma(j):
            if j == 10:
                a.I(f"s_cmp_eq_u32 s{sW}, 3"); a.I("s_cbranch_scc1 L_now2"); a.cond += 1
            a.I(f"s_add_u32 s{sT0}, s87, {j*32*1024}")
            self.dma(7, rW2, sT0, W2_OFF + j * 1024)
            if j == 10:
                a.cond -= 1; a.L("L_now2")
        vid = {}
        def vload(c, e):
            sig, v = c >> 2, c & 3
            blk = BLK[c if c < 6 else c - 6]
            t = 4 * v + 2 * sig + (e >> 2)
            if e % 4 == 0:
                a.I(f"s_add_u32 s{sT1}, s{sROT}, {t*4096}"); a.I(f"s_and_b32 s88, s{sT1}, 0xffff")
            vid[(c, e)] = a.I(f"buffer_load_dwordx4 {V(blk + 4*e)}, v6, {S(rV)}, s88 offen offset:{(e&3)*1024}{KV}")
        a.C("q1 gather")
        self.q_gather_prep()
        a.I(f"s_mov_b64 exec, {mN4}")
        qins = f"buffer_load_dwordx4 {V(self.QC)}, v9, {S(rWS)}, s{sT2} offen sc1"
        a.I(f"s_mov_b32 s89, s{sT2}")
        qins = qins.replace(f"s{sT2} offen", "s89 offen")
        qid = a.I(qins)
        a.I(f"s_mov_b64 exec, {mFULL}")
        for j in range(6): w2dma(j)
        a.wvm(qid)
        self.check(range(self.QC, self.QC + 4), 10)
        a.I("s_cbranch_vccz L_q1ok")
        a.cond += 1
        self.poll([(mN4, qins)], range(self.QC, self.QC + 4), 10)
        a.cond -= 1
        a.L("L_q1ok")
        self.stamp("q1ok")
        fl = [lambda j=j: w2dma(j) for j in range(6, 11)] + [lambda e=e: vload(0, e) for e in range(8)] + [lambda e=e: vload(1, e) for e in range(8)]
        def fill():
            if fl: fl.pop(0)()
        self.qk(fill=fill, waitk=lambda v: a.wvm(kid[4 * v + 3]))
        while fl: fl.pop(0)()
        self.sm_max()
        for s in self.sm_exp(0) + self.sm_exp(1) + self.sm_sum(): a.I(s)
        self.xlane(11, 12, "v_add_f32")
        self.ml_write()
        a.I(f"v_lshl_add_u32 v9, v0, 4, s{sWB}")
        a.I("v_and_b32 v8, 15, v0"); a.I("v_cmp_eq_u32 vcc, 0, v8"); a.I("v_cndmask_b32 v8, 0, -1, vcc")
        self.stamp("sm1")
        first = True
        for c in range(8):
            sig, v = c >> 2, c & 3
            if c + 2 < 8:
                if c + 2 >= 6: a.wlg0()
                for e in range(8): vload(c + 2, e)
            blk = BLK[c if c < 6 else c - 6]
            if c == 7:
                self.stamp("g6done")
                a.wlg0(); self.barrier()
                fr = self.f_read(); a.wlg(fr)
                for s in self.f_calc(): a.I(s)
            a.wvm(vid[(c, 7)])
            if c == 7: self.stamp("vlast")
            self.perm_group(blk)
            for rho in range(4):
                b = 16 + 4 * (rho % 2)
                for r in range(4):
                    a.I(f"v_and_b32_dpp v{b+r}, v{24+4*sig+r}, v8 quad_perm:[{v},{v},{v},{v}] {DPP}")
                a.I(f"v_mov_b32_dpp v8, v8 quad_perm:[3,0,1,2] {DPP}")
                a.I(f"{MF} {V(32)}, {V(b)}, {V(blk + 4*rho)}, {'0' if first else V(32)}")
                a.I(f"{MF} {V(36)}, {V(b)}, {V(blk + 4*(rho+4))}, {'0' if first else V(36)}")
                first = False
            if c == 0:
                for e in range(8): a.I(f"ds_write_b128 v9, {V(blk + 4*e)} offset:{V_OFF + e*1024}")
            if c == 1:
                for e in range(4): a.I(f"ds_write_b128 v9, {V(blk + 4*e)} offset:{V_OFF + (8+e)*1024}")
                for r in range(16): a.I(f"v_mov_b32 v{HF + r}, v{blk + 16 + r}")
        for j in range(4): self.trread(16 + 4 * j, Z_OFF + j * 1024)
        a.I(f"s_lshl_b32 s{sT0}, s{sW}, 9"); a.I(f"s_add_u32 s{sT0}, s{sT0}, {MISC}")
        a.I(f"v_lshl_add_u32 v9, v0, 5, s{sT0}")
        a.I(f"s_mov_b64 exec, {mLO16}")
        a.I(f"ds_write_b128 v9, {V(32)}"); a.I(f"ds_write_b128 v9, {V(36)} offset:16")
        a.I(f"s_mov_b64 exec, {mFULL}")
        self.tail()
        for ls, ins, ld in self.ool:
            a.L(ls); a.I(ins); a.I(f"s_branch {ld}")
        a.L("L_abort"); self.stamp_out(); a.L("L_exit"); a.I("s_endpgm")
        a.raw('.section .rodata,"a"'); a.raw(".p2align 6"); a.raw(f".amdhsa_kernel {KNAME}")
        for s in (".amdhsa_next_free_vgpr 512", ".amdhsa_next_free_sgpr 102", ".amdhsa_accum_offset 256", ".amdhsa_group_segment_fixed_size 0",
                  ".amdhsa_kernarg_size 104", ".amdhsa_user_sgpr_count 2", ".amdhsa_user_sgpr_kernarg_segment_ptr 1", ".amdhsa_system_sgpr_workgroup_id_x 1"):
            a.raw("  " + s)
        a.raw(".end_amdhsa_kernel")
        return a.text()

    def q_publish(self, pv):
        a = self.a
        self.pub_off(9, 10, 256)
        a.I(f"s_lshr_b32 s{sT0}, s{sI}, 3"); a.I(f"s_lshl_b32 s{sT0}, s{sT0}, 9")
        a.I(f"s_and_b32 s{sT1}, s{sI}, 7"); a.I(f"s_lshl_b32 s{sT1}, s{sT1}, 5")
        a.I(f"s_add_u32 s{sT0}, s{sT0}, s{sT1}"); a.I(f"s_add_u32 s{sT0}, s{sT0}, s{sREG}")
        a.I(f"s_mov_b64 exec, {mEVEN}")
        self.publish(f"buffer_store_dword v{pv}, v9, {S(rWS)}, s{sT0} offen")
        a.I(f"s_mov_b64 exec, {mFULL}")
    def q_gather_prep(self):
        a = self.a
        a.I("v_and_b32 v9, 15, v0"); a.I("v_lshrrev_b32 v10, 4, v0"); a.I("v_lshl_add_u32 v9, v9, 2, v10"); a.I("v_lshlrev_b32 v9, 4, v9")
        for r in range(4): a.I(f"v_mov_b32 v{self.QC + r}, 0")
        a.I(f"s_lshr_b32 s{sT2}, s{sI}, 2"); a.I(f"s_lshl_b32 s{sT2}, s{sT2}, 8"); a.I(f"s_add_u32 s{sT2}, s{sT2}, s{sREG}")

    def tail(self):
        a = self.a; o = self.o
        a.L("L_fin")
        a.C("attention finish")
        self.stamp("fin")
        a.I(f"v_lshlrev_b32 v8, 3, v0"); a.I(f"v_add_u32 v8, {MISC}, v8")
        a.I(f"s_lshl_b32 s{sT0}, s{sI}, 8"); a.I(f"s_add_u32 s{sT0}, s{sT0}, s{sREG}"); a.I(f"s_add_u32 s{sT0}, s{sT0}, {AP}")
        a.I(f"s_lshl_b32 s{sT1}, s{sI}, 3"); a.I(f"s_add_u32 s{sT1}, s{sT1}, s{sREG}"); a.I(f"s_add_u32 s{sT1}, s{sT1}, {ML}")
        a.I("v_lshlrev_b32 v7, 2, v0")
        a.wlg0(); self.barrier()
        a.I(f"s_cmp_lg_u32 s{sW}, 0"); a.I("s_cbranch_scc1 L_fin_done")
        a.cond += 1
        ids = [a.I(f"ds_read_b64 {V(40+2*w, 2)}, v8 offset:{w*512}") for w in range(4)]
        a.wlg(ids[0])
        a.I("v_mul_f32 v40, v12, v40"); a.I("v_mul_f32 v41, v12, v41")
        for w in range(1, 4):
            a.wlg(ids[w])
            a.I(f"v_fmac_f32 v40, v{12+w}, v{40+2*w}"); a.I(f"v_fmac_f32 v41, v{12+w}, v{41+2*w}")
        a.I("v_cvt_pk_bf16_f32 v9, v40, v41"); a.I("v_min_u32 v9, -2, v9")
        self.publish(f"buffer_store_dword v9, v7, {S(rWS)}, s{sT0} offen")
        a.I(f"s_mov_b64 exec, {mL0}")
        self.publish(f"buffer_store_dwordx2 v[10:11], v7, {S(rWS)}, s{sT1} offen")
        a.I(f"s_mov_b64 exec, {mFULL}")
        a.cond -= 1
        a.L("L_fin_done")
        self.stamp("finpub")
        a.C("stage O")
        a.I("v_and_b32 v5, 7, v0"); a.I("v_bfe_u32 v6, v0, 3, 1"); a.I("v_lshl_add_u32 v5, v5, 2, v6")
        a.I("v_lshrrev_b32 v6, 4, v0"); a.I("v_lshl_add_u32 v5, v5, 2, v6"); a.I("v_lshlrev_b32 v5, 4, v5")
        a.I("v_bfe_u32 v6, v0, 4, 1"); a.I("v_and_b32 v7, 3, v0"); a.I("v_lshl_add_u32 v6, v6, 2, v7"); a.I("v_lshlrev_b32 v6, 3, v6")
        a.I(f"s_lshl_b32 s{sT0}, s{sW}, 11"); a.I(f"s_add_u32 s{sT0}, s{sT0}, s{sREG}"); a.I(f"s_add_u32 s{sT0}, s{sT0}, {AP}")
        a.I(f"s_lshl_b32 s{sT1}, s{sW}, 6"); a.I(f"s_add_u32 s{sT1}, s{sT1}, s{sREG}"); a.I(f"s_add_u32 s{sT1}, s{sT1}, {ML}")
        a.I(f"s_lshl_b32 s{sT2}, s{sW}, 2"); a.I(f"s_add_u32 s{sT2}, s{sT2}, {MISC}")
        a.I(f"v_lshl_add_u32 v7, v0, 4, s{sT2}")
        self.barrier()
        self.poll([(None, f"buffer_load_dwordx2 v[44:45], v6, {S(rWS)}, s{sT1} offen sc1"),
                   (None, f"buffer_load_dwordx4 {V(32)}, v5, {S(rWS)}, s{sT0} offen sc1"),
                   (None, f"buffer_load_dwordx4 {V(36)}, v5, {S(rWS)}, s{sT0} offen offset:128 sc1")],
                  [44, 45] + list(range(32, 40)), 8)
        self.stamp("e1")
        a.I(f"{MF} {V(40)}, {V(32)}, {V(16)}, 0")
        a.I(f"v_max_f32_dpp v46, v44, v44 quad_perm:[1,0,3,2] {DPP}")
        a.I(f"{MF} {V(40)}, {V(36)}, {V(24)}, {V(40)}")
        for r in range(4): a.I(f"v_mov_b32_dpp v{32+r}, v{32+r} row_shl:8 {DPP}")
        a.I(f"v_max_f32_dpp v46, v46, v46 quad_perm:[2,3,0,1] {DPP}")
        a.I(f"v_mov_b32_dpp v36, v36 row_shl:8 {DPP}")
        a.I(f"{MF} {V(40)}, {V(32)}, {V(20)}, {V(40)}")
        for r in range(1, 4): a.I(f"v_mov_b32_dpp v{36+r}, v{36+r} row_shl:8 {DPP}")
        a.I("v_sub_f32 v44, v44, v46")
        a.I("v_exp_f32 v44, v44")
        a.I(f"{MF} {V(40)}, {V(36)}, {V(28)}, {V(40)}")
        a.I("v_mul_f32 v45, v44, v45")
        a.I(f"v_add_f32_dpp v45, v45, v45 quad_perm:[1,0,3,2] {DPP}")
        a.I(f"v_add_f32_dpp v45, v45, v45 quad_perm:[2,3,0,1] {DPP}")
        a.I("v_rcp_f32 v45, v45")
        a.I("v_mul_f32 v44, v44, v45")
        a.I(f"v_mul_f32_dpp v46, v44, v40 quad_perm:[0,0,0,0] {DPP}")
        for r in range(1, 4): a.I(f"v_fmac_f32_dpp v46, v44, v{40+r} quad_perm:[{r},{r},{r},{r}] {DPP}")
        a.I(f"s_mov_b64 exec, {mLO32}")
        a.I("ds_write_b32 v7, v46")
        a.I(f"s_mov_b64 exec, {mFULL}")
        a.I(f"v_lshlrev_b32 v7, 4, v0"); a.I(f"v_add_u32 v7, {MISC}, v7")
        a.I("v_lshlrev_b32 v5, 2, v0")
        a.I(f"s_lshl_b32 s{sT0}, s{sX}, 7"); a.I(f"s_add_u32 s{sT0}, s{sT0}, s{sYP}")
        a.wlg0(); self.barrier()
        a.I(f"s_cmp_lg_u32 s{sW}, 0"); a.I("s_cbranch_scc1 L_o_done")
        a.cond += 1
        a.I(f"ds_read_b128 {V(40)}, v7"); a.wlg0()
        a.I("v_pk_add_f32 v[40:41], v[40:41], v[42:43]"); a.I("v_add_f32 v40, v40, v41"); a.I("v_min_u32 v40, -2, v40")
        a.I(f"s_mov_b64 exec, {mLO32}")
        a.I(f"buffer_store_dword v40, v5, {S(rWS)}, s{sT0} offen sc1")
        a.I(f"s_mov_b64 exec, {mFULL}")
        a.cond -= 1
        a.L("L_o_done")
        self.stamp("opub")
        a.I(f"s_mul_i32 s{sT0}, s{sPASS}, s{sX}"); a.I(f"s_cmp_lg_u32 s{sT0}, 0"); a.I("s_cbranch_scc1 L_abort")
        a.I(f"s_cmp_lg_u32 s{sPASS}, 0"); a.I("s_cbranch_scc1 L_nowq")
        a.cond += 1
        self.dma_voff(7, 8, 8192)
        self.dma_z(7, rWQ, sQSO, 32 * 8192)
        a.cond -= 1
        a.L("L_nowq")
        a.C("stage R")
        a.I(f"s_cmp_lg_u32 s{sW}, 0"); a.I("s_cbranch_scc1 L_r_done")
        a.cond += 1
        self.pub_off(6, 7, 1024)
        a.I(f"s_lshl_b32 s{sT0}, s{sI}, 5"); a.I(f"s_add_u32 s{sT0}, s{sT0}, s{sREG}"); a.I(f"s_add_u32 s{sT0}, s{sT0}, {XSA}")
        for r in range(8): a.I(f"v_mov_b32 v{32+r}, 0")
        if o.get("d_cross", 6): a.I(f"s_sleep {o.get('d_cross', 6)}")
        self.poll([(mLO32, f"buffer_load_dword v{32+x}, v5, {S(rWS)}, s{sYP} offen offset:{x*128} sc1") for x in range(8)], range(32, 40), 8)
        self.stamp("e2a")
        a.I("v_pk_add_f32 v[32:33], v[32:33], v[34:35]"); a.I("v_pk_add_f32 v[36:37], v[36:37], v[38:39]")
        a.I("v_pk_add_f32 v[32:33], v[32:33], v[36:37]")
        a.I("v_add_f32 v32, v32, v33"); a.I(f"v_add_f32 v32, v32, v{vXR}")
        self.pack_pub(32, 33)
        a.I(f"s_mov_b64 exec, {mEVEN}")
        self.publish(f"buffer_store_dword v33, v6, {S(rWS)}, s{sT0} offen")
        a.I(f"s_mov_b64 exec, {mFULL}")
        a.I(f"v_cvt_pk_bf16_f32 v{vXR}, v32, v32"); a.I(f"v_and_b32 v{vXR}, 0xffff0000, v{vXR}")
        a.cond -= 1
        a.L("L_r_done")
        self.stamp("rpub")
        a.C("stage H")
        w1off = lambda t, j: W1_OFF + (t * 4 + j) * 1024
        self.ln_prep(3, w1off)
        self.pub_off(7, 6, 2752)
        a.I(f"s_lshl_b32 s{sT0}, s{sW}, 8"); a.I(f"s_add_u32 s{sT0}, s{sT0}, s{sREG}"); a.I(f"s_add_u32 s{sT0}, s{sT0}, {XSA}")
        self.barrier()
        self.poll([(mN8, f"buffer_load_dwordx4 {V(self.XA)}, v5, {S(rWS)}, s{sT0} offen sc1")], range(self.XA, self.XA + 4), 6)
        self.stamp("e2b")
        self.ln_mm(3, w1off)
        a.I(f"s_cmp_lt_u32 s{sI}, 22"); a.I(f"s_cselect_b32 s{sT0}, 3, 2"); a.I(f"s_cmp_ge_u32 s{sW}, s{sT0}"); a.I("s_cbranch_scc1 L_h_done")
        a.cond += 1
        a.I(f"s_lshl_b32 s{sT0}, s{sW}, 5"); a.I(f"s_add_u32 s{sT0}, s{sT0}, s{sTILE}"); a.I(f"s_add_u32 s{sT0}, s{sT0}, s{sREG}"); a.I(f"s_add_u32 s{sT0}, s{sT0}, {HS}")
        self.ln_finish(3)
        a.I(f"v_fma_f32 v32, v32, v40, v{vB1}")
        a.I(f"v_mov_b32 v34, s{sK1}")
        a.I("v_mul_f32 v33, v32, v32")
        a.I(f"v_fma_f32 v33, v33, s{sK2}, v34")
        a.I("v_mul_f32 v33, v33, v32")
        a.I("v_exp_f32 v33, v33")
        a.I("v_add_f32 v33, 1.0, v33")
        a.I("v_rcp_f32 v33, v33")
        a.I("v_mul_f32 v32, v32, v33")
        self.pack_pub(32, 33)
        a.I(f"s_mov_b64 exec, {mEVEN}")
        self.publish(f"buffer_store_dword v33, v7, {S(rWS)}, s{sT0} offen")
        a.I(f"s_mov_b64 exec, {mFULL}")
        a.cond -= 1
        a.L("L_h_done")
        self.stamp("hpub")
        a.C("stage X2")
        self.gath_off(5, 6, 2752)
        for r in range(4): a.I(f"v_mov_b32 v{12 + r}, 0")
        rd = {}
        for k in range(6): rd[k] = self.trread(24 + 4 * k, W2_OFF + k * 1024)
        a.I(f"s_mul_i32 s{sT0}, s{sW}, 704"); a.I(f"s_add_u32 s{sT0}, s{sT0}, s{sREG}"); a.I(f"s_add_u32 s{sT0}, s{sT0}, {HS}")
        self.barrier()
        self.poll([(None, f"buffer_load_dwordx4 {V(8)}, v5, {S(rWS)}, s{sT0} offen sc1"),
                   (mH2, f"buffer_load_dwordx4 {V(12)}, v5, {S(rWS)}, s{sT0} offen offset:512 sc1")], range(8, 16), 6)
        self.stamp("e3")
        cur, nxt = 8, 16
        for k in range(11):
            if k == 8: cur, nxt = 12, 16
            if k == 10:
                a.I(f"s_cmp_eq_u32 s{sW}, 3"); a.I("s_cbranch_scc1 L_x2skip"); a.cond += 1
            a.wlg(rd[k])
            b = 24 + 4 * (k % 6)
            a.I(f"{MF} {V(20)}, {V(cur)}, {V(b)}, {'0' if k == 0 else V(20)}")
            if k == 10:
                a.cond -= 1; a.L("L_x2skip")
            if k + 6 < 11: rd[k + 6] = self.trread(b, W2_OFF + (k + 6) * 1024)
            if k not in (7, 10):
                for r in range(4): a.I(f"v_mov_b32_dpp v{nxt + r}, v{cur + r} row_shl:2 {DPP}")
                cur, nxt = nxt, cur
        a.I(f"s_lshl_b32 s{sT0}, s{sW}, 2"); a.I(f"s_add_u32 s{sT0}, s{sT0}, {MISC}")
        a.I(f"v_lshl_add_u32 v5, v0, 4, s{sT0}")
        a.I(f"v_lshlrev_b32 v7, 4, v0"); a.I(f"v_add_u32 v7, {MISC}, v7")
        self.pub_off(6, 8, 1024)
        a.I(f"v_add_f32 v9, v{vXR}, v{vB2}")
        a.I(f"s_lshl_b32 s{sT1}, s{sI}, 5"); a.I(f"s_add_u32 s{sT0}, s{sT1}, s{sREG}"); a.I(f"s_add_u32 s{sT0}, s{sT0}, {XSB}")
        a.I(f"s_mov_b64 exec, {mLO16}")
        a.I("ds_write2st64_b32 v5, v20, v21 offset0:0 offset1:1")
        a.I(f"s_mov_b64 exec, {mFULL}")
        a.wlg0(); self.barrier()
        a.I(f"s_cmp_lg_u32 s{sW}, 0"); a.I("s_cbranch_scc1 L_x2_done")
        a.cond += 1
        a.I(f"ds_read_b128 {V(32)}, v7"); a.wlg0()
        a.I("v_pk_add_f32 v[32:33], v[32:33], v[34:35]"); a.I("v_add_f32 v32, v32, v33"); a.I("v_add_f32 v32, v32, v9")
        self.pack_pub(32, 33)
        a.I(f"s_mov_b64 exec, {mEVEN}")
        a.I(f"s_cmp_lg_u32 s{sPASS}, 0"); a.I("s_cbranch_scc1 L_final")
        self.publish(f"buffer_store_dword v33, v6, {S(rWS)}, s{sT0} offen")
        a.I(f"s_mov_b64 exec, {mFULL}")
        a.I(f"v_cvt_pk_bf16_f32 v{vXR}, v32, v32"); a.I(f"v_and_b32 v{vXR}, 0xffff0000, v{vXR}")
        a.cond -= 1
        a.L("L_x2_done")
        self.stamp("xpub")
        a.I(f"s_cmp_lg_u32 s{sPASS}, 0"); a.I("s_cbranch_scc1 L_abort")
        a.C("stage Q2")
        zoff = lambda t, j: Z_OFF + j * 1024
        a.wvm0()
        self.ln_prep(1, zoff)
        a.I(f"s_lshl_b32 s{sT0}, s{sW}, 8"); a.I(f"s_add_u32 s{sT0}, s{sT0}, s{sREG}"); a.I(f"s_add_u32 s{sT0}, s{sT0}, {XSB}")
        self.barrier()
        self.poll([(mN8, f"buffer_load_dwordx4 {V(self.XA)}, v5, {S(rWS)}, s{sT0} offen sc1")], range(self.XA, self.XA + 4), 6)
        self.stamp("e4")
        a.I(f"s_mov_b32 s{sPASS}, 1"); a.I(f"s_add_u32 s{sREG}, s{sREG}, {REGION}"); a.I(f"s_add_u32 s{sYP}, s{sYP}, 32768")
        self.ln_mm(1, zoff)
        a.I(f"s_cmp_lg_u32 s{sW}, 0"); a.I("s_cbranch_scc1 L_q2_done")
        a.cond += 1
        self.ln_finish(1)
        a.I("v_mul_f32 v32, v32, v40")
        self.pack_pub(32, 47)
        self.q_publish(47)
        a.cond -= 1
        a.L("L_q2_done")
        self.stamp("qpub")
        a.C("attention 2")
        self.q_gather_prep()
        self.dma_voff(7, 10, 1024)
        a.I(f"s_lshr_b32 s{sT2}, s{sI}, 2"); a.I(f"s_lshl_b32 s{sT2}, s{sT2}, 8"); a.I(f"s_add_u32 s89, s{sT2}, s{sREG}")
        self.barrier()
        self.poll([(mN4, f"buffer_load_dwordx4 {V(self.QC)}, v9, {S(rWS)}, s89 offen sc1")], range(self.QC, self.QC + 4), 10)
        self.stamp("e5")
        zl = [0]
        def fillz():
            if zl[0] == 0: self.dma_z(7, rWO, sWOO, 32 * 1024)
            zl[0] += 1
        self.qk(fill=fillz, order=(3, 2, 0, 1))
        self.stamp("qk2")
        a.I(f"v_lshl_add_u32 v9, v0, 4, s{sWB}")
        lv = [a.I(f"ds_read_b128 {Ar(176 + 4*e)}, v9 offset:{V_OFF + e*1024}") for e in range(12)]
        self.sm_max()
        for s in self.sm_exp(0): a.I(s)
        fl = self.sm_exp(1) + self.sm_sum()
        post = []
        def opnd(c, e):
            if c == 0: return Ar(176 + 4 * e)
            if c == 1: return Ar(176 + 32 + 4 * e) if e < 4 else V(HF + 4 * (e - 4))
            return V(BLK[c if c < 6 else c - 6] + 4 * e)
        order = [2, 3, 4, 5, 6, 7, 0, 1]
        def build(c, b):
            sig, v = c >> 2, c & 3
            if v == 0: return 24 + 4 * sig
            for r in range(4): a.I(f"v_mov_b32_dpp v{b+r}, v{24+4*sig+r} row_shl:{v} {DPP}")
            return b
        self.stamp("sm2")
        A = build(order[0], 16)
        for gi, c in enumerate(order):
            An = None
            for e in range(8):
                if c == 0 and e == 0: a.wlg(lv[-1])
                a.I(f"{MF} {Ar(224 + 4*e)}, {V(A)}, {opnd(c, e)}, {'0' if gi == 0 else Ar(224 + 4*e)}")
                if gi <= 1:
                    for _ in range(2):
                        if fl: a.I(fl.pop(0))
                if e == 5 and gi + 1 < 8:
                    if gi == 1:
                        while fl: a.I(fl.pop(0))
                    An = build(order[gi + 1], 16 + 4 * ((gi + 1) % 2))
                if gi == 2 and e == 0:
                    self.xlane(11, 12, "v_add_f32"); self.ml_write()
                if gi == 3 and e == 0:
                    a.wlg0(); self.barrier(); fr = self.f_read()
                if gi == 4 and e == 0:
                    a.wlg(fr); post = self.f_calc()
                if gi >= 4 and post:
                    for _ in range(2):
                        if post: a.I(post.pop(0))
            A = An
        a.wvm0()
        for j in range(4): self.trread(16 + 4 * j, Z_OFF + j * 1024)
        a.I(f"s_lshl_b32 s{sT0}, s{sW}, 9"); a.I(f"s_add_u32 s{sT0}, s{sT0}, {MISC}")
        a.I(f"v_lshl_add_u32 v9, v0, 5, s{sT0}")
        a.I(f"s_mov_b64 exec, {mLO16}")
        for e in range(0, 8, 2):
            a.I(f"ds_write2_b32 v9, a{224 + 4*e}, a{228 + 4*e} offset0:{e} offset1:{e+1}")
        a.I(f"s_mov_b64 exec, {mFULL}")
        a.I("s_branch L_fin")
        a.L("L_final")
        a.I(f"buffer_store_dword v33, v6, {S(rOUT)}, s{sT1} offen")
        if o.get("stamps"):
            a.wvm0(); self.stamp("end"); a.I("s_branch L_abort")
        a.I("s_endpgm")

if __name__ == "__main__":
    opt = {}
    out = sys.argv[1] if len(sys.argv) > 1 else "interleave_layers__gqa_block_cached__dense_activation_gelu__decode.s"
    for kv in sys.argv[2:]:
        k, v = kv.split("="); opt[k] = v.split(",") if k == "stamps" else int(v)
    g = Gen(opt)
    t = g.build()
    open(out, "w").write(t)
    print("lines", t.count("\n"), "auto nops", g.a.nops)
```

```python
import sys, math
from asmlib import Asm
KNAME = "interleave_layers__gqa_block_cached__dense_activation_gelu__decode_kernel"

HEADER = open("interleave_layers__gqa_block_cached__dense_activation_gelu__decode.s.ref").read().split("; Override launch")[0]

WAREA = 39936; Z_OFF = 0; W1_OFF = 4096; V_OFF = 16384; W2_OFF = 28672
MISC = 158720; ML_LDS = MISC + 4096
REGION = 24576; QS = 0; AP = 2048; ML = 10240; XSA = 10496; XSB = 12544; HS = 14592
YP = 393216; WS_BYTES = 524288
sW, sX, sI, sREG, sYP, sMODE, sPASS, sCNT, sWB = 3, 4, 5, 6, 7, 9, 10, 11, 12
sT0, sT1, sT2, sPLO, sPHI, sTILE, sROT = 13, 14, 15, 16, 17, 18, 19
mFULL, mLO32, mEVEN, mN8, mN4, mG02, mL0, mH2, mLO16 = "s[20:21]", "s[22:23]", "s[24:25]", "s[26:27]", "s[28:29]", "s[30:31]", "s[32:33]", "s[34:35]", "s[76:77]"
rK, rV, rWQ, rWO, rW1, rW2, rWS, rT, rDBG, rOUT = 36, 40, 44, 48, 52, 56, 60, 64, 68, 72
sC, sXCC, sQSO, sWOO = 78, 79, 80, 81
sK1, sK2, sINV, sEPS = 82, 83, 84, 85
def S(r): return f"s[{r}:{r+3}]"
def V(r, n=4): return f"v[{r}:{r+n-1}]"
def Ar(r, n=4): return f"a[{r}:{r+n-1}]"
DPP = "row_mask:0xf bank_mask:0xf"
MF = "v_mfma_f32_16x16x32_bf16"
vLANE, vTR, vB1, vB2, vXR = 0, 1, 2, 3, 4
HF = 48
BLK = [64 + 32 * k for k in range(6)]
f2u = lambda x: "0x%08x" % (__import__("struct").unpack("<I", __import__("struct").pack("<f", x))[0])

class Gen:
    def __init__(self, opt):
        self.a = Asm(); self.o = opt; self.lab = 0
    def nl(self, p):
        self.lab += 1; return f"L_{p}_{self.lab}"

    def stamp(self, name):
        st = self.o.get("stamps", [])
        a = self.a
        hits = [k for k, x in enumerate(st) if x.split("@")[0] == name]
        if not hits: return
        a.I("s_memrealtime s[64:65]")
        a.I("s_waitcnt lgkmcnt(0)")
        for k in hits:
            if "@" in st[k]:
                a.I(f"s_cmp_eq_u32 s{sPASS}, {st[k].split('@')[1]}")
                a.I(f"s_cselect_b32 s{90+k}, s64, s{90+k}")
            else:
                a.I(f"s_mov_b32 s{90+k}, s64")
    def stamp_out(self):
        if not self.o.get("stamps"): return
        a = self.a
        a.I("s_mov_b64 exec, 1")
        a.I(f"s_lshl_b32 s64, s2, 2"); a.I(f"s_add_u32 s64, s64, s{sW}"); a.I("s_lshl_b32 s64, s64, 6"); a.I("s_add_u32 s64, s64, 0x70000")
        a.I("v_mov_b32 v20, 0")
        for k in range(12): a.I(f"v_mov_b32 v{8+k}, s{90+k}")
        for k in range(3): a.I(f"buffer_store_dwordx4 {V(8+4*k)}, v20, {S(rWS)}, s64 offen offset:{16*k}")
        if self.o.get("dbgst"):
            a.I(f"s_lshl_b32 s64, s2, 2"); a.I(f"s_add_u32 s64, s64, s{sW}"); a.I("s_cmp_lg_u32 s64, 0"); a.I("s_cbranch_scc1 L_exit")
            a.I("s_nop 1")
            for k in range(1, 12): a.I(f"v_subrev_u32 v{8+k}, s90, v{8+k}")
            for k in range(3): a.I(f"buffer_store_dwordx4 {V(8+4*k)}, v20, {S(rDBG)}, 0 offen offset:{16*k}")
    def publish(self, instr):
        a = self.a
        ls, ld = self.nl("slow"), self.nl("pubd")
        a.I(f"s_cmp_lg_u32 s{sMODE}, 0")
        a.I(f"s_cbranch_scc1 {ls}")
        a.cond += 1
        a.I(instr)
        a.cond -= 1
        a.L(ld)
        self.ool.append((ls, instr + " sc1", ld))
    def barrier(self):
        self.a.I("s_barrier")
    def poll(self, loads, regs, vt, pre=None):
        a = self.a
        l = self.nl("poll")
        a.L(l)
        cur = None
        for m, ins in loads:
            if m != cur:
                a.I(f"s_mov_b64 exec, {m or mFULL}"); cur = m
            a.I(ins)
        if cur is not None: a.I(f"s_mov_b64 exec, {mFULL}")
        a.I(f"s_sub_u32 s{sCNT}, s{sCNT}, 1")
        a.I("s_cbranch_scc1 L_abort")
        a.wvm0()
        self.check(regs, vt)
        a.I(f"s_cbranch_vccnz {l}")
    def check(self, regs, vt):
        a = self.a
        r = list(regs)
        if len(r) % 2 == 1:
            a.I(f"v_max3_u32 v{vt}, v{r[0]}, v{r[1]}, v{r[2]}"); r = r[3:]
        else:
            a.I(f"v_max_u32 v{vt}, v{r[0]}, v{r[1]}"); r = r[2:]
        for k in range(0, len(r), 2):
            a.I(f"v_max3_u32 v{vt}, v{r[k]}, v{r[k+1]}, v{vt}")
        a.I(f"v_cmp_eq_u32 vcc, -1, v{vt}")
    def dma_voff(self, dst, tmp, pitch):
        a = self.a
        a.I(f"v_bfe_u32 v{dst}, v0, 3, 2")
        a.I(f"v_lshrrev_b32 v{tmp}, 5, v0")
        a.I(f"v_lshl_add_u32 v{dst}, v{dst}, 1, v{tmp}")
        a.I(f"v_bfe_u32 v{tmp}, v0, 1, 2")
        a.I(f"v_lshl_add_u32 v{dst}, v{dst}, 2, v{tmp}")
        a.I(f"v_and_b32 v{tmp}, 1, v0")
        a.I(f"v_lshlrev_b32 v{tmp}, 4, v{tmp}")
        a.I(f"s_movk_i32 s{sT2}, {pitch}")
        a.I(f"v_mad_u32_u24 v{dst}, v{dst}, s{sT2}, v{tmp}")
    def dma(self, voff, srd, soff_sgpr, ldsoff):
        a = self.a
        a.I(f"s_add_u32 m0, s{sWB}, {ldsoff}")
        key = {rWQ: "pq", rWO: "po", rW1: "p1", rW2: "p2"}[srd]
        pol = ["", " nt", " sc1", " sc1 nt", " sc0 sc1 nt"][self.o.get(key, self.o.get("wpol", 0))]
        if self.o.get("now") and srd in (rW1, rW2): return None
        if self.o.get("nowo") and srd == rWO: return None
        if self.o.get("nowq") and srd == rWQ: return None
        return a.I(f"buffer_load_dwordx4 v{voff}, {S(srd)}, s{soff_sgpr} offen{pol} lds")
    def dma_z(self, voff, srd, sbase, step):
        a = self.a; ids = []
        for j in range(4):
            if j == 0:
                ids.append(self.dma(voff, srd, sbase, Z_OFF))
            else:
                a.I(f"s_add_u32 s{sT0}, s{sbase}, {j*step}")
                ids.append(self.dma(voff, srd, sT0, Z_OFF + j * 1024))
        return ids
    def trread(self, dst, off, acc=False):
        a = self.a
        R = Ar if acc else V
        i1 = a.I(f"ds_read_b64_tr_b16 {R(dst,2)}, v{vTR} offset:{off}")
        i2 = a.I(f"ds_read_b64_tr_b16 {R(dst+2,2)}, v{vTR} offset:{off+512}")
        return i2
    def pack_pub(self, val, tmp):
        a = self.a
        a.I(f"v_mov_b32_dpp v{tmp}, v{val} quad_perm:[1,1,3,3] {DPP}")
        a.I(f"v_cvt_pk_bf16_f32 v{tmp}, v{val}, v{tmp}")
        a.I(f"v_min_u32 v{tmp}, -2, v{tmp}")
    def pub_off(self, dst, tmp, pitch):
        a = self.a
        a.I(f"v_bfe_u32 v{dst}, v0, 4, 1")
        a.I(f"v_and_b32 v{tmp}, 15, v0")
        a.I(f"v_lshlrev_b32 v{tmp}, 1, v{tmp}")
        a.I(f"s_movk_i32 s{sT2}, {pitch}")
        a.I(f"v_mad_u32_u24 v{dst}, v{dst}, s{sT2}, v{tmp}")
    def gath_off(self, dst, tmp, pitch):
        a = self.a
        a.I(f"v_bfe_u32 v{dst}, v0, 1, 3")
        a.I(f"v_lshrrev_b32 v{tmp}, 4, v0")
        a.I(f"v_lshl_add_u32 v{dst}, v{dst}, 2, v{tmp}")
        a.I(f"v_lshlrev_b32 v{dst}, 4, v{dst}")
        a.I(f"v_and_b32 v{tmp}, 1, v0")
        a.I(f"s_movk_i32 s{sT2}, {pitch}")
        a.I(f"v_mad_u32_u24 v{dst}, v{tmp}, s{sT2}, v{dst}")

    XA, XT = 8, 12
    def ln_prep(self, ntiles, woff):
        a = self.a
        self.gath_off(5, 6, 1024)
        for r in range(8): a.I(f"v_mov_b32 v{self.XA + r}, 0x3f803f80")
        self.ops = [(t, j) for j in range(4) for t in range(ntiles)]
        self.rd = {}
        for k in range(min(4, len(self.ops))):
            t, j = self.ops[k]
            self.rd[k] = self.trread(32 + 4 * k, woff(t, j))
    def ln_mm(self, ntiles, woff):
        a = self.a
        XA, XT = self.XA, self.XT
        k = 0
        cur, nxt = XA, XT
        for j in range(4):
            c = "0" if j == 0 else None
            acc = 16
            a.I(f"{MF} {V(acc)}, {V(cur)}, {V(cur)}, {c or V(acc)}")
            if j < 3:
                for r in range(4): a.I(f"v_mov_b32_dpp v{nxt + r}, v{cur + r} row_shl:2 {DPP}")
            for t in range(ntiles):
                acc = 20 + 4 * t
                a.wlg(self.rd[k])
                b = 32 + 4 * (k % 4)
                a.I(f"{MF} {V(acc)}, {V(cur)}, {V(b)}, {c or V(acc)}")
                if k + 4 < len(self.ops):
                    t2, j2 = self.ops[k + 4]
                    self.rd[k + 4] = self.trread(b, woff(t2, j2))
                k += 1
            cur, nxt = nxt, cur
        a.I(f"s_lshl_b32 s{sT0}, s{sW}, 2")
        a.I(f"s_add_u32 s{sT0}, s{sT0}, {MISC}")
        a.I(f"v_lshl_add_u32 v5, v0, 4, s{sT0}")
        if ntiles > 1:
            a.I(f"s_lshl_b32 s{sT1}, s{sW}, 10"); a.I(f"s_add_u32 s{sT1}, s{sT1}, {MISC}")
        else:
            a.I(f"s_mov_b32 s{sT1}, {MISC}")
        a.I(f"v_lshl_add_u32 v12, v0, 4, s{sT1}")
        a.I(f"v_and_b32 v13, 15, v0")
        a.I(f"v_lshl_add_u32 v13, v13, 4, s{sT1}")
        a.I(f"v_bfe_u32 v15, v0, 4, 1")
        a.I(f"v_mul_u32_u24 v14, 272, v15")
        a.I(f"v_lshlrev_b32 v15, 4, v15")
        a.I(f"s_mov_b64 exec, {mG02}")
        a.I(f"ds_write2st64_b32 v5, v16, v17 offset0:{4*ntiles} offset1:{4*ntiles+1}")
        for t in range(ntiles):
            a.I(f"ds_write2st64_b32 v5, v{20+4*t}, v{21+4*t} offset0:{4*t} offset1:{4*t+1}")
        a.I(f"s_mov_b64 exec, {mFULL}")
        a.wlg0()
        self.barrier()
    def ln_finish(self, ntiles):
        a = self.a
        g = MISC + ntiles * 1024
        r1 = a.I(f"ds_read_b128 {V(40)}, v14 offset:{g - MISC + 0}") if False else None
        a.I(f"v_add_u32 v14, {g}, v14")
        a.I(f"v_add_u32 v15, {g + 512}, v15")
        i_sq = a.I(f"ds_read_b128 {V(40)}, v14")
        i_sm = a.I(f"ds_read_b128 {V(44)}, v15")
        i_raw = a.I(f"ds_read_b128 {V(32)}, v12")
        i_cs = a.I(f"ds_read_b128 {V(36)}, v13 offset:512")
        a.wlg(i_sm)
        a.I("v_pk_add_f32 v[40:41], v[40:41], v[42:43]")
        a.I("v_pk_add_f32 v[44:45], v[44:45], v[46:47]")
        a.I("v_add_f32 v40, v40, v41")
        a.I("v_add_f32 v44, v44, v45")
        a.I(f"v_mul_f32 v44, s{sINV}, v44")
        a.I(f"v_mov_b32 v41, s{sEPS}")
        a.I(f"v_fma_f32 v40, v40, s{sINV}, v41")
        a.I("v_fma_f32 v40, -v44, v44, v40")
        a.I(f"v_max_f32 v40, s{sEPS}, v40")
        a.I("v_rsq_f32 v40, v40")
        a.wlg(i_cs)
        a.I("v_pk_add_f32 v[32:33], v[32:33], v[34:35]")
        a.I("v_pk_add_f32 v[36:37], v[36:37], v[38:39]")
        a.I("v_add_f32 v32, v32, v33")
        a.I("v_add_f32 v36, v36, v37")
        a.I("v_fma_f32 v32, -v44, v36, v32")

    QC, MASK = 12, 8
    def qk(self, fill=None, waitk=None, order=(0, 1, 2, 3)):
        a = self.a
        n = 0
        for vi, v in enumerate(order):
            a.I(f"v_and_b32 v{self.MASK}, 15, v0")
            a.I(f"v_cmp_eq_u32 vcc, {v}, v{self.MASK}")
            a.I(f"v_cndmask_b32 v{self.MASK}, 0, -1, vcc")
            if waitk: waitk(v)
            for j in range(4):
                b = 16 + 4 * (n % 2); n += 1
                for r in range(4):
                    a.I(f"v_and_b32_dpp v{b+r}, v{self.QC+r}, v{self.MASK} quad_perm:[{j},{j},{j},{j}] {DPP}")
                for u in range(4):
                    t = 4 * v + u
                    c = "0" if (vi == 0 and j == 0) else V(32 + 4 * u)
                    a.I(f"{MF} {V(32+4*u)}, {Ar(16*t + 4*j)}, {V(b)}, {c}")
                if fill: fill()
    def xlane(self, r, t, op):
        a = self.a
        a.I(f"{op}_dpp v{r}, v{r}, v{r} quad_perm:[1,0,3,2] {DPP}")
        a.I(f"{op}_dpp v{r}, v{r}, v{r} quad_perm:[2,3,0,1] {DPP}")
        a.I(f"v_mov_b32 v{t}, v{r}")
        a.I(f"v_permlane32_swap_b32 v{t}, v{r}")
        a.I(f"{op} v{r}, v{r}, v{t}")
        a.I(f"v_mov_b32 v{t}, v{r}")
        a.I(f"v_permlane16_swap_b32 v{t}, v{r}")
        a.I(f"{op} v{r}, v{r}, v{t}")
    def sm_max(self):
        a = self.a
        a.I("v_max3_f32 v10, v32, v33, v34")
        a.I("v_max3_f32 v11, v35, v36, v37")
        for k in range(38, 46, 4):
            a.I(f"v_max3_f32 v10, v{k}, v{k+1}, v10")
            a.I(f"v_max3_f32 v11, v{k+2}, v{k+3}, v11")
        a.I("v_max3_f32 v10, v46, v47, v10")
        a.I("v_max_f32 v10, v10, v11")
        self.xlane(10, 11, "v_max_f32")
        a.I(f"v_mul_f32 v10, s{sC}, v10")
    def sm_exp(self, sig):
        L = []
        b = 32 + 8 * sig
        for k in range(8): L.append(f"v_fma_f32 v{b+k}, v{b+k}, s{sC}, -v10")
        for k in range(8): L.append(f"v_exp_f32 v{b+k}, v{b+k}")
        for k in range(4): L.append(f"v_cvt_pk_bf16_f32 v{24+4*sig+k}, v{b+2*k}, v{b+2*k+1}")
        return L
    def sm_sum(self):
        L = []
        L.append("v_pk_add_f32 v[32:33], v[32:33], v[34:35]")
        L.append("v_pk_add_f32 v[36:37], v[36:37], v[38:39]")
        L.append("v_pk_add_f32 v[40:41], v[40:41], v[42:43]")
        L.append("v_pk_add_f32 v[44:45], v[44:45], v[46:47]")
        L.append("v_pk_add_f32 v[32:33], v[32:33], v[36:37]")
        L.append("v_pk_add_f32 v[40:41], v[40:41], v[44:45]")
        L.append("v_pk_add_f32 v[32:33], v[32:33], v[40:41]")
        L.append("v_add_f32 v11, v32, v33")
        return L
    def ml_write(self):
        a = self.a
        a.I(f"s_lshl_b32 s{sT0}, s{sW}, 2"); a.I(f"s_add_u32 s{sT0}, s{sT0}, {ML_LDS}")
        a.I(f"v_mov_b32 v12, s{sT0}")
        a.I(f"s_mov_b64 exec, {mL0}")
        a.I("ds_write2_b32 v12, v10, v11 offset0:0 offset1:4")
        a.I(f"s_mov_b64 exec, {mFULL}")
    def f_read(self):
        a = self.a
        a.I(f"v_mov_b32 v9, {ML_LDS}")
        a.I(f"ds_read_b128 {V(12)}, v9")
        return a.I(f"ds_read_b128 {V(44)}, v9 offset:16")
    def f_calc(self):
        L = []
        L.append("v_max3_f32 v10, v12, v13, v14")
        L.append("v_max_f32 v10, v10, v15")
        for k in range(4): L.append(f"v_sub_f32 v{12+k}, v{12+k}, v10")
        for k in range(4): L.append(f"v_exp_f32 v{12+k}, v{12+k}")
        L.append("v_mul_f32 v11, v12, v44")
        for k in range(1, 4): L.append(f"v_fmac_f32 v11, v{12+k}, v{44+k}")
        L.append("v_min_u32 v10, -2, v10")
        L.append("v_min_u32 v11, -2, v11")
        return L

    def perm_group(self, blk, outmap=None, temps=(40, 41)):
        a = self.a
        R = lambda s, d: blk + 4 * s + d
        t1, t2 = temps[0], temps[1]
        lo = lambda dst, x, y: a.I(f"v_perm_b32 v{dst}, v{y}, v{x}, s{sPLO}")
        hi = lambda dst, x, y: a.I(f"v_perm_b32 v{dst}, v{y}, v{x}, s{sPHI}")
        for p in range(4):
            x, y = R(2*p, p), R(2*p+1, p)
            lo(t1, x, y); hi(y, x, y); a.I(f"v_mov_b32 v{x}, v{t1}")
        for p in range(4):
            for d in range(p + 1, 4):
                ax, ay = R(2*p, d), R(2*p+1, d)
                bx, by = R(2*d, p), R(2*d+1, p)
                lo(t1, ax, ay); hi(t2, ax, ay)
                lo(ax, bx, by); hi(ay, bx, by)
                a.I(f"v_mov_b32 v{bx}, v{t1}"); a.I(f"v_mov_b32 v{by}, v{t2}")

    def build(self):
        a = self.a; o = self.o
        self.ool = []
        KV = "" if o.get("kvdef") else " nt"
        a.raw(HEADER.rstrip())
        a.raw("; @launch grid=(256,1,1) block=(256,1,1) lds=163840")
        a.raw('.amdgcn_target "amdgcn-amd-amdhsa--gfx950"')
        a.raw(".text"); a.raw(f".globl {KNAME}"); a.raw(".p2align 8"); a.raw(f".type {KNAME},@function"); a.raw(f"{KNAME}:")
        a.I("s_cmp_ge_u32 s2, 256"); a.I("s_cbranch_scc1 L_exit")
        if o.get("stamps"): a.I("s_memrealtime s[8:9]")
        a.I("s_load_dwordx16 s[76:91], s[0:1], 0")
        a.I("s_load_dwordx8 s[92:99], s[0:1], 64")
        a.I("s_load_dwordx2 s[100:101], s[0:1], 96")
        a.I("v_lshrrev_b32 v1, 6, v0")
        a.I(f"v_readfirstlane_b32 s{sW}, v1")
        a.I("v_and_b32 v0, 63, v0")
        a.I(f"s_and_b32 s{sX}, s2, 7"); a.I(f"s_lshr_b32 s{sI}, s2, 3")
        a.I("v_and_b32 v5, 3, v0"); a.I("v_bfe_u32 v6, v0, 2, 2"); a.I("v_lshl_add_u32 v5, v5, 2, v6")
        a.I("v_lshrrev_b32 v6, 4, v0"); a.I("v_lshlrev_b32 v6, 4, v6"); a.I("v_lshl_add_u32 v5, v5, 8, v6")
        a.I("v_lshlrev_b32 v6, 4, v0")
        a.I(f"s_bfe_u32 s{sT0}, s{sI}, 0x10002"); a.I(f"s_lshl_b32 s{sT0}, s{sT0}, 5")
        a.I(f"s_lshl_b32 s{sT1}, s{sX}, 2"); a.I(f"s_add_u32 s{sT0}, s{sT0}, s{sT1}")
        a.I(f"s_lshr_b32 s{sT1}, s{sI}, 3"); a.I(f"s_add_u32 s{sT0}, s{sT0}, s{sT1}")
        a.I(f"s_lshl_b32 s{sT0}, s{sT0}, 4")
        a.I(f"s_and_b32 s{sT1}, s{sI}, 3"); a.I(f"s_lshl_b32 s{sT1}, s{sT1}, 2"); a.I(f"s_add_u32 s{sT0}, s{sT0}, s{sT1}")
        a.I(f"s_add_u32 s{sT0}, s{sT0}, s{sW}"); a.I(f"s_lshl_b32 s{sT0}, s{sT0}, 16")
        a.I(f"s_lshl_b32 s{sROT}, s2, 2"); a.I(f"s_add_u32 s{sROT}, s{sROT}, s{sW}")
        a.I(f"s_mul_i32 s{sROT}, s{sROT}, 0x9E3779B1"); a.I(f"s_lshr_b32 s{sROT}, s{sROT}, 28"); a.I(f"s_lshl_b32 s{sROT}, s{sROT}, 12")
        a.I(f"s_mul_i32 s{sWB}, s{sW}, {WAREA}")
        for r, sz in ((rK, 65536), (rV, 65536), (rWQ, 1 << 22), (rWO, 1 << 22), (rW1, 512 * 2752), (rW2, 1376 * 1024), (rWS, WS_BYTES), (rT, 2048), (rDBG, 256), (rOUT, 2048)):
            a.I(f"s_mov_b32 s{r+2}, {sz}"); a.I(f"s_mov_b32 s{r+3}, 0x20000")
        self.dma_voff(7, 8, 8192)
        a.I("s_waitcnt lgkmcnt(0)")
        a.I(f"s_add_u32 s{rK}, s78, s{sT0}"); a.I(f"s_addc_u32 s{rK+1}, s79, 0")
        a.I(f"s_add_u32 s{rV}, s80, s{sT0}"); a.I(f"s_addc_u32 s{rV+1}, s81, 0")
        for r, p in ((rWS, 100), (rT, 76), (rWQ, 82), (rWO, 84), (rW1, 88), (rW2, 92), (rDBG, 98), (rOUT, 96)):
            a.I(f"s_mov_b64 s[{r}:{r+1}], s[{p}:{p+1}]")
        kid = {}
        def ktile(t):
            a.I(f"s_add_u32 s{sT1}, s{sROT}, {t*4096}"); a.I(f"s_and_b32 s{sT1}, s{sT1}, 0xffff")
            for j in range(4):
                kid[t] = a.I(f"buffer_load_dwordx4 {Ar(16*t+4*j)}, v5, {S(rK)}, s{sT1} offen offset:{j*64}{KV}")
        a.I(f"s_cmp_lg_u32 s{sW}, 0"); a.I("s_cbranch_scc1 L_noclear")
        a.cond += 1
        for r in range(4): a.I(f"v_mov_b32 v{16+r}, -1")
        a.I(f"s_lshl_b32 s{sT1}, s2, 11")
        a.I(f"buffer_store_dwordx4 {V(16)}, v6, {S(rWS)}, s{sT1} offen sc1")
        clr = a.I(f"buffer_store_dwordx4 {V(16)}, v6, {S(rWS)}, s{sT1} offen offset:1024 sc1")
        a.cond -= 1
        a.L("L_noclear")
        a.I(f"s_lshl_b32 s{sT0}, s{sW}, 20"); a.I(f"s_lshl_b32 s{sT1}, s{sX}, 10"); a.I(f"s_add_u32 s{sT0}, s{sT0}, s{sT1}")
        a.I(f"s_lshl_b32 s{sT1}, s{sI}, 5"); a.I(f"s_add_u32 s86, s{sT0}, s{sT1}")
        wqid = self.dma_z(7, rWQ, 86, 32 * 8192)
        self.gath_off(9, 10, 1024)
        for r in range(8): a.I(f"v_mov_b32 v{20 + r}, 0x3f803f80")
        a.I("v_and_b32 v10, 15, v0")
        a.I(f"v_cmp_gt_u32 {mN8}, 8, v10"); a.I(f"v_cmp_gt_u32 {mN4}, 4, v10")
        a.I(f"s_mov_b64 {mFULL}, -1")
        a.I(f"s_lshl_b32 s{sT0}, s{sW}, 8")
        a.I(f"s_mov_b64 exec, {mN8}")
        xid = a.I(f"buffer_load_dwordx4 {V(20)}, v9, {S(rT)}, s{sT0} offen")
        a.I(f"s_mov_b64 exec, {mFULL}")
        self.pub_off(9, 10, 1024)
        a.I(f"s_lshl_b32 s{sT0}, s{sI}, 5")
        a.I(f"buffer_load_ushort v{vXR}, v9, {S(rT)}, s{sT0} offen")
        ktile(0)
        a.I(f"s_mov_b64 s[{rT}:{rT+1}], s[94:95]"); a.I(f"s_mov_b32 s{rT+2}, 1024")
        a.I("v_and_b32 v10, 15, v0"); a.I("v_lshlrev_b32 v10, 1, v10")
        a.I(f"buffer_load_ushort v{vB2}, v10, {S(rT)}, s{sT0} offen")
        a.I(f"s_mul_i32 s{sT0}, s{sI}, 3"); a.I(f"s_lshl_b32 s{sT1}, s{sI}, 1"); a.I(f"s_add_u32 s{sT1}, s{sT1}, 22")
        a.I(f"s_min_u32 s{sTILE}, s{sT0}, s{sT1}"); a.I(f"s_lshl_b32 s{sTILE}, s{sTILE}, 5")
        a.I(f"s_mov_b64 s[{rT}:{rT+1}], s[90:91]"); a.I(f"s_mov_b32 s{rT+2}, 2752")
        a.I(f"s_lshl_b32 s{sT0}, s{sW}, 5"); a.I(f"s_add_u32 s{sT0}, s{sT0}, s{sTILE}")
        bid = a.I(f"buffer_load_ushort v{vB1}, v10, {S(rT)}, s{sT0} offen")
        if o.get("prew"):
            a.I(f"s_lshl_b32 s{sT0}, s2, 2"); a.I(f"s_add_u32 s{sT0}, s{sT0}, s{sW}"); a.I(f"s_mul_i32 s{sT0}, s{sT0}, 1376")
            for k, r in enumerate((rW1, rW2)):
                a.I(f"buffer_load_dwordx4 {V(BLK[5] + 8*k)}, v6, {S(r)}, s{sT0} offen")
                a.I(f"buffer_load_dwordx4 {V(BLK[5] + 8*k + 4)}, v6, {S(r)}, s{sT0} offen offset:1024")
        nk0 = o.get("nk0", 3); nk1 = o.get("nk1", 9)
        for t in range(1, nk0): ktile(t)
        if o.get("stamps"):
            for k in range(12): a.I(f"s_mov_b32 s{90+k}, 0")
            for k, x in enumerate(o["stamps"]):
                if x == "start": a.I(f"s_mov_b32 s{90+k}, s8")
        a.I(f"s_mov_b32 s{sQSO}, s86")
        a.I(f"s_getreg_b32 s{sXCC}, hwreg(HW_REG_XCC_ID, 0, 4)"); a.I(f"s_add_u32 s{sXCC}, s{sXCC}, 1")
        a.I(f"s_mov_b32 s{sC}, {f2u(math.log2(math.e) / math.sqrt(128.0))}")
        k1 = -2.0 * math.sqrt(2.0 / math.pi) * math.log2(math.e)
        a.I(f"s_mov_b32 s{sK1}, {f2u(k1)}"); a.I(f"s_mov_b32 s{sK2}, {f2u(k1 * 0.044715)}")
        a.I(f"s_mov_b32 s{sINV}, {f2u(1.0 / 512)}"); a.I(f"s_mov_b32 s{sEPS}, {f2u(1e-5)}")
        a.I(f"s_mov_b32 s{sPLO}, 0x05040100"); a.I(f"s_mov_b32 s{sPHI}, 0x07060302")
        a.I("s_mov_b32 s22, -1"); a.I("s_mov_b32 s23, 0")
        a.I("s_mov_b32 s24, 0x55555555"); a.I("s_mov_b32 s25, 0")
        a.I("s_mov_b32 s30, 0xffff"); a.I("s_mov_b32 s31, 0xffff")
        a.I("s_mov_b64 s[32:33], 1")
        a.I("s_mov_b32 s76, 0xffff"); a.I("s_mov_b32 s77, 0")
        a.I(f"s_cmp_eq_u32 s{sW}, 3"); a.I("s_cselect_b32 s34, 0x000f000f, 0x003f003f") if False else None
        a.I("s_mov_b32 s34, 0x003f003f"); a.I("s_cselect_b32 s34, 0x000f000f, s34"); a.I("s_mov_b32 s35, s34")
        a.I(f"s_mul_i32 s{sREG}, s{sX}, {2*REGION}")
        a.I(f"s_lshl_b32 s{sYP}, s{sI}, 10"); a.I(f"s_add_u32 s{sYP}, s{sYP}, {YP}")
        a.I(f"s_mov_b32 s{sPASS}, 0"); a.I(f"s_mov_b32 s{sCNT}, {o.get('timeout', 400000)}"); a.I(f"s_mov_b32 s{sMODE}, 1")
        a.I(f"s_lshl_b32 s{sT0}, s{sX}, 19"); a.I(f"s_lshl_b32 s{sT1}, s{sW}, 17"); a.I(f"s_add_u32 s{sT0}, s{sT0}, s{sT1}")
        a.I(f"s_lshl_b32 s{sT1}, s{sI}, 5"); a.I(f"s_add_u32 s{sWOO}, s{sT0}, s{sT1}")
        a.I(f"v_lshl_add_u32 v{vTR}, v0, 3, s{sWB}")
        a.I(f"s_cmp_lg_u32 s{sW}, 0"); a.I("s_cbranch_scc1 L_noflag")
        a.cond += 1
        a.wvm(clr)
        a.I(f"v_mov_b32 v10, s{sXCC}"); a.I("v_mov_b32 v11, s2")
        a.I(f"s_mov_b64 exec, {mL0}")
        a.I(f"buffer_store_byte v10, v11, {S(rDBG)}, 0 offen sc1")
        a.I(f"s_mov_b64 exec, {mFULL}")
        a.cond -= 1
        a.L("L_noflag")
        a.C("Q1")
        self.stamp("q1in")
        a.wvm([bid] + [x for x in wqid if x] + [xid])
        a.I(f"v_lshlrev_b32 v{vXR}, 16, v{vXR}"); a.I(f"v_lshlrev_b32 v{vB1}, 16, v{vB1}"); a.I(f"v_lshlrev_b32 v{vB2}, 16, v{vB2}")
        zoff = lambda t, j: Z_OFF + j * 1024
        self.ops = [(0, j) for j in range(4)]; self.rd = {}
        for k in range(4): self.rd[k] = self.trread(32 + 4 * k, zoff(0, k))
        for r in range(8): a.I(f"v_mov_b32 v{8 + r}, v{20 + r}")
        a.I("v_mov_b32 v28, v5")
        self.ln_mm(1, zoff)
        a.I(f"s_cmp_lg_u32 s{sW}, 0"); a.I("s_cbranch_scc1 L_q1nf")
        a.cond += 1
        self.ln_finish(1)
        a.I("v_mul_f32 v32, v32, v40")
        self.pack_pub(32, 47)
        a.cond -= 1
        a.L("L_q1nf")
        self.stamp("q1done")
        a.I("v_mov_b32 v5, v28")
        self.dma_voff(7, 8, 1024)
        self.dma_z(7, rWO, sWOO, 32 * 1024)
        for t in range(nk0, nk1): ktile(t)
        a.C("flags check")
        a.I("v_lshlrev_b32 v9, 2, v0")
        def flagchk():
            a.I("v_subrev_u32 v11, 0x01010101, v10")
            a.I("v_not_b32 v12, v10")
            a.I("v_and_b32 v11, v11, v12")
            a.I("v_and_b32 v11, 0x80808080, v11")
            a.I("v_cmp_ne_u32 vcc, 0, v11")
        fid = a.I(f"buffer_load_dword v10, v9, {S(rDBG)}, 0 offen sc1")
        ktile(nk1)
        a.wvm(fid)
        flagchk()
        a.I("s_cbranch_vccz L_flagok")
        a.L("L_flagpoll")
        a.cond += 1
        a.I(f"buffer_load_dword v10, v9, {S(rDBG)}, 0 offen sc1")
        a.I(f"s_sub_u32 s{sCNT}, s{sCNT}, 1"); a.I("s_cbranch_scc1 L_abort")
        a.wvm0()
        flagchk()
        a.I("s_cbranch_vccnz L_flagpoll")
        a.cond -= 1
        a.L("L_flagok")
        self.stamp("flagok")
        a.I(f"s_and_b32 s{sT0}, s{sX}, 3"); a.I(f"s_lshl_b32 s{sT0}, s{sT0}, 3")
        a.I(f"v_lshrrev_b32 v10, s{sT0}, v10"); a.I("v_and_b32 v10, 0xff, v10")
        a.I(f"v_cmp_ne_u32 vcc, s{sXCC}, v10")
        a.I(f"s_cmp_lt_u32 s{sX}, 4"); a.I(f"s_mov_b32 s{sT0}, 0xaaaaaaaa"); a.I(f"s_cselect_b32 s{sT0}, 0x55555555, s{sT0}")
        a.I(f"s_or_b32 s{sT1}, vcc_lo, vcc_hi"); a.I(f"s_and_b32 s{sMODE}, s{sT1}, s{sT0}")
        if o.get("force_slow"): a.I(f"s_mov_b32 s{sMODE}, 1")
        a.I(f"s_cmp_lg_u32 s{sW}, 0"); a.I("s_cbranch_scc1 L_q1np")
        a.cond += 1
        self.q_publish(47)
        a.cond -= 1
        a.L("L_q1np")
        for t in range(nk1 + 1, 16): ktile(t)
        self.dma_voff(9, 10, 2752)
        a.I(f"s_mul_i32 s87, s{sW}, {128*2752}"); a.I(f"s_add_u32 s87, s87, s{sTILE}")
        for t in range(3):
            for j in range(4):
                a.I(f"s_add_u32 s{sT0}, s87, {j*32*2752 + t*32}")
                self.dma(9, rW1, sT0, W1_OFF + (t * 4 + j) * 1024)
        a.I(f"s_mul_i32 s87, s{sW}, {11*32*1024}"); a.I(f"s_lshl_b32 s{sT0}, s{sI}, 5"); a.I(f"s_add_u32 s87, s87, s{sT0}")
        def w2dma(j):
            if j == 10:
                a.I(f"s_cmp_eq_u32 s{sW}, 3"); a.I("s_cbranch_scc1 L_now2"); a.cond += 1
            a.I(f"s_add_u32 s{sT0}, s87, {j*32*1024}")
            self.dma(7, rW2, sT0, W2_OFF + j * 1024)
            if j == 10:
                a.cond -= 1; a.L("L_now2")
        vid = {}
        def vload(c, e):
            sig, v = c >> 2, c & 3
            blk = BLK[c if c < 6 else c - 6]
            t = 4 * v + 2 * sig + (e >> 2)
            if e % 4 == 0:
                a.I(f"s_add_u32 s{sT1}, s{sROT}, {t*4096}"); a.I(f"s_and_b32 s88, s{sT1}, 0xffff")
            vid[(c, e)] = a.I(f"buffer_load_dwordx4 {V(blk + 4*e)}, v6, {S(rV)}, s88 offen offset:{(e&3)*1024}{KV}")
        a.C("q1 gather")
        self.q_gather_prep()
        a.I(f"s_mov_b64 exec, {mN4}")
        qins = f"buffer_load_dwordx4 {V(self.QC)}, v9, {S(rWS)}, s{sT2} offen sc1"
        a.I(f"s_mov_b32 s89, s{sT2}")
        qins = qins.replace(f"s{sT2} offen", "s89 offen")
        qid = a.I(qins)
        a.I(f"s_mov_b64 exec, {mFULL}")
        for j in range(6): w2dma(j)
        a.wvm(qid)
        self.check(range(self.QC, self.QC + 4), 10)
        a.I("s_cbranch_vccz L_q1ok")
        a.cond += 1
        self.poll([(mN4, qins)], range(self.QC, self.QC + 4), 10)
        a.cond -= 1
        a.L("L_q1ok")
        self.stamp("q1ok")
        fl = [lambda j=j: w2dma(j) for j in range(6, 11)] + [lambda e=e: vload(0, e) for e in range(8)] + [lambda e=e: vload(1, e) for e in range(8)]
        def fill():
            if fl: fl.pop(0)()
        self.qk(fill=fill, waitk=lambda v: a.wvm(kid[4 * v + 3]))
        while fl: fl.pop(0)()
        self.sm_max()
        for s in self.sm_exp(0) + self.sm_exp(1) + self.sm_sum(): a.I(s)
        self.xlane(11, 12, "v_add_f32")
        self.ml_write()
        a.I(f"v_lshl_add_u32 v9, v0, 4, s{sWB}")
        a.I("v_and_b32 v8, 15, v0"); a.I("v_cmp_eq_u32 vcc, 0, v8"); a.I("v_cndmask_b32 v8, 0, -1, vcc")
        self.stamp("sm1")
        first = True
        for c in range(8):
            sig, v = c >> 2, c & 3
            if c + 2 < 8:
                if c + 2 >= 6: a.wlg0()
                for e in range(8): vload(c + 2, e)
            blk = BLK[c if c < 6 else c - 6]
            if c == 7:
                self.stamp("g6done")
                a.wlg0(); self.barrier()
                fr = self.f_read(); a.wlg(fr)
                for s in self.f_calc(): a.I(s)
            a.wvm(vid[(c, 7)])
            if c == 7: self.stamp("vlast")
            self.perm_group(blk)
            for rho in range(4):
                b = 16 + 4 * (rho % 2)
                for r in range(4):
                    a.I(f"v_and_b32_dpp v{b+r}, v{24+4*sig+r}, v8 quad_perm:[{v},{v},{v},{v}] {DPP}")
                a.I(f"v_mov_b32_dpp v8, v8 quad_perm:[3,0,1,2] {DPP}")
                a.I(f"{MF} {V(32)}, {V(b)}, {V(blk + 4*rho)}, {'0' if first else V(32)}")
                a.I(f"{MF} {V(36)}, {V(b)}, {V(blk + 4*(rho+4))}, {'0' if first else V(36)}")
                first = False
            if c == 0:
                for e in range(8): a.I(f"ds_write_b128 v9, {V(blk + 4*e)} offset:{V_OFF + e*1024}")
            if c == 1:
                for e in range(4): a.I(f"ds_write_b128 v9, {V(blk + 4*e)} offset:{V_OFF + (8+e)*1024}")
                for r in range(16): a.I(f"v_mov_b32 v{HF + r}, v{blk + 16 + r}")
        for j in range(4): self.trread(16 + 4 * j, Z_OFF + j * 1024)
        a.I(f"s_lshl_b32 s{sT0}, s{sW}, 9"); a.I(f"s_add_u32 s{sT0}, s{sT0}, {MISC}")
        a.I(f"v_lshl_add_u32 v9, v0, 5, s{sT0}")
        a.I(f"s_mov_b64 exec, {mLO16}")
        a.I(f"ds_write_b128 v9, {V(32)}"); a.I(f"ds_write_b128 v9, {V(36)} offset:16")
        a.I(f"s_mov_b64 exec, {mFULL}")
        self.tail()
        for ls, ins, ld in self.ool:
            a.L(ls); a.I(ins); a.I(f"s_branch {ld}")
        a.L("L_abort"); self.stamp_out(); a.L("L_exit"); a.I("s_endpgm")
        a.raw('.section .rodata,"a"'); a.raw(".p2align 6"); a.raw(f".amdhsa_kernel {KNAME}")
        for s in (".amdhsa_next_free_vgpr 512", ".amdhsa_next_free_sgpr 102", ".amdhsa_accum_offset 256", ".amdhsa_group_segment_fixed_size 0",
                  ".amdhsa_kernarg_size 104", ".amdhsa_user_sgpr_count 2", ".amdhsa_user_sgpr_kernarg_segment_ptr 1", ".amdhsa_system_sgpr_workgroup_id_x 1"):
            a.raw("  " + s)
        a.raw(".end_amdhsa_kernel")
        return a.text()

    def q_publish(self, pv):
        a = self.a
        self.pub_off(9, 10, 256)
        a.I(f"s_lshr_b32 s{sT0}, s{sI}, 3"); a.I(f"s_lshl_b32 s{sT0}, s{sT0}, 9")
        a.I(f"s_and_b32 s{sT1}, s{sI}, 7"); a.I(f"s_lshl_b32 s{sT1}, s{sT1}, 5")
        a.I(f"s_add_u32 s{sT0}, s{sT0}, s{sT1}"); a.I(f"s_add_u32 s{sT0}, s{sT0}, s{sREG}")
        a.I(f"s_mov_b64 exec, {mEVEN}")
        self.publish(f"buffer_store_dword v{pv}, v9, {S(rWS)}, s{sT0} offen")
        a.I(f"s_mov_b64 exec, {mFULL}")
    def q_gather_prep(self):
        a = self.a
        a.I("v_and_b32 v9, 15, v0"); a.I("v_lshrrev_b32 v10, 4, v0"); a.I("v_lshl_add_u32 v9, v9, 2, v10"); a.I("v_lshlrev_b32 v9, 4, v9")
        for r in range(4): a.I(f"v_mov_b32 v{self.QC + r}, 0")
        a.I(f"s_lshr_b32 s{sT2}, s{sI}, 2"); a.I(f"s_lshl_b32 s{sT2}, s{sT2}, 8"); a.I(f"s_add_u32 s{sT2}, s{sT2}, s{sREG}")

    def tail(self):
        a = self.a; o = self.o
        a.L("L_fin")
        a.C("attention finish")
        self.stamp("fin")
        a.I(f"v_lshlrev_b32 v8, 3, v0"); a.I(f"v_add_u32 v8, {MISC}, v8")
        a.I(f"s_lshl_b32 s{sT0}, s{sI}, 8"); a.I(f"s_add_u32 s{sT0}, s{sT0}, s{sREG}"); a.I(f"s_add_u32 s{sT0}, s{sT0}, {AP}")
        a.I(f"s_lshl_b32 s{sT1}, s{sI}, 3"); a.I(f"s_add_u32 s{sT1}, s{sT1}, s{sREG}"); a.I(f"s_add_u32 s{sT1}, s{sT1}, {ML}")
        a.I("v_lshlrev_b32 v7, 2, v0")
        a.wlg0(); self.barrier()
        a.I(f"s_cmp_lg_u32 s{sW}, 0"); a.I("s_cbranch_scc1 L_fin_done")
        a.cond += 1
        ids = [a.I(f"ds_read_b64 {V(40+2*w, 2)}, v8 offset:{w*512}") for w in range(4)]
        a.wlg(ids[0])
        a.I("v_mul_f32 v40, v12, v40"); a.I("v_mul_f32 v41, v12, v41")
        for w in range(1, 4):
            a.wlg(ids[w])
            a.I(f"v_fmac_f32 v40, v{12+w}, v{40+2*w}"); a.I(f"v_fmac_f32 v41, v{12+w}, v{41+2*w}")
        a.I("v_cvt_pk_bf16_f32 v9, v40, v41"); a.I("v_min_u32 v9, -2, v9")
        self.publish(f"buffer_store_dword v9, v7, {S(rWS)}, s{sT0} offen")
        a.I(f"s_mov_b64 exec, {mL0}")
        self.publish(f"buffer_store_dwordx2 v[10:11], v7, {S(rWS)}, s{sT1} offen")
        a.I(f"s_mov_b64 exec, {mFULL}")
        a.cond -= 1
        a.L("L_fin_done")
        self.stamp("finpub")
        a.C("stage O")
        a.I("v_and_b32 v5, 7, v0"); a.I("v_bfe_u32 v6, v0, 3, 1"); a.I("v_lshl_add_u32 v5, v5, 2, v6")
        a.I("v_lshrrev_b32 v6, 4, v0"); a.I("v_lshl_add_u32 v5, v5, 2, v6"); a.I("v_lshlrev_b32 v5, 4, v5")
        a.I("v_bfe_u32 v6, v0, 4, 1"); a.I("v_and_b32 v7, 3, v0"); a.I("v_lshl_add_u32 v6, v6, 2, v7"); a.I("v_lshlrev_b32 v6, 3, v6")
        a.I(f"s_lshl_b32 s{sT0}, s{sW}, 11"); a.I(f"s_add_u32 s{sT0}, s{sT0}, s{sREG}"); a.I(f"s_add_u32 s{sT0}, s{sT0}, {AP}")
        a.I(f"s_lshl_b32 s{sT1}, s{sW}, 6"); a.I(f"s_add_u32 s{sT1}, s{sT1}, s{sREG}"); a.I(f"s_add_u32 s{sT1}, s{sT1}, {ML}")
        a.I(f"s_lshl_b32 s{sT2}, s{sW}, 2"); a.I(f"s_add_u32 s{sT2}, s{sT2}, {MISC}")
        a.I(f"v_lshl_add_u32 v7, v0, 4, s{sT2}")
        self.barrier()
        self.poll([(None, f"buffer_load_dwordx2 v[44:45], v6, {S(rWS)}, s{sT1} offen sc1"),
                   (None, f"buffer_load_dwordx4 {V(32)}, v5, {S(rWS)}, s{sT0} offen sc1"),
                   (None, f"buffer_load_dwordx4 {V(36)}, v5, {S(rWS)}, s{sT0} offen offset:128 sc1")],
                  [44, 45] + list(range(32, 40)), 8)
        self.stamp("e1")
        a.I(f"{MF} {V(40)}, {V(32)}, {V(16)}, 0")
        a.I(f"v_max_f32_dpp v46, v44, v44 quad_perm:[1,0,3,2] {DPP}")
        a.I(f"{MF} {V(40)}, {V(36)}, {V(24)}, {V(40)}")
        for r in range(4): a.I(f"v_mov_b32_dpp v{32+r}, v{32+r} row_shl:8 {DPP}")
        a.I(f"v_max_f32_dpp v46, v46, v46 quad_perm:[2,3,0,1] {DPP}")
        a.I(f"v_mov_b32_dpp v36, v36 row_shl:8 {DPP}")
        a.I(f"{MF} {V(40)}, {V(32)}, {V(20)}, {V(40)}")
        for r in range(1, 4): a.I(f"v_mov_b32_dpp v{36+r}, v{36+r} row_shl:8 {DPP}")
        a.I("v_sub_f32 v44, v44, v46")
        a.I("v_exp_f32 v44, v44")
        a.I(f"{MF} {V(40)}, {V(36)}, {V(28)}, {V(40)}")
        a.I("v_mul_f32 v45, v44, v45")
        a.I(f"v_add_f32_dpp v45, v45, v45 quad_perm:[1,0,3,2] {DPP}")
        a.I(f"v_add_f32_dpp v45, v45, v45 quad_perm:[2,3,0,1] {DPP}")
        a.I("v_rcp_f32 v45, v45")
        a.I("v_mul_f32 v44, v44, v45")
        a.I(f"v_mul_f32_dpp v46, v44, v40 quad_perm:[0,0,0,0] {DPP}")
        for r in range(1, 4): a.I(f"v_fmac_f32_dpp v46, v44, v{40+r} quad_perm:[{r},{r},{r},{r}] {DPP}")
        a.I(f"s_mov_b64 exec, {mLO32}")
        a.I("ds_write_b32 v7, v46")
        a.I(f"s_mov_b64 exec, {mFULL}")
        a.I(f"v_lshlrev_b32 v7, 4, v0"); a.I(f"v_add_u32 v7, {MISC}, v7")
        a.I("v_lshlrev_b32 v5, 2, v0")
        a.I(f"s_lshl_b32 s{sT0}, s{sX}, 7"); a.I(f"s_add_u32 s{sT0}, s{sT0}, s{sYP}")
        a.wlg0(); self.barrier()
        a.I(f"s_cmp_lg_u32 s{sW}, 0"); a.I("s_cbranch_scc1 L_o_done")
        a.cond += 1
        a.I(f"ds_read_b128 {V(40)}, v7"); a.wlg0()
        a.I("v_pk_add_f32 v[40:41], v[40:41], v[42:43]"); a.I("v_add_f32 v40, v40, v41"); a.I("v_min_u32 v40, -2, v40")
        a.I(f"s_mov_b64 exec, {mLO32}")
        a.I(f"buffer_store_dword v40, v5, {S(rWS)}, s{sT0} offen sc1")
        a.I(f"s_mov_b64 exec, {mFULL}")
        a.cond -= 1
        a.L("L_o_done")
        self.stamp("opub")
        a.I(f"s_mul_i32 s{sT0}, s{sPASS}, s{sX}"); a.I(f"s_cmp_lg_u32 s{sT0}, 0"); a.I("s_cbranch_scc1 L_abort")
        a.I(f"s_cmp_lg_u32 s{sPASS}, 0"); a.I("s_cbranch_scc1 L_nowq")
        a.cond += 1
        self.dma_voff(7, 8, 8192)
        self.dma_z(7, rWQ, sQSO, 32 * 8192)
        a.cond -= 1
        a.L("L_nowq")
        a.C("stage R")
        a.I(f"s_cmp_lg_u32 s{sW}, 0"); a.I("s_cbranch_scc1 L_r_done")
        a.cond += 1
        self.pub_off(6, 7, 1024)
        a.I(f"s_lshl_b32 s{sT0}, s{sI}, 5"); a.I(f"s_add_u32 s{sT0}, s{sT0}, s{sREG}"); a.I(f"s_add_u32 s{sT0}, s{sT0}, {XSA}")
        for r in range(8): a.I(f"v_mov_b32 v{32+r}, 0")
        if o.get("d_cross", 6): a.I(f"s_sleep {o.get('d_cross', 6)}")
        self.poll([(mLO32, f"buffer_load_dword v{32+x}, v5, {S(rWS)}, s{sYP} offen offset:{x*128} sc1") for x in range(8)], range(32, 40), 8)
        self.stamp("e2a")
        a.I("v_pk_add_f32 v[32:33], v[32:33], v[34:35]"); a.I("v_pk_add_f32 v[36:37], v[36:37], v[38:39]")
        a.I("v_pk_add_f32 v[32:33], v[32:33], v[36:37]")
        a.I("v_add_f32 v32, v32, v33"); a.I(f"v_add_f32 v32, v32, v{vXR}")
        self.pack_pub(32, 33)
        a.I(f"s_mov_b64 exec, {mEVEN}")
        self.publish(f"buffer_store_dword v33, v6, {S(rWS)}, s{sT0} offen")
        a.I(f"s_mov_b64 exec, {mFULL}")
        a.I(f"v_cvt_pk_bf16_f32 v{vXR}, v32, v32"); a.I(f"v_and_b32 v{vXR}, 0xffff0000, v{vXR}")
        a.cond -= 1
        a.L("L_r_done")
        self.stamp("rpub")
        a.C("stage H")
        w1off = lambda t, j: W1_OFF + (t * 4 + j) * 1024
        self.ln_prep(3, w1off)
        self.pub_off(7, 6, 2752)
        a.I(f"s_lshl_b32 s{sT0}, s{sW}, 8"); a.I(f"s_add_u32 s{sT0}, s{sT0}, s{sREG}"); a.I(f"s_add_u32 s{sT0}, s{sT0}, {XSA}")
        self.barrier()
        self.poll([(mN8, f"buffer_load_dwordx4 {V(self.XA)}, v5, {S(rWS)}, s{sT0} offen sc1")], range(self.XA, self.XA + 4), 6)
        self.stamp("e2b")
        self.ln_mm(3, w1off)
        a.I(f"s_cmp_lt_u32 s{sI}, 22"); a.I(f"s_cselect_b32 s{sT0}, 3, 2"); a.I(f"s_cmp_ge_u32 s{sW}, s{sT0}"); a.I("s_cbranch_scc1 L_h_done")
        a.cond += 1
        a.I(f"s_lshl_b32 s{sT0}, s{sW}, 5"); a.I(f"s_add_u32 s{sT0}, s{sT0}, s{sTILE}"); a.I(f"s_add_u32 s{sT0}, s{sT0}, s{sREG}"); a.I(f"s_add_u32 s{sT0}, s{sT0}, {HS}")
        self.ln_finish(3)
        a.I(f"v_fma_f32 v32, v32, v40, v{vB1}")
        a.I(f"v_mov_b32 v34, s{sK1}")
        a.I("v_mul_f32 v33, v32, v32")
        a.I(f"v_fma_f32 v33, v33, s{sK2}, v34")
        a.I("v_mul_f32 v33, v33, v32")
        a.I("v_exp_f32 v33, v33")
        a.I("v_add_f32 v33, 1.0, v33")
        a.I("v_rcp_f32 v33, v33")
        a.I("v_mul_f32 v32, v32, v33")
        self.pack_pub(32, 33)
        a.I(f"s_mov_b64 exec, {mEVEN}")
        self.publish(f"buffer_store_dword v33, v7, {S(rWS)}, s{sT0} offen")
        a.I(f"s_mov_b64 exec, {mFULL}")
        a.cond -= 1
        a.L("L_h_done")
        self.stamp("hpub")
        a.C("stage X2")
        self.gath_off(5, 6, 2752)
        for r in range(4): a.I(f"v_mov_b32 v{12 + r}, 0")
        rd = {}
        for k in range(6): rd[k] = self.trread(24 + 4 * k, W2_OFF + k * 1024)
        a.I(f"s_mul_i32 s{sT0}, s{sW}, 704"); a.I(f"s_add_u32 s{sT0}, s{sT0}, s{sREG}"); a.I(f"s_add_u32 s{sT0}, s{sT0}, {HS}")
        self.barrier()
        self.poll([(None, f"buffer_load_dwordx4 {V(8)}, v5, {S(rWS)}, s{sT0} offen sc1"),
                   (mH2, f"buffer_load_dwordx4 {V(12)}, v5, {S(rWS)}, s{sT0} offen offset:512 sc1")], range(8, 16), 6)
        self.stamp("e3")
        cur, nxt = 8, 16
        for k in range(11):
            if k == 8: cur, nxt = 12, 16
            if k == 10:
                a.I(f"s_cmp_eq_u32 s{sW}, 3"); a.I("s_cbranch_scc1 L_x2skip"); a.cond += 1
            a.wlg(rd[k])
            b = 24 + 4 * (k % 6)
            a.I(f"{MF} {V(20)}, {V(cur)}, {V(b)}, {'0' if k == 0 else V(20)}")
            if k == 10:
                a.cond -= 1; a.L("L_x2skip")
            if k + 6 < 11: rd[k + 6] = self.trread(b, W2_OFF + (k + 6) * 1024)
            if k not in (7, 10):
                for r in range(4): a.I(f"v_mov_b32_dpp v{nxt + r}, v{cur + r} row_shl:2 {DPP}")
                cur, nxt = nxt, cur
        a.I(f"s_lshl_b32 s{sT0}, s{sW}, 2"); a.I(f"s_add_u32 s{sT0}, s{sT0}, {MISC}")
        a.I(f"v_lshl_add_u32 v5, v0, 4, s{sT0}")
        a.I(f"v_lshlrev_b32 v7, 4, v0"); a.I(f"v_add_u32 v7, {MISC}, v7")
        self.pub_off(6, 8, 1024)
        a.I(f"v_add_f32 v9, v{vXR}, v{vB2}")
        a.I(f"s_lshl_b32 s{sT1}, s{sI}, 5"); a.I(f"s_add_u32 s{sT0}, s{sT1}, s{sREG}"); a.I(f"s_add_u32 s{sT0}, s{sT0}, {XSB}")
        a.I(f"s_mov_b64 exec, {mLO16}")
        a.I("ds_write2st64_b32 v5, v20, v21 offset0:0 offset1:1")
        a.I(f"s_mov_b64 exec, {mFULL}")
        a.wlg0(); self.barrier()
        a.I(f"s_cmp_lg_u32 s{sW}, 0"); a.I("s_cbranch_scc1 L_x2_done")
        a.cond += 1
        a.I(f"ds_read_b128 {V(32)}, v7"); a.wlg0()
        a.I("v_pk_add_f32 v[32:33], v[32:33], v[34:35]"); a.I("v_add_f32 v32, v32, v33"); a.I("v_add_f32 v32, v32, v9")
        self.pack_pub(32, 33)
        a.I(f"s_mov_b64 exec, {mEVEN}")
        a.I(f"s_cmp_lg_u32 s{sPASS}, 0"); a.I("s_cbranch_scc1 L_final")
        self.publish(f"buffer_store_dword v33, v6, {S(rWS)}, s{sT0} offen")
        a.I(f"s_mov_b64 exec, {mFULL}")
        a.I(f"v_cvt_pk_bf16_f32 v{vXR}, v32, v32"); a.I(f"v_and_b32 v{vXR}, 0xffff0000, v{vXR}")
        a.cond -= 1
        a.L("L_x2_done")
        self.stamp("xpub")
        a.I(f"s_cmp_lg_u32 s{sPASS}, 0"); a.I("s_cbranch_scc1 L_abort")
        a.C("stage Q2")
        zoff = lambda t, j: Z_OFF + j * 1024
        a.wvm0()
        self.ln_prep(1, zoff)
        a.I(f"s_lshl_b32 s{sT0}, s{sW}, 8"); a.I(f"s_add_u32 s{sT0}, s{sT0}, s{sREG}"); a.I(f"s_add_u32 s{sT0}, s{sT0}, {XSB}")
        self.barrier()
        self.poll([(mN8, f"buffer_load_dwordx4 {V(self.XA)}, v5, {S(rWS)}, s{sT0} offen sc1")], range(self.XA, self.XA + 4), 6)
        self.stamp("e4")
        a.I(f"s_mov_b32 s{sPASS}, 1"); a.I(f"s_add_u32 s{sREG}, s{sREG}, {REGION}"); a.I(f"s_add_u32 s{sYP}, s{sYP}, 32768")
        self.ln_mm(1, zoff)
        a.I(f"s_cmp_lg_u32 s{sW}, 0"); a.I("s_cbranch_scc1 L_q2_done")
        a.cond += 1
        self.ln_finish(1)
        a.I("v_mul_f32 v32, v32, v40")
        self.pack_pub(32, 47)
        self.q_publish(47)
        a.cond -= 1
        a.L("L_q2_done")
        self.stamp("qpub")
        a.C("attention 2")
        self.q_gather_prep()
        self.dma_voff(7, 10, 1024)
        a.I(f"s_lshr_b32 s{sT2}, s{sI}, 2"); a.I(f"s_lshl_b32 s{sT2}, s{sT2}, 8"); a.I(f"s_add_u32 s89, s{sT2}, s{sREG}")
        self.barrier()
        self.poll([(mN4, f"buffer_load_dwordx4 {V(self.QC)}, v9, {S(rWS)}, s89 offen sc1")], range(self.QC, self.QC + 4), 10)
        self.stamp("e5")
        zl = [0]
        def fillz():
            if zl[0] == 0: self.dma_z(7, rWO, sWOO, 32 * 1024)
            zl[0] += 1
        self.qk(fill=fillz, order=(3, 2, 0, 1))
        self.stamp("qk2")
        a.I(f"v_lshl_add_u32 v9, v0, 4, s{sWB}")
        lv = [a.I(f"ds_read_b128 {Ar(176 + 4*e)}, v9 offset:{V_OFF + e*1024}") for e in range(12)]
        self.sm_max()
        for s in self.sm_exp(0): a.I(s)
        fl = self.sm_exp(1) + self.sm_sum()
        post = []
        def opnd(c, e):
            if c == 0: return Ar(176 + 4 * e)
            if c == 1: return Ar(176 + 32 + 4 * e) if e < 4 else V(HF + 4 * (e - 4))
            return V(BLK[c if c < 6 else c - 6] + 4 * e)
        order = [2, 3, 4, 5, 6, 7, 0, 1]
        def build(c, b):
            sig, v = c >> 2, c & 3
            if v == 0: return 24 + 4 * sig
            for r in range(4): a.I(f"v_mov_b32_dpp v{b+r}, v{24+4*sig+r} row_shl:{v} {DPP}")
            return b
        self.stamp("sm2")
        A = build(order[0], 16)
        for gi, c in enumerate(order):
            An = None
            for e in range(8):
                if c == 0 and e == 0: a.wlg(lv[-1])
                a.I(f"{MF} {Ar(224 + 4*e)}, {V(A)}, {opnd(c, e)}, {'0' if gi == 0 else Ar(224 + 4*e)}")
                if gi <= 1:
                    for _ in range(2):
                        if fl: a.I(fl.pop(0))
                if e == 5 and gi + 1 < 8:
                    if gi == 1:
                        while fl: a.I(fl.pop(0))
                    An = build(order[gi + 1], 16 + 4 * ((gi + 1) % 2))
                if gi == 2 and e == 0:
                    self.xlane(11, 12, "v_add_f32"); self.ml_write()
                if gi == 3 and e == 0:
                    a.wlg0(); self.barrier(); fr = self.f_read()
                if gi == 4 and e == 0:
                    a.wlg(fr); post = self.f_calc()
                if gi >= 4 and post:
                    for _ in range(2):
                        if post: a.I(post.pop(0))
            A = An
        a.wvm0()
        for j in range(4): self.trread(16 + 4 * j, Z_OFF + j * 1024)
        a.I(f"s_lshl_b32 s{sT0}, s{sW}, 9"); a.I(f"s_add_u32 s{sT0}, s{sT0}, {MISC}")
        a.I(f"v_lshl_add_u32 v9, v0, 5, s{sT0}")
        a.I(f"s_mov_b64 exec, {mLO16}")
        for e in range(0, 8, 2):
            a.I(f"ds_write2_b32 v9, a{224 + 4*e}, a{228 + 4*e} offset0:{e} offset1:{e+1}")
        a.I(f"s_mov_b64 exec, {mFULL}")
        a.I("s_branch L_fin")
        a.L("L_final")
        a.I(f"buffer_store_dword v33, v6, {S(rOUT)}, s{sT1} offen")
        if o.get("stamps"):
            a.wvm0(); self.stamp("end")
            if o.get("spin"):
                a.L("L_spin"); a.I("s_memrealtime s[64:65]"); a.I("s_waitcnt lgkmcnt(0)"); a.I("s_sub_u32 s64, s64, s90")
                a.I(f"s_cmp_lt_u32 s64, {o['spin']}"); a.I("s_cbranch_scc1 L_spin")
            a.I("s_branch L_abort")
        a.I("s_endpgm")

if __name__ == "__main__":
    opt = {}
    out = sys.argv[1] if len(sys.argv) > 1 else "interleave_layers__gqa_block_cached__dense_activation_gelu__decode.s"
    for kv in sys.argv[2:]:
        k, v = kv.split("="); opt[k] = v.split(",") if k == "stamps" else int(v)
    g = Gen(opt)
    t = g.build()
    open(out, "w").write(t)
    print("lines", t.count("\n"), "auto nops", g.a.nops)
```

```python
import sys, math, struct
from asmlib import Asm
KNAME = "interleave_layers__gqa_block_cached__dense_activation_gelu__decode_kernel"
HEADER = open("interleave_layers__gqa_block_cached__dense_activation_gelu__decode.s.ref").read().split("; Override launch")[0]

MISC = 0; ML_LDS = 2048; W2_LDS = 4096; WBASE0 = 12288; WAREA = 36864
WQ_OFF = 0; WO_OFF = 4096; W1_OFF = 8192; V_OFF = 12288
REGION = 24576; QS = 0; AP = 2048; ML = 10240; XSA = 10496; XSB = 12544; HS = 14592
YP = 393216; YP2 = 458752; WS_BYTES = 524288
sW, sX, sI, sREG, sYP, sMODE, sPASS, sCNT, sWB = 3, 4, 5, 6, 7, 9, 10, 11, 12
sT0, sT1, sT2, sPLO, sPHI, sJ, sROT = 13, 14, 15, 16, 17, 18, 19
mFULL, mLO32, mEVEN, mN8, mN4, mG02, mL0, mH, mLO16 = "s[20:21]", "s[22:23]", "s[24:25]", "s[26:27]", "s[28:29]", "s[30:31]", "s[32:33]", "s[34:35]", "s[76:77]"
rK, rV, rWQ, rWO, rW1, rW2, rWS, rT, rDBG, rOUT = 36, 40, 44, 48, 52, 56, 60, 64, 68, 72
sC, sXCC, sHCU, sJ2 = 78, 79, 80, 81
sK1, sK2, sINV, sEPS = 82, 83, 84, 85
sP0, sP1, sP2, sP3 = 86, 87, 88, 89
def S(r): return f"s[{r}:{r+3}]"
def V(r, n=4): return f"v[{r}:{r+n-1}]"
def Ar(r, n=4): return f"a[{r}:{r+n-1}]"
DPP = "row_mask:0xf bank_mask:0xf"
MF = "v_mfma_f32_16x16x32_bf16"
vTR, vB1, vB2, vXR, vXG, vPX, vPQ, vPH, vAPG, vMLG, vQG, vHG, vL4, vR2, vL8, vL16, vRW, vAW, vCS, vSQ, vSM, vLV, vVO = range(1, 24)
vMK = 24
QC = 28; RB = (32, 36); SC = 40; vM, vL = 56, 57; P = 58; F = 66; FL = 70; WOP = 76
BLK = [96 + 32 * k for k in range(5)]
HCU0 = 16
f2u = lambda x: "0x%08x" % struct.unpack("<I", struct.pack("<f", x))[0]
def gblk(c): return BLK[c if c < 5 else c - 5]

class Gen:
    def __init__(self, opt):
        self.a = Asm(); self.o = opt; self.lab = 0; self.ool = []
    def nl(self, p):
        self.lab += 1; return f"L_{p}_{self.lab}"
    def stamp(self, name):
        st = self.o.get("stamps", [])
        a = self.a
        hits = [k for k, x in enumerate(st) if x.split("@")[0] == name]
        if not hits: return
        a.I("s_memrealtime s[64:65]"); a.I("s_waitcnt lgkmcnt(0)")
        for k in hits:
            if "@" in st[k]:
                a.I(f"s_cmp_eq_u32 s{sPASS}, {st[k].split('@')[1]}"); a.I(f"s_cselect_b32 s{90+k}, s64, s{90+k}")
            else:
                a.I(f"s_mov_b32 s{90+k}, s64")
    def stamp_out(self):
        if not self.o.get("stamps"): return
        a = self.a
        a.I("s_mov_b64 exec, 1")
        a.I(f"s_lshl_b32 s64, s2, 2"); a.I(f"s_add_u32 s64, s64, s{sW}"); a.I("s_lshl_b32 s64, s64, 6"); a.I("s_add_u32 s64, s64, 0x80000")
        a.I("v_mov_b32 v44, 0")
        for k in range(12): a.I(f"v_mov_b32 v{28+k}, s{90+k}")
        for k in range(3): a.I(f"buffer_store_dwordx4 {V(28+4*k)}, v44, {S(rWS)}, s64 offen offset:{16*k}")
        if self.o.get("dbgst"):
            a.I(f"s_lshl_b32 s64, s2, 2"); a.I(f"s_add_u32 s64, s64, s{sW}"); a.I("s_cmp_lg_u32 s64, 0"); a.I("s_cbranch_scc1 L_exit")
            a.I("s_nop 1")
            for k in range(1, 12): a.I(f"v_subrev_u32 v{28+k}, s90, v{28+k}")
            for k in range(3): a.I(f"buffer_store_dwordx4 {V(28+4*k)}, v44, {S(rDBG)}, 0 offen offset:{16*k}")

    def publish(self, instr):
        a = self.a
        ls, ld = self.nl("slow"), self.nl("pubd")
        a.I(f"s_cmp_lg_u32 s{sMODE}, 0"); a.I(f"s_cbranch_scc1 {ls}")
        a.cond += 1; a.I(instr); a.cond -= 1
        a.L(ld)
        self.ool.append((ls, instr + " sc1", ld))
    def barrier(self): self.a.I("s_barrier")
    def only_w0(self, lab):
        a = self.a
        a.I(f"s_cmp_lg_u32 s{sW}, 0"); a.I(f"s_cbranch_scc1 {lab}"); a.cond += 1
    def end_cond(self, lab):
        self.a.cond -= 1; self.a.L(lab)
    def poll(self, loads, regs, vt):
        a = self.a
        l = self.nl("poll"); a.L(l)
        cur = None
        for m, ins in loads:
            if m != cur: a.I(f"s_mov_b64 exec, {m or mFULL}"); cur = m
            a.I(ins)
        if cur is not None: a.I(f"s_mov_b64 exec, {mFULL}")
        a.I(f"s_sub_u32 s{sCNT}, s{sCNT}, 1"); a.I("s_cbranch_scc1 L_abort")
        a.wvm0()
        self.check(regs, vt)
        a.I(f"s_cbranch_vccnz {l}")
    def check(self, regs, vt):
        a = self.a; r = list(regs)
        if len(r) % 2 == 1: a.I(f"v_max3_u32 v{vt}, v{r[0]}, v{r[1]}, v{r[2]}"); r = r[3:]
        else: a.I(f"v_max_u32 v{vt}, v{r[0]}, v{r[1]}"); r = r[2:]
        for k in range(0, len(r), 2): a.I(f"v_max3_u32 v{vt}, v{r[k]}, v{r[k+1]}, v{vt}")
        a.I(f"v_cmp_eq_u32 vcc, -1, v{vt}")
    def sleep(self, key, dflt):
        n = self.o.get(key, dflt)
        if n: self.a.I(f"s_sleep {n}")
    def trread(self, dst, addr, off):
        a = self.a
        a.I(f"ds_read_b64_tr_b16 {V(dst,2)}, v{addr} offset:{off}")
        return a.I(f"ds_read_b64_tr_b16 {V(dst+2,2)}, v{addr} offset:{off+512}")
    def pack_pub(self, val, tmp):
        a = self.a
        a.I(f"v_mov_b32_dpp v{tmp}, v{val} quad_perm:[1,1,3,3] {DPP}")
        a.I(f"v_cvt_pk_bf16_f32 v{tmp}, v{val}, v{tmp}")
        a.I(f"v_min_u32 v{tmp}, -2, v{tmp}")
    def mad(self, dst, x, c, y):
        a = self.a
        a.I(f"s_movk_i32 s{sT2}, {c}"); a.I(f"v_mad_u32_u24 v{dst}, v{x}, s{sT2}, v{y}")

    XA, XT, GA, TA, WB = 28, 32, 36, 40, 44
    def ln_prep(self, off, preset=True):
        a = self.a
        if preset:
            for r in range(8): a.I(f"v_mov_b32 v{self.XA + r}, 0x3f803f80")
        self.rd = [self.trread(self.WB + 4 * j, vTR, off + j * 1024) for j in range(4)]
    def ln_mm(self):
        a = self.a
        cur, nxt = self.XA, self.XT
        for j in range(4):
            c = "0" if j == 0 else None
            if j == 0: a.wlg(self.rd[3])
            a.I(f"{MF} {V(self.TA)}, {V(cur)}, {V(self.WB + 4*j)}, {c or V(self.TA)}")
            if j < 3:
                for r in range(2): a.I(f"v_mov_b32_dpp v{nxt + r}, v{cur + r} row_shl:2 {DPP}")
            a.I(f"{MF} {V(self.GA)}, {V(cur)}, {V(cur)}, {c or V(self.GA)}")
            if j < 3:
                for r in range(2, 4): a.I(f"v_mov_b32_dpp v{nxt + r}, v{cur + r} row_shl:2 {DPP}")
            cur, nxt = nxt, cur
        a.I(f"s_mov_b64 exec, {mG02}")
        a.I(f"ds_write2st64_b32 v{vRW}, v{self.TA}, v{self.TA+1} offset0:0 offset1:1")
        a.I(f"ds_write2st64_b32 v{vRW}, v{self.GA}, v{self.GA+1} offset0:4 offset1:5")
        a.I(f"s_mov_b64 exec, {mFULL}")
        a.wlg0(); self.barrier()
    def ln_finish(self):
        a = self.a
        i_sq = a.I(f"ds_read_b128 {V(68)}, v{vSQ} offset:1024")
        i_sm = a.I(f"ds_read_b128 {V(72)}, v{vSM} offset:{1024+512}")
        i_raw = a.I(f"ds_read_b128 {V(60)}, v{vL16}")
        i_cs = a.I(f"ds_read_b128 {V(64)}, v{vCS} offset:512")
        a.I(f"v_mov_b32 v44, s{sEPS}")
        a.wlg(i_sm)
        a.I("v_pk_add_f32 v[68:69], v[68:69], v[70:71]")
        a.I("v_pk_add_f32 v[72:73], v[72:73], v[74:75]")
        a.I("v_add_f32 v68, v68, v69")
        a.I("v_add_f32 v72, v72, v73")
        a.I(f"v_mul_f32 v72, s{sINV}, v72")
        a.I(f"v_fma_f32 v68, v68, s{sINV}, v44")
        a.I("v_fma_f32 v68, -v72, v72, v68")
        a.I(f"v_max_f32 v68, s{sEPS}, v68")
        a.I("v_rsq_f32 v68, v68")
        a.wlg(i_cs)
        a.I("v_pk_add_f32 v[60:61], v[60:61], v[62:63]")
        a.I("v_pk_add_f32 v[64:65], v[64:65], v[66:67]")
        a.I("v_add_f32 v60, v60, v61")
        a.I("v_add_f32 v64, v64, v65")
        a.I("v_fma_f32 v60, -v72, v64, v60")

    def qk(self, fill=None, order=(0, 1, 2, 3)):
        a = self.a
        steps = [(v, j) for v in order for j in range(4)]
        def bld(n, r):
            v, j = steps[n]
            a.I(f"v_and_b32_dpp v{RB[n%2]+r}, v{QC+r}, v{vMK+v} quad_perm:[{j},{j},{j},{j}] {DPP}")
        for r in range(4): bld(0, r)
        for n, (v, j) in enumerate(steps):
            for u in range(4):
                t = 4 * v + u
                c = "0" if n == 0 else V(SC + 4 * u)
                a.I(f"{MF} {V(SC+4*u)}, {Ar(16*t + 4*j)}, {V(RB[n%2])}, {c}")
                if n + 1 < 16:
                    if u == 0: bld(n + 1, 0); bld(n + 1, 1)
                    if u == 1: bld(n + 1, 2); bld(n + 1, 3)
            if fill: fill()
    def xlane(self, r, t, op):
        L = []
        L.append(f"{op}_dpp v{r}, v{r}, v{r} quad_perm:[1,0,3,2] {DPP}")
        L.append(f"{op}_dpp v{r}, v{r}, v{r} quad_perm:[2,3,0,1] {DPP}")
        L.append(f"v_mov_b32 v{t}, v{r}")
        L.append(f"v_permlane32_swap_b32 v{t}, v{r}")
        L.append(f"{op} v{r}, v{r}, v{t}")
        L.append(f"v_mov_b32 v{t}, v{r}")
        L.append(f"v_permlane16_swap_b32 v{t}, v{r}")
        L.append(f"{op} v{r}, v{r}, v{t}")
        return L
    def sm_max(self):
        a = self.a; s = SC
        a.I(f"v_max3_f32 v{vM}, v{s}, v{s+1}, v{s+2}")
        a.I(f"v_max3_f32 v{vL}, v{s+3}, v{s+4}, v{s+5}")
        for k in range(s + 6, s + 14, 4):
            a.I(f"v_max3_f32 v{vM}, v{k}, v{k+1}, v{vM}")
            a.I(f"v_max3_f32 v{vL}, v{k+2}, v{k+3}, v{vL}")
        a.I(f"v_max3_f32 v{vM}, v{s+14}, v{s+15}, v{vM}")
        a.I(f"v_max_f32 v{vM}, v{vM}, v{vL}")
        for x in self.xlane(vM, vL, "v_max_f32"): a.I(x)
        a.I(f"v_mul_f32 v{vM}, s{sC}, v{vM}")
    def sm_exp(self, sig):
        L = []; b = SC + 8 * sig
        for k in range(8): L.append(f"v_fma_f32 v{b+k}, v{b+k}, s{sC}, -v{vM}")
        for k in range(8): L.append(f"v_exp_f32 v{b+k}, v{b+k}")
        for k in range(4): L.append(f"v_cvt_pk_bf16_f32 v{P+4*sig+k}, v{b+2*k}, v{b+2*k+1}")
        return L
    def sm_sum(self):
        s = SC; pk = lambda x, y: f"v_pk_add_f32 v[{x}:{x+1}], v[{x}:{x+1}], v[{y}:{y+1}]"
        L = [pk(s, s+2), pk(s+4, s+6), pk(s+8, s+10), pk(s+12, s+14), pk(s, s+4), pk(s+8, s+12), pk(s, s+8), f"v_add_f32 v{vL}, v{s}, v{s+1}"]
        return L + self.xlane(vL, F, "v_add_f32")
    def ml_write(self):
        a = self.a
        a.I(f"s_mov_b64 exec, {mL0}")
        a.I(f"ds_write2_b32 v{vRW}, v{vM}, v{vL} offset0:{ML_LDS//4 - 384} offset1:{ML_LDS//4 - 384 + 4}") if False else None
        a.I(f"ds_write_b32 v{vRW}, v{vM} offset:{ML_LDS}")
        a.I(f"ds_write_b32 v{vRW}, v{vL} offset:{ML_LDS + 16}")
        a.I(f"s_mov_b64 exec, {mFULL}")
    def f_read(self):
        a = self.a
        a.I(f"v_mov_b32 v74, 0")
        a.I(f"ds_read_b128 {V(F)}, v74 offset:{ML_LDS}")
        return a.I(f"ds_read_b128 {V(FL)}, v74 offset:{ML_LDS + 16}")
    def f_calc(self):
        L = [f"v_max3_f32 v{vM}, v{F}, v{F+1}, v{F+2}", f"v_max_f32 v{vM}, v{vM}, v{F+3}"]
        for k in range(4): L.append(f"v_sub_f32 v{F+k}, v{F+k}, v{vM}")
        for k in range(4): L.append(f"v_exp_f32 v{F+k}, v{F+k}")
        L.append(f"v_mul_f32 v{vL}, v{F}, v{FL}")
        for k in range(1, 4): L.append(f"v_fmac_f32 v{vL}, v{F+k}, v{FL+k}")
        L.append(f"v_min_u32 v{vM}, -2, v{vM}"); L.append(f"v_min_u32 v{vL}, -2, v{vL}")
        return L
    def perm_group(self, blk, t1=74, t2=75):
        a = self.a
        R = lambda s, d: blk + 4 * s + d
        lo = lambda dst, x, y: a.I(f"v_perm_b32 v{dst}, v{y}, v{x}, s{sPLO}")
        hi = lambda dst, x, y: a.I(f"v_perm_b32 v{dst}, v{y}, v{x}, s{sPHI}")
        for p in range(4):
            x, y = R(2*p, p), R(2*p+1, p)
            lo(t1, x, y); hi(y, x, y); a.I(f"v_mov_b32 v{x}, v{t1}")
        for p in range(4):
            for d in range(p + 1, 4):
                ax, ay = R(2*p, d), R(2*p+1, d); bx, by = R(2*d, p), R(2*d+1, p)
                lo(t1, ax, ay); hi(t2, ax, ay); lo(ax, bx, by); hi(ay, bx, by)
                a.I(f"v_mov_b32 v{bx}, v{t1}"); a.I(f"v_mov_b32 v{by}, v{t2}")

    def build(self):
        a = self.a; o = self.o
        KV = "" if o.get("kvdef") else " nt"
        WP = " nt" if o.get("wpol") else ""
        a.raw(HEADER.rstrip())
        a.raw("; @launch grid=(256,1,1) block=(256,1,1) lds=163840")
        a.raw('.amdgcn_target "amdgcn-amd-amdhsa--gfx950"')
        a.raw(".text"); a.raw(f".globl {KNAME}"); a.raw(".p2align 8"); a.raw(f".type {KNAME},@function"); a.raw(f"{KNAME}:")
        a.I("s_cmp_ge_u32 s2, 256"); a.I("s_cbranch_scc1 L_exit")
        if o.get("stamps"): a.I("s_memrealtime s[8:9]")
        a.I("s_load_dwordx16 s[76:91], s[0:1], 0")
        a.I("s_load_dwordx8 s[92:99], s[0:1], 64")
        a.I("s_load_dwordx2 s[100:101], s[0:1], 96")
        a.I("v_lshrrev_b32 v1, 6, v0")
        a.I(f"v_readfirstlane_b32 s{sW}, v1")
        a.I("v_and_b32 v0, 63, v0")
        a.I(f"s_and_b32 s{sX}, s2, 7"); a.I(f"s_lshr_b32 s{sI}, s2, 3")
        vg, vn = 28, 29
        KD = 84; KR = 88; WD = 92
        a.I(f"v_lshrrev_b32 v{vg}, 4, v0"); a.I(f"v_and_b32 v{vn}, 15, v0")
        a.I(f"v_lshlrev_b32 v{vVO}, 4, v0")
        a.I(f"v_lshlrev_b32 v30, 2, v{vg}"); a.I(f"v_xor_b32 v30, v30, v{vn}")
        for q in range(4):
            a.I(f"v_xor_b32 v31, {q}, v30"); a.I(f"v_lshlrev_b32 v31, 4, v31")
            a.I(f"v_lshl_add_u32 v31, v{vg}, 8, v31"); a.I(f"v_add_u32 v{KD+q}, {q*1024}, v31")
        a.I(f"s_bfe_u32 s{sT0}, s{sI}, 0x10002"); a.I(f"s_lshl_b32 s{sT0}, s{sT0}, 5")
        a.I(f"s_lshl_b32 s{sT1}, s{sX}, 2"); a.I(f"s_add_u32 s{sT0}, s{sT0}, s{sT1}")
        a.I(f"s_lshr_b32 s{sT1}, s{sI}, 3"); a.I(f"s_add_u32 s{sT0}, s{sT0}, s{sT1}")
        a.I(f"s_lshl_b32 s{sT0}, s{sT0}, 4")
        a.I(f"s_and_b32 s{sT1}, s{sI}, 3"); a.I(f"s_lshl_b32 s{sT1}, s{sT1}, 2"); a.I(f"s_add_u32 s{sT0}, s{sT0}, s{sT1}")
        a.I(f"s_add_u32 s{sT0}, s{sT0}, s{sW}"); a.I(f"s_lshl_b32 s{sT0}, s{sT0}, 16")
        a.I(f"s_lshl_b32 s{sROT}, s2, 2"); a.I(f"s_add_u32 s{sROT}, s{sROT}, s{sW}")
        a.I(f"s_mul_i32 s{sROT}, s{sROT}, 0x9E3779B1"); a.I(f"s_lshr_b32 s{sROT}, s{sROT}, 28"); a.I(f"s_lshl_b32 s{sROT}, s{sROT}, 12")
        a.I(f"s_mul_i32 s{sWB}, s{sW}, {WAREA}"); a.I(f"s_add_u32 s{sWB}, s{sWB}, {WBASE0}")
        a.I(f"s_mov_b32 s{rK+2}, 65536"); a.I(f"s_mov_b32 s{rK+3}, 0x20000")
        a.I("s_waitcnt lgkmcnt(0)")
        a.I(f"s_add_u32 s{rK}, s78, s{sT0}"); a.I(f"s_addc_u32 s{rK+1}, s79, 0")
        kid = {}
        def ktile(t):
            if t >= 6: a.I("s_waitcnt lgkmcnt(4)")
            a.I(f"s_add_u32 s{sT1}, s{sROT}, {t*4096}"); a.I(f"s_and_b32 s{sT1}, s{sT1}, 0xffff")
            for q in range(4):
                a.I(f"s_add_u32 m0, s{sWB}, {V_OFF + (t % 6) * 4096 + q * 1024}")
                kid[t] = a.I(f"buffer_load_dwordx4 v{KD+q}, {S(rK)}, s{sT1} offen{KV} lds")
        def kread(t):
            a.wvm(kid[t])
            for j in range(4): a.I(f"ds_read_b128 {Ar(16*t+4*j)}, v{KR+j} offset:{V_OFF + (t % 6) * 4096}")
        ktile(0)
        a.I(f"s_add_u32 s{rV}, s80, s{sT0}"); a.I(f"s_addc_u32 s{rV+1}, s81, 0")
        wsz = (1 << 20) if o.get("stamps") else WS_BYTES
        for r, sz in ((rV, 65536), (rWQ, 1 << 22), (rWO, 1 << 22), (rW1, 512 * 2752), (rW2, 1376 * 1024), (rWS, wsz), (rT, 2048), (rDBG, 256), (rOUT, 2048)):
            a.I(f"s_mov_b32 s{r+2}, {sz}"); a.I(f"s_mov_b32 s{r+3}, 0x20000")
        for r, p in ((rWS, 100), (rT, 76), (rWQ, 82), (rWO, 84), (rW1, 88), (rW2, 92), (rDBG, 98), (rOUT, 96)):
            a.I(f"s_mov_b64 s[{r}:{r+1}], s[{p}:{p+1}]")
        self.only_w0("L_noclear")
        for r in range(4): a.I(f"v_mov_b32 v{32+r}, -1")
        a.I(f"s_lshl_b32 s{sT1}, s2, 11")
        a.I(f"buffer_store_dwordx4 {V(32)}, v{vVO}, {S(rWS)}, s{sT1} offen sc1")
        clr = a.I(f"buffer_store_dwordx4 {V(32)}, v{vVO}, {S(rWS)}, s{sT1} offen offset:1024 sc1")
        self.end_cond("L_noclear")
        a.I("v_bfe_u32 v30, v0, 3, 2"); a.I("v_lshrrev_b32 v31, 5, v0"); a.I("v_lshl_add_u32 v30, v30, 1, v31")
        a.I("v_bfe_u32 v31, v0, 1, 2"); a.I("v_lshl_add_u32 v30, v30, 2, v31")
        a.I("v_and_b32 v31, 1, v0"); a.I("v_lshlrev_b32 v31, 4, v31")
        self.mad(WD, 30, 8192, 31); self.mad(WD + 1, 30, 1024, 31); self.mad(WD + 2, 30, 2752, 31)
        a.I(f"s_lshl_b32 s{sT0}, s{sW}, 20"); a.I(f"s_lshl_b32 s{sT1}, s{sX}, 10"); a.I(f"s_add_u32 s{sT0}, s{sT0}, s{sT1}")
        a.I(f"s_lshl_b32 s{sT1}, s{sI}, 5"); a.I(f"s_add_u32 s{sP0}, s{sT0}, s{sT1}")
        def wdma(voff, srd, sbase, goff, lds_expr):
            if goff: a.I(f"s_add_u32 s{sT0}, s{sbase}, {goff}"); sb = sT0
            else: sb = sbase
            a.I(lds_expr)
            return a.I(f"buffer_load_dwordx4 v{voff}, {S(srd)}, s{sb} offen{WP} lds")
        wq = lambda j: wdma(WD, rWQ, sP0, j * 32 * 8192, f"s_add_u32 m0, s{sWB}, {WQ_OFF + j*1024}")
        wqid = [wq(0)]
        a.I(f"v_bfe_u32 v30, v0, 4, 1")
        a.I(f"v_lshlrev_b32 v31, 1, v{vn}")
        self.mad(vPX, 30, 1024, 31); self.mad(vPQ, 30, 256, 31); self.mad(vPH, 30, 384, 31)
        a.I(f"v_add_u32 v{vR2}, v31, v30"); a.I(f"v_lshlrev_b32 v{vR2}, 2, v{vR2}")
        a.I(f"v_mul_u32_u24 v{vSQ}, 272, v30"); a.I(f"v_lshlrev_b32 v{vSM}, 4, v30"); a.I(f"v_lshlrev_b32 v{vCS}, 4, v{vn}")
        a.I(f"v_and_b32 v32, 3, v0"); a.I(f"v_lshl_add_u32 v32, v30, 2, v32"); a.I(f"v_lshlrev_b32 v{vMLG}, 3, v32")
        a.I("v_bfe_u32 v32, v0, 1, 3"); a.I(f"v_lshl_add_u32 v32, v32, 2, v{vg}"); a.I("v_lshlrev_b32 v32, 4, v32"); a.I("v_and_b32 v33, 1, v0")
        self.mad(vXG, 33, 1024, 32); self.mad(vHG, 33, 384, 32)
        for r in range(8): a.I(f"v_mov_b32 v{36 + r}, 0x3f803f80")
        a.I(f"v_cmp_gt_u32 {mN8}, 8, v{vn}"); a.I(f"v_cmp_gt_u32 {mN4}, 4, v{vn}")
        a.I(f"s_mov_b64 {mFULL}, -1")
        a.I(f"s_add_u32 s{sJ}, s{sI}, {o.get('rj', 8)}"); a.I(f"s_and_b32 s{sJ}, s{sJ}, 31")
        a.I(f"s_add_u32 s{sJ2}, s{sI}, {o.get('rj2', 16)}"); a.I(f"s_and_b32 s{sJ2}, s{sJ2}, 31")
        a.I(f"s_lshl_b32 s{sT0}, s{sW}, 8")
        a.I(f"s_mov_b64 exec, {mN8}")
        xid = a.I(f"buffer_load_dwordx4 {V(36)}, v{vXG}, {S(rT)}, s{sT0} offen")
        a.I(f"s_mov_b64 exec, {mFULL}")
        a.I(f"s_lshl_b32 s{sT0}, s{sJ}, 5")
        a.I(f"buffer_load_ushort v{vXR}, v{vPX}, {S(rT)}, s{sT0} offen")
        a.I(f"s_mov_b64 s[{rT}:{rT+1}], s[94:95]"); a.I(f"s_mov_b32 s{rT+2}, 1024")
        a.I(f"buffer_load_ushort v{vB2}, v31, {S(rT)}, s{sT0} offen")
        a.I(f"s_mul_i32 s{sP1}, s{sX}, 11"); a.I(f"s_max_u32 s{sT0}, s{sX}, 6"); a.I(f"s_sub_u32 s{sT0}, s{sT0}, 6"); a.I(f"s_sub_u32 s{sP1}, s{sP1}, s{sT0}")
        a.I(f"s_sub_u32 s{sP2}, s{sI}, {HCU0}")
        a.I(f"s_cmp_lt_u32 s{sX}, 6"); a.I(f"s_cselect_b32 s{sT0}, 11, 10")
        a.I(f"s_cselect_b32 s34, 0x0fff0fff, 0x03ff03ff") if False else None
        a.I("s_mov_b32 s35, 0x03ff03ff"); a.I("s_cselect_b32 s34, 0x0fff0fff, s35")
        a.I(f"s_cmp_lt_u32 s{sP2}, s{sT0}"); a.I(f"s_cselect_b32 s{sHCU}, 1, 0")
        a.I(f"s_add_u32 s{sP3}, s{sP1}, s{sP2}"); a.I(f"s_lshl_b32 s{sP3}, s{sP3}, 5")
        a.I(f"s_mov_b64 s[{rT}:{rT+1}], s[90:91]"); a.I(f"s_mov_b32 s{rT+2}, 2752")
        bid = a.I(f"buffer_load_ushort v{vB1}, v31, {S(rT)}, s{sP3} offen")
        ktile(1)
        wqid.append(wq(1))
        if o.get("stamps"):
            for k in range(12): a.I(f"s_mov_b32 s{90+k}, 0")
            for k, x in enumerate(o["stamps"]):
                if x == "start": a.I(f"s_mov_b32 s{90+k}, s8")
        a.I("v_and_b32 v32, 7, v0"); a.I("v_bfe_u32 v33, v0, 3, 1"); a.I("v_lshl_add_u32 v32, v32, 2, v33")
        a.I(f"v_lshl_add_u32 v32, v32, 2, v{vg}"); a.I(f"v_lshlrev_b32 v{vAPG}, 4, v32")
        a.I(f"v_lshl_add_u32 v32, v{vn}, 2, v{vg}"); a.I(f"v_lshlrev_b32 v{vQG}, 4, v32")
        a.I(f"v_lshlrev_b32 v{vL4}, 2, v0"); a.I(f"v_lshlrev_b32 v{vL8}, 3, v0"); a.I(f"v_lshlrev_b32 v{vL16}, 4, v0")
        a.I(f"s_lshl_b32 s{sT0}, s{sW}, 2"); a.I(f"v_lshl_add_u32 v{vRW}, v0, 4, s{sT0}")
        a.I(f"s_lshl_b32 s{sT0}, s{sW}, 9"); a.I(f"v_lshl_add_u32 v{vAW}, v0, 5, s{sT0}")
        a.I(f"v_lshl_add_u32 v{vTR}, v0, 3, s{sWB}"); a.I(f"v_lshl_add_u32 v{vLV}, v0, 4, s{sWB}")
        for v in range(4):
            a.I(f"v_cmp_eq_u32 vcc, {v}, v{vn}"); a.I(f"v_cndmask_b32 v{vMK+v}, 0, -1, vcc")
        a.I("v_and_b32 v32, 3, v0"); a.I("v_bfe_u32 v33, v0, 2, 2"); a.I("v_lshl_add_u32 v32, v32, 2, v33")
        a.I(f"v_lshlrev_b32 v32, 8, v32"); a.I(f"v_add_u32 v32, s{sWB}, v32")
        a.I(f"v_xor_b32 v33, v{vg}, v{vn}")
        for j in range(4):
            a.I(f"v_xor_b32 v34, {4*j}, v33"); a.I(f"v_lshl_add_u32 v{KR+j}, v34, 4, v32")
        a.I(f"s_getreg_b32 s{sXCC}, hwreg(HW_REG_XCC_ID, 0, 4)"); a.I(f"s_add_u32 s{sXCC}, s{sXCC}, 1")
        self.only_w0("L_noflag")
        a.wvm(clr)
        a.I(f"v_mov_b32 v32, s{sXCC}"); a.I("v_mov_b32 v33, s2")
        a.I("s_mov_b64 exec, 1")
        a.I(f"buffer_store_byte v32, v33, {S(rDBG)}, 0 offen sc1")
        a.I(f"s_mov_b64 exec, {mFULL}")
        self.end_cond("L_noflag")
        a.I(f"s_mov_b32 s{sC}, {f2u(math.log2(math.e) / math.sqrt(128.0))}")
        k1 = -2.0 * math.sqrt(2.0 / math.pi) * math.log2(math.e)
        a.I(f"s_mov_b32 s{sK1}, {f2u(k1)}"); a.I(f"s_mov_b32 s{sK2}, {f2u(k1 * 0.044715)}")
        a.I(f"s_mov_b32 s{sINV}, {f2u(1.0 / 512)}"); a.I(f"s_mov_b32 s{sEPS}, {f2u(1e-5)}")
        a.I(f"s_mov_b32 s{sPLO}, 0x05040100"); a.I(f"s_mov_b32 s{sPHI}, 0x07060302")
        a.I("s_mov_b32 s22, -1"); a.I("s_mov_b32 s23, 0"); a.I("s_mov_b32 s24, 0x55555555"); a.I("s_mov_b32 s25, 0")
        a.I("s_mov_b32 s30, 0xffff"); a.I("s_mov_b32 s31, 0xffff"); a.I("s_mov_b64 s[32:33], 1")
        a.I("s_mov_b32 s76, 0xffff"); a.I("s_mov_b32 s77, 0")
        a.I(f"s_mul_i32 s{sREG}, s{sX}, {2*REGION}")
        a.I(f"s_lshl_b32 s{sYP}, s{sJ}, 10"); a.I(f"s_add_u32 s{sYP}, s{sYP}, {YP}")
        a.I(f"s_mov_b32 s{sPASS}, 0"); a.I(f"s_mov_b32 s{sCNT}, {o.get('timeout', 400000)}"); a.I(f"s_mov_b32 s{sMODE}, 1")
        D = o.get("kd", 2)
        def kstep(t):
            ktile(t)
            if t - D >= 0: kread(t - D)
        if D == 1: kread(0)
        kstep(2); wqid.append(wq(2))
        kstep(3); wqid.append(wq(3))
        a.I(f"s_lshl_b32 s{sT0}, s{sX}, 19"); a.I(f"s_lshl_b32 s{sT1}, s{sW}, 17"); a.I(f"s_add_u32 s{sT0}, s{sT0}, s{sT1}")
        a.I(f"s_lshl_b32 s{sT1}, s{sJ}, 5"); a.I(f"s_add_u32 s{sP0}, s{sT0}, s{sT1}")
        wo = lambda j: wdma(WD + 1, rWO, sP0, j * 32 * 1024, f"s_add_u32 m0, s{sWB}, {WO_OFF + j*1024}")
        kstep(4); wo(0)
        kstep(5)
        a.C("Q1"); self.stamp("q1in")
        a.wvm([bid, xid] + wqid)
        a.I(f"v_lshlrev_b32 v{vXR}, 16, v{vXR}"); a.I(f"v_lshlrev_b32 v{vB1}, 16, v{vB1}"); a.I(f"v_lshlrev_b32 v{vB2}, 16, v{vB2}")
        for r in range(8): a.I(f"v_mov_b32 v{self.XA + r}, v{36 + r}")
        self.ln_prep(WQ_OFF, preset=False)
        self.ln_mm()
        self.only_w0("L_q1nf")
        self.ln_finish()
        a.I("v_mul_f32 v60, v60, v68")
        self.pack_pub(60, 83)
        self.end_cond("L_q1nf")
        self.stamp("q1done")
        kstep(6); wo(1)
        a.C("flags check")
        def flagchk():
            a.I("v_subrev_u32 v29, 0x01010101, v28"); a.I("v_not_b32 v30, v28"); a.I("v_and_b32 v29, v29, v30")
            a.I("v_and_b32 v29, 0x80808080, v29"); a.I("v_cmp_ne_u32 vcc, 0, v29")
        fins = f"buffer_load_dword v28, v{vL4}, {S(rDBG)}, 0 offen sc1"
        fid = a.I(fins)
        kstep(7)
        a.wvm(fid); flagchk()
        a.I("s_cbranch_vccz L_flagok")
        a.L("L_flagpoll"); a.cond += 1
        a.I(fins); a.I(f"s_sub_u32 s{sCNT}, s{sCNT}, 1"); a.I("s_cbranch_scc1 L_abort")
        a.wvm0(); flagchk(); a.I("s_cbranch_vccnz L_flagpoll")
        self.end_cond("L_flagok")
        self.stamp("flagok")
        a.I(f"s_and_b32 s{sT0}, s{sX}, 3"); a.I(f"s_lshl_b32 s{sT0}, s{sT0}, 3")
        a.I(f"v_lshrrev_b32 v28, s{sT0}, v28"); a.I("v_and_b32 v28, 0xff, v28")
        a.I(f"v_cmp_ne_u32 vcc, s{sXCC}, v28")
        a.I(f"s_cmp_lt_u32 s{sX}, 4"); a.I(f"s_mov_b32 s{sT0}, 0xaaaaaaaa"); a.I(f"s_cselect_b32 s{sT0}, 0x55555555, s{sT0}")
        a.I(f"s_or_b32 s{sT1}, vcc_lo, vcc_hi"); a.I(f"s_and_b32 s{sMODE}, s{sT1}, s{sT0}")
        if o.get("force_slow"): a.I(f"s_mov_b32 s{sMODE}, 1")
        self.only_w0("L_q1np")
        self.q_soff()
        self.q_publish(83)
        self.end_cond("L_q1np")
        kstep(8); wo(2)
        kstep(9); wo(3)
        a.I(f"s_lshl_b32 s{sT0}, s{sP1}, 14"); a.I(f"s_lshl_b32 s{sT1}, s{sW}, 16"); a.I(f"s_add_u32 s{sT0}, s{sT0}, s{sT1}")
        a.I(f"s_lshl_b32 s{sT1}, s{sJ2}, 5"); a.I(f"s_add_u32 s{sP0}, s{sT0}, s{sT1}")
        a.I(f"s_lshl_b32 s{sP1}, s{sW}, 11")
        w2 = lambda j: wdma(WD + 1, rW2, sP0, j * 32 * 1024, f"s_add_u32 m0, s{sP1}, {W2_LDS + j*1024}")
        kstep(10); w2(0)
        kstep(11); w2(1)
        a.I(f"s_mul_i32 s{sT0}, s{sW}, {128*2752}"); a.I(f"s_add_u32 s{sP0}, s{sT0}, s{sP3}")
        def w1(j):
            l = self.nl("now1")
            a.I(f"s_cmp_eq_u32 s{sHCU}, 0"); a.I(f"s_cbranch_scc1 {l}"); a.cond += 1
            wdma(WD + 2, rW1, sP0, j * 32 * 2752, f"s_add_u32 m0, s{sWB}, {W1_OFF + j*1024}")
            self.end_cond(l)
        for t in range(12, 16): kstep(t); w1(t - 12)
        vid = {}
        def vload(c, e):
            sig, v = c >> 2, c & 3
            t = 4 * v + 2 * sig + (e >> 2)
            if e % 4 == 0:
                a.I(f"s_add_u32 s{sT1}, s{sROT}, {t*4096}"); a.I(f"s_and_b32 s{sP2}, s{sT1}, 0xffff")
            vid[(c, e)] = a.I(f"buffer_load_dwordx4 {V(gblk(c) + 4*e)}, v{vVO}, {S(rV)}, s{sP2} offen offset:{(e&3)*1024}{KV}")
        a.C("q1 gather")
        for r in range(4): a.I(f"v_mov_b32 v{QC + r}, 0")
        a.I(f"s_lshr_b32 s{sP3}, s{sI}, 2"); a.I(f"s_lshl_b32 s{sP3}, s{sP3}, 8"); a.I(f"s_add_u32 s{sP3}, s{sP3}, s{sREG}")
        qins = f"buffer_load_dwordx4 {V(QC)}, v{vQG}, {S(rWS)}, s{sP3} offen sc1"
        a.I(f"s_mov_b64 exec, {mN4}"); qid = a.I(qins); a.I(f"s_mov_b64 exec, {mFULL}")
        for e in range(4): vload(0, e)
        for t in range(16 - D, 16): kread(t)
        for e in range(4, 8): vload(0, e)
        for j in range(4): self.trread(WOP + 4 * j, vTR, WO_OFF + j * 1024)
        a.wvm(qid)
        self.check(range(QC, QC + 4), 32)
        a.I("s_cbranch_vccz L_q1ok"); a.cond += 1
        self.poll([(mN4, qins)], range(QC, QC + 4), 32)
        self.end_cond("L_q1ok")
        self.stamp("q1ok")
        a.wlg0()
        fl = [lambda e=e: vload(1, e) for e in range(8)]
        cnt = [0]
        def fill():
            cnt[0] += 1
            if fl and cnt[0] % 2 == 0: fl.pop(0)()
        self.qk(fill=fill)
        while fl: fl.pop(0)()
        self.sm_max()
        for s in self.sm_exp(0) + self.sm_exp(1) + self.sm_sum(): a.I(s)
        self.ml_write()
        self.stamp("sm1")
        first = True
        for c in range(8):
            sig, v = c >> 2, c & 3
            if c + 2 < 8:
                if c + 2 >= 5: a.wlg0()
                for e in range(8): vload(c + 2, e)
            blk = gblk(c)
            if c == 7:
                self.stamp("g6done")
                a.wlg0(); self.barrier()
                fr = self.f_read(); a.wlg(fr)
                for s in self.f_calc(): a.I(s)
            a.wvm(vid[(c, 7)])
            if c == 7: self.stamp("vlast")
            self.perm_group(blk)
            for rho in range(4):
                b = RB[rho % 2]
                for r in range(4):
                    a.I(f"v_and_b32_dpp v{b+r}, v{P+4*sig+r}, v{vMK+rho} quad_perm:[{v},{v},{v},{v}] {DPP}")
                a.I(f"{MF} {V(SC)}, {V(b)}, {V(blk + 4*rho)}, {'0' if first else V(SC)}")
                a.I(f"{MF} {V(SC+4)}, {V(b)}, {V(blk + 4*(rho+4))}, {'0' if first else V(SC+4)}")
                first = False
            if c < 3:
                for e in range(8): a.I(f"ds_write_b128 v{vLV}, {V(blk + 4*e)} offset:{V_OFF + (8*c+e)*1024}")
        a.I(f"s_mov_b64 exec, {mLO16}")
        a.I(f"ds_write_b128 v{vAW}, {V(SC)}"); a.I(f"ds_write_b128 v{vAW}, {V(SC+4)} offset:16")
        a.I(f"s_mov_b64 exec, {mFULL}")
        self.tail()
        for ls, ins, ld in self.ool:
            a.L(ls); a.I(ins); a.I(f"s_branch {ld}")
        a.L("L_abort"); self.stamp_out(); a.L("L_exit"); a.I("s_endpgm")
        a.raw('.section .rodata,"a"'); a.raw(".p2align 6"); a.raw(f".amdhsa_kernel {KNAME}")
        for s in (".amdhsa_next_free_vgpr 512", ".amdhsa_next_free_sgpr 102", ".amdhsa_accum_offset 256", ".amdhsa_group_segment_fixed_size 0",
                  ".amdhsa_kernarg_size 104", ".amdhsa_user_sgpr_count 2", ".amdhsa_user_sgpr_kernarg_segment_ptr 1", ".amdhsa_system_sgpr_workgroup_id_x 1"):
            a.raw("  " + s)
        a.raw(".end_amdhsa_kernel")
        return a.text()

    def q_soff(self):
        a = self.a
        a.I(f"s_lshr_b32 s{sT0}, s{sI}, 3"); a.I(f"s_lshl_b32 s{sT0}, s{sT0}, 9")
        a.I(f"s_and_b32 s{sT1}, s{sI}, 7"); a.I(f"s_lshl_b32 s{sT1}, s{sT1}, 5")
        a.I(f"s_add_u32 s{sT0}, s{sT0}, s{sT1}"); a.I(f"s_add_u32 s{sT0}, s{sT0}, s{sREG}")
    def q_publish(self, pv):
        a = self.a
        a.I(f"s_mov_b64 exec, {mEVEN}")
        self.publish(f"buffer_store_dword v{pv}, v{vPQ}, {S(rWS)}, s{sT0} offen")
        a.I(f"s_mov_b64 exec, {mFULL}")

    def rstage(self, name, voff, ypoff, xs, addb2):
        a = self.a
        a.I(f"s_lshl_b32 s{sT1}, s{sJ}, 5"); a.I(f"s_add_u32 s{sT0}, s{sT1}, s{sREG}"); a.I(f"s_add_u32 s{sT0}, s{sT0}, {xs}")
        for r in range(8): a.I(f"v_mov_b32 v{28+r}, 0")
        if addb2: a.I(f"v_add_f32 v{vXR}, v{vXR}, v{vB2}")
        if ypoff: a.I(f"s_add_u32 s{sT2}, s{sYP}, {ypoff}"); sb = sT2
        else: sb = sYP
        self.sleep("d_cross", 7)
        self.poll([(mLO32, f"buffer_load_dword v{28+x}, v{voff}, {S(rWS)}, s{sb} offen offset:{x*128} sc1") for x in range(8)], range(28, 36), 36)
        self.stamp(name)
        a.I("v_pk_add_f32 v[28:29], v[28:29], v[30:31]"); a.I("v_pk_add_f32 v[32:33], v[32:33], v[34:35]")
        a.I(f"v_add_f32 v28, v28, v{vXR}")
        a.I("v_pk_add_f32 v[28:29], v[28:29], v[32:33]")
        a.I("v_add_f32 v28, v28, v29")
        self.pack_pub(28, 29)
        a.I(f"s_mov_b64 exec, {mEVEN}")
        if addb2:
            a.I(f"s_cmp_lg_u32 s{sPASS}, 0"); a.I("s_cbranch_scc1 L_final")
        self.publish(f"buffer_store_dword v29, v{vPX}, {S(rWS)}, s{sT0} offen")
        a.I(f"s_mov_b64 exec, {mFULL}")
        a.I(f"v_cvt_pk_bf16_f32 v{vXR}, v28, v28"); a.I(f"v_and_b32 v{vXR}, 0xffff0000, v{vXR}")

    def tail(self):
        a = self.a; o = self.o
        a.L("L_fin")
        a.C("attention finish"); self.stamp("fin")
        a.I(f"s_lshl_b32 s{sT0}, s{sI}, 8"); a.I(f"s_add_u32 s{sT0}, s{sT0}, s{sREG}"); a.I(f"s_add_u32 s{sT0}, s{sT0}, {AP}")
        a.I(f"s_lshl_b32 s{sT1}, s{sI}, 3"); a.I(f"s_add_u32 s{sT1}, s{sT1}, s{sREG}"); a.I(f"s_add_u32 s{sT1}, s{sT1}, {ML}")
        a.wlg0(); self.barrier()
        self.only_w0("L_fin_done")
        ids = [a.I(f"ds_read_b64 {V(28+2*w, 2)}, v{vL8} offset:{w*512}") for w in range(4)]
        a.I(f"s_mov_b64 exec, {mL0}")
        self.publish(f"buffer_store_dwordx2 v[{vM}:{vL}], v{vL4}, {S(rWS)}, s{sT1} offen")
        a.I(f"s_mov_b64 exec, {mFULL}")
        a.wlg(ids[0])
        a.I(f"v_mul_f32 v28, v{F}, v28"); a.I(f"v_mul_f32 v29, v{F}, v29")
        for w in range(1, 4):
            a.wlg(ids[w])
            a.I(f"v_fmac_f32 v28, v{F+w}, v{28+2*w}"); a.I(f"v_fmac_f32 v29, v{F+w}, v{29+2*w}")
        a.I("v_cvt_pk_bf16_f32 v28, v28, v29"); a.I("v_min_u32 v28, -2, v28")
        self.publish(f"buffer_store_dword v28, v{vL4}, {S(rWS)}, s{sT0} offen")
        self.end_cond("L_fin_done")
        self.stamp("finpub")
        a.C("stage O")
        a.I(f"s_lshl_b32 s{sT0}, s{sW}, 11"); a.I(f"s_add_u32 s{sT0}, s{sT0}, s{sREG}"); a.I(f"s_add_u32 s{sT0}, s{sT0}, {AP}")
        a.I(f"s_lshl_b32 s{sT1}, s{sW}, 6"); a.I(f"s_add_u32 s{sT1}, s{sT1}, s{sREG}"); a.I(f"s_add_u32 s{sT1}, s{sT1}, {ML}")
        self.barrier()
        self.sleep("d_e1", 2)
        self.poll([(None, f"buffer_load_dwordx2 v[36:37], v{vMLG}, {S(rWS)}, s{sT1} offen sc1"),
                   (None, f"buffer_load_dwordx4 {V(28)}, v{vAPG}, {S(rWS)}, s{sT0} offen sc1"),
                   (None, f"buffer_load_dwordx4 {V(32)}, v{vAPG}, {S(rWS)}, s{sT0} offen offset:128 sc1")],
                  [36, 37] + list(range(28, 36)), 38)
        self.stamp("e1")
        a.I(f"{MF} {V(40)}, {V(28)}, {V(WOP)}, 0")
        a.I(f"v_max_f32_dpp v38, v36, v36 quad_perm:[1,0,3,2] {DPP}")
        a.I(f"{MF} {V(40)}, {V(32)}, {V(WOP+8)}, {V(40)}")
        for r in range(4): a.I(f"v_mov_b32_dpp v{28+r}, v{28+r} row_shl:8 {DPP}")
        a.I(f"v_max_f32_dpp v38, v38, v38 quad_perm:[2,3,0,1] {DPP}")
        a.I(f"v_mov_b32_dpp v32, v32 row_shl:8 {DPP}")
        a.I(f"{MF} {V(40)}, {V(28)}, {V(WOP+4)}, {V(40)}")
        for r in range(1, 4): a.I(f"v_mov_b32_dpp v{32+r}, v{32+r} row_shl:8 {DPP}")
        a.I("v_sub_f32 v36, v36, v38")
        a.I("v_exp_f32 v36, v36")
        a.I(f"{MF} {V(40)}, {V(32)}, {V(WOP+12)}, {V(40)}")
        a.I("v_mul_f32 v37, v36, v37")
        a.I(f"s_lshl_b32 s{sT0}, s{sX}, 7"); a.I(f"s_add_u32 s{sT0}, s{sT0}, s{sYP}")
        a.I(f"v_add_f32_dpp v37, v37, v37 quad_perm:[1,0,3,2] {DPP}")
        a.I(f"v_add_f32_dpp v37, v37, v37 quad_perm:[2,3,0,1] {DPP}")
        a.I("v_rcp_f32 v37, v37")
        a.I("v_mul_f32 v36, v36, v37")
        a.I(f"v_mul_f32_dpp v38, v36, v40 quad_perm:[0,0,0,0] {DPP}")
        for r in range(1, 4): a.I(f"v_fmac_f32_dpp v38, v36, v{40+r} quad_perm:[{r},{r},{r},{r}] {DPP}")
        a.I(f"s_mov_b64 exec, {mLO32}")
        a.I(f"ds_write_b32 v{vRW}, v38")
        a.I(f"s_mov_b64 exec, {mFULL}")
        a.wlg0(); self.barrier()
        self.only_w0("L_r_done")
        a.I(f"ds_read_b128 {V(40)}, v{vL16}"); a.wlg0()
        a.I("v_pk_add_f32 v[40:41], v[40:41], v[42:43]"); a.I("v_add_f32 v40, v40, v41"); a.I("v_min_u32 v40, -2, v40")
        a.I(f"s_mov_b64 exec, {mLO32}")
        a.I(f"buffer_store_dword v40, v{vL4}, {S(rWS)}, s{sT0} offen sc1")
        a.I(f"s_mov_b64 exec, {mFULL}")
        self.stamp("opub")
        a.C("stage R")
        self.rstage("e2a", vL4, 0, XSA, False)
        self.end_cond("L_r_done")
        self.stamp("rpub")
        a.C("stage H")
        a.I(f"s_cmp_eq_u32 s{sHCU}, 0"); a.I("s_cbranch_scc1 L_h_done"); a.cond += 1
        self.ln_prep(W1_OFF)
        a.I(f"s_lshl_b32 s{sT0}, s{sW}, 8"); a.I(f"s_add_u32 s{sT0}, s{sT0}, s{sREG}"); a.I(f"s_add_u32 s{sT0}, s{sT0}, {XSA}")
        self.barrier()
        self.sleep("d_x", 1)
        self.poll([(mN8, f"buffer_load_dwordx4 {V(self.XA)}, v{vXG}, {S(rWS)}, s{sT0} offen sc1")], range(self.XA, self.XA + 4), 60)
        self.stamp("e2b")
        a.I(f"s_sub_u32 s{sT0}, s{sI}, {HCU0}"); a.I(f"s_lshl_b32 s{sT0}, s{sT0}, 5"); a.I(f"s_add_u32 s{sT0}, s{sT0}, s{sREG}"); a.I(f"s_add_u32 s{sT0}, s{sT0}, {HS}")
        self.ln_mm()
        a.I(f"s_cmp_lg_u32 s{sW}, 0"); a.I("s_cbranch_scc1 L_h_done")
        self.ln_finish()
        a.I(f"v_fma_f32 v60, v60, v68, v{vB1}")
        a.I(f"v_mov_b32 v62, s{sK1}")
        a.I("v_mul_f32 v61, v60, v60")
        a.I(f"v_fma_f32 v61, v61, s{sK2}, v62")
        a.I("v_mul_f32 v61, v61, v60")
        a.I("v_exp_f32 v61, v61")
        a.I("v_add_f32 v61, 1.0, v61")
        a.I("v_rcp_f32 v61, v61")
        a.I("v_mul_f32 v60, v60, v61")
        self.pack_pub(60, 61)
        a.I(f"s_mov_b64 exec, {mEVEN}")
        self.publish(f"buffer_store_dword v61, v{vPH}, {S(rWS)}, s{sT0} offen")
        a.I(f"s_mov_b64 exec, {mFULL}")
        self.end_cond("L_h_done")
        self.stamp("hpub")
        a.C("stage X2")
        self.only_w0("L_x2_done")
        for r in range(4): a.I(f"v_mov_b32 v{28 + r}, 0")
        rd = [self.trread(44 + 4 * k, vL8, W2_LDS + k * 1024) for k in range(6)]
        a.I(f"s_add_u32 s{sT0}, s{sREG}, {HS}")
        a.I(f"s_lshl_b32 s{sT1}, s{sJ2}, 10"); a.I(f"s_lshl_b32 s{sT2}, s{sX}, 7"); a.I(f"s_add_u32 s{sT1}, s{sT1}, s{sT2}")
        a.I(f"s_lshl_b32 s{sT2}, s{sPASS}, 15"); a.I(f"s_add_u32 s{sT1}, s{sT1}, s{sT2}"); a.I(f"s_add_u32 s{sT1}, s{sT1}, {YP2}")
        self.sleep("d_h", 0)
        self.poll([(mH, f"buffer_load_dwordx4 {V(28)}, v{vHG}, {S(rWS)}, s{sT0} offen sc1")], range(28, 32), 40)
        self.stamp("e3")
        a.wlg0()
        cur, nxt = 28, 32
        for k in range(6):
            a.I(f"{MF} {V(36)}, {V(cur)}, {V(44 + 4*k)}, {'0' if k == 0 else V(36)}")
            if k < 5:
                for r in range(4): a.I(f"v_mov_b32_dpp v{nxt + r}, v{cur + r} row_shl:2 {DPP}")
                cur, nxt = nxt, cur
        a.I(f"s_mov_b64 exec, {mLO16}")
        a.I("v_min_u32 v36, -2, v36"); a.I("v_min_u32 v37, -2, v37")
        a.I(f"buffer_store_dwordx2 v[36:37], v{vL8}, {S(rWS)}, s{sT1} offen sc1")
        a.I(f"s_mov_b64 exec, {mFULL}")
        self.stamp("xpub")
        a.I(f"s_mul_i32 s{sT0}, s{sPASS}, s{sX}"); a.I(f"s_cmp_lg_u32 s{sT0}, 0"); a.I("s_cbranch_scc1 L_abort")
        a.C("stage R2")
        self.rstage("e3b", vR2, YP2 - YP, XSB, True)
        self.end_cond("L_x2_done")
        self.stamp("r2pub")
        a.I(f"s_cmp_lg_u32 s{sPASS}, 0"); a.I("s_cbranch_scc1 L_abort")
        a.C("stage Q2")
        self.ln_prep(WQ_OFF)
        a.I(f"s_lshl_b32 s{sP0}, s{sW}, 8"); a.I(f"s_add_u32 s{sP0}, s{sP0}, s{sREG}"); a.I(f"s_add_u32 s{sP0}, s{sP0}, {XSB}")
        a.I(f"s_mov_b32 s{sPASS}, 1"); a.I(f"s_add_u32 s{sREG}, s{sREG}, {REGION}"); a.I(f"s_add_u32 s{sYP}, s{sYP}, 32768")
        self.q_soff()
        a.I(f"s_lshr_b32 s{sP3}, s{sI}, 2"); a.I(f"s_lshl_b32 s{sP3}, s{sP3}, 8"); a.I(f"s_add_u32 s{sP3}, s{sP3}, s{sREG}")
        self.barrier()
        self.sleep("d_x", 1)
        self.poll([(mN8, f"buffer_load_dwordx4 {V(self.XA)}, v{vXG}, {S(rWS)}, s{sP0} offen sc1")], range(self.XA, self.XA + 4), 60)
        self.stamp("e4")
        self.ln_mm()
        self.only_w0("L_q2_done")
        self.ln_finish()
        a.I("v_mul_f32 v60, v60, v68")
        self.pack_pub(60, 61)
        self.q_publish(61)
        self.end_cond("L_q2_done")
        self.stamp("qpub")
        a.C("attention 2")
        for r in range(4): a.I(f"v_mov_b32 v{QC + r}, 0")
        self.barrier()
        self.sleep("d_q", 2)
        self.poll([(mN4, f"buffer_load_dwordx4 {V(QC)}, v{vQG}, {S(rWS)}, s{sP3} offen sc1")], range(QC, QC + 4), 32)
        self.stamp("e5")
        lv = []
        cnt = [0]
        def fill():
            cnt[0] += 1
            if cnt[0] > 8:
                for _ in range(3):
                    e = len(lv)
                    lv.append(a.I(f"ds_read_b128 {Ar(128 + 4*e)}, v{vLV} offset:{V_OFF + e*1024}"))
        self.qk(fill=fill, order=(3, 2, 0, 1))
        self.stamp("qk2")
        self.sm_max()
        for s in self.sm_exp(0): a.I(s)
        self.stamp("sm2")
        fl = self.sm_exp(1) + self.sm_sum()
        post = []
        def opnd(c, e):
            return Ar(128 + 32 * c + 4 * e) if c < 3 else V(gblk(c) + 4 * e)
        order = [3, 0, 1, 2, 4, 5, 6, 7]
        def buildA(c, b):
            sig, v = c >> 2, c & 3
            if v == 0: return P + 4 * sig
            for r in range(4): a.I(f"v_mov_b32_dpp v{b+r}, v{P+4*sig+r} row_shl:{v} {DPP}")
            return b
        A = buildA(order[0], RB[0])
        for gi, c in enumerate(order):
            An = None
            for e in range(8):
                if gi == 1 and e == 0: a.wlg(lv[-1])
                a.I(f"{MF} {Ar(224 + 4*e)}, {V(A)}, {opnd(c, e)}, {'0' if gi == 0 else Ar(224 + 4*e)}")
                if e in (2, 3) and gi + 1 < 8:
                    pass
                elif fl:
                    a.I(fl.pop(0))
                    if fl and not fl[0].startswith("v_exp"): a.I(fl.pop(0))
                elif post:
                    a.I(post.pop(0))
                if e == 2 and gi + 1 < 8:
                    An = buildA(order[gi + 1], RB[(gi + 1) % 2])
                if gi == 4 and e == 0:
                    assert not fl
                    self.ml_write()
                if gi == 5 and e == 0:
                    a.wlg0(); self.barrier(); fr = self.f_read()
                if gi == 5 and e == 6:
                    a.wlg(fr); post = self.f_calc()
            if An is not None or gi + 1 < 8: A = An
        while post: a.I(post.pop(0))
        a.I(f"s_mov_b64 exec, {mLO16}")
        for e in range(0, 8, 2):
            a.I(f"ds_write2_b32 v{vAW}, a{224 + 4*e}, a{228 + 4*e} offset0:{e} offset1:{e+1}")
        a.I(f"s_mov_b64 exec, {mFULL}")
        a.I("s_branch L_fin")
        a.L("L_final")
        a.I(f"buffer_store_dword v29, v{vPX}, {S(rOUT)}, s{sT1} offen")
        if o.get("stamps"):
            a.wvm0(); self.stamp("end")
            a.I("s_branch L_abort")
        a.I("s_endpgm")

if __name__ == "__main__":
    opt = {}
    out = sys.argv[1]
    for kv in sys.argv[2:]:
        k, v = kv.split("="); opt[k] = v.split(",") if k == "stamps" else int(v)
    g = Gen(opt)
    t = g.build()
    open(out, "w").write(t)
    print("lines", t.count("\n"), "auto nops", g.a.nops)
```

```python
import sys, math, struct
from asmlib import Asm
KNAME = "interleave_layers__gqa_block_cached__dense_activation_gelu__decode_kernel"
HEADER = open("interleave_layers__gqa_block_cached__dense_activation_gelu__decode.s.ref").read().split("; Override launch")[0]

MISC = 0; ML_LDS = 2048; W2_LDS = 4096; WBASE0 = 12288; WAREA = 36864
WQ_OFF = 0; WO_OFF = 4096; W1_OFF = 8192; V_OFF = 12288
REGION = 24576; QS = 0; AP = 2048; ML = 10240; XSA = 10496; XSB = 12544; HS = 14592
YP = 393216; YP2 = 458752; TOK = 0xA0000; EPO = 0xA0400; WS_BYTES = 0xA0800
sW, sX, sI, sREG, sYP, sMODE, sPASS, sCNT, sWB = 3, 4, 5, 6, 7, 9, 10, 11, 12
sT0, sT1, sT2, sPLO, sPHI, sJ, sROT = 13, 14, 15, 16, 17, 18, 19
mFULL, mLO32, mEVEN, mN8, mN4, mG02, mL0, mH, mLO16 = "s[20:21]", "s[22:23]", "s[24:25]", "s[26:27]", "s[28:29]", "s[30:31]", "s[32:33]", "s[34:35]", "s[76:77]"
rK, rV, rWQ, rWO, rW1, rW2, rWS, rT, rDBG, rOUT = 36, 40, 44, 48, 52, 56, 60, 64, 68, 72
sC, sXCC, sHCU, sJ2 = 78, 79, 80, 81
sK1, sK2, sINV, sEPS = 82, 83, 84, 85
sBUR = 8
sW2B, sW1B, sT0W = 66, 67, 87
sP0, sP1, sP2, sP3 = 86, 87, 88, 89
def S(r): return f"s[{r}:{r+3}]"
def V(r, n=4): return f"v[{r}:{r+n-1}]"
def Ar(r, n=4): return f"a[{r}:{r+n-1}]"
DPP = "row_mask:0xf bank_mask:0xf"
MF = "v_mfma_f32_16x16x32_bf16"
vTR, vB1, vB2, vXR, vXG, vPX, vPQ, vPH, vAPG, vMLG, vQG, vHG, vL4, vR2, vL8, vL16, vRW, vAW, vCS, vSQ, vSM, vLV, vVO = range(1, 24)
vMK = 24
QC = 28; RB = (32, 36); SC = 40; vM, vL = 56, 57; P = 58; F = 66; FL = 70; WOP = 76
BLK = [96 + 32 * k for k in range(5)]
HCU0 = 16
f2u = lambda x: "0x%08x" % struct.unpack("<I", struct.pack("<f", x))[0]
def gblk(c): return BLK[c if c < 5 else c - 5]

class Gen:
    def __init__(self, opt):
        self.a = Asm(); self.o = opt; self.lab = 0; self.ool = []
    def nl(self, p):
        self.lab += 1; return f"L_{p}_{self.lab}"
    def stamp(self, name):
        st = self.o.get("stamps", [])
        a = self.a
        hits = [k for k, x in enumerate(st) if x.split("@")[0] == name]
        if not hits: return
        a.I(("s_memtime" if self.o.get("cyc") else "s_memrealtime") + " s[64:65]"); a.I("s_waitcnt lgkmcnt(0)")
        for k in hits:
            if "@" in st[k]:
                a.I(f"s_cmp_eq_u32 s{sPASS}, {st[k].split('@')[1]}"); a.I(f"s_cselect_b32 s{90+k}, s64, s{90+k}")
            else:
                a.I(f"s_mov_b32 s{90+k}, s64")
    def stamp_out(self):
        if not self.o.get("stamps"): return
        a = self.a
        a.I("s_mov_b64 exec, 1")
        a.I(f"s_lshl_b32 s64, s2, 2"); a.I(f"s_add_u32 s64, s64, s{sW}"); a.I("s_lshl_b32 s64, s64, 6"); a.I("s_add_u32 s64, s64, 0x80000")
        a.I("v_mov_b32 v44, 0")
        for k in range(12): a.I(f"v_mov_b32 v{28+k}, s{90+k}")
        for k in range(3): a.I(f"buffer_store_dwordx4 {V(28+4*k)}, v44, {S(rWS)}, s64 offen offset:{16*k}")
        if self.o.get("dbgst"):
            a.I(f"s_lshl_b32 s64, s2, 2"); a.I(f"s_add_u32 s64, s64, s{sW}"); a.I("s_cmp_lg_u32 s64, 0"); a.I("s_cbranch_scc1 L_exit")
            a.I("s_nop 1")
            for k in range(1, 12): a.I(f"v_subrev_u32 v{28+k}, s90, v{28+k}")
            for k in range(3): a.I(f"buffer_store_dwordx4 {V(28+4*k)}, v44, {S(rDBG)}, 0 offen offset:{16*k}")

    def publish(self, instr):
        a = self.a
        ls, ld = self.nl("slow"), self.nl("pubd")
        a.I(f"s_cmp_lg_u32 s{sMODE}, 0"); a.I(f"s_cbranch_scc1 {ls}")
        a.cond += 1; a.I(instr); a.cond -= 1
        a.L(ld)
        self.ool.append((ls, instr + " sc1", ld))
    def thr(self, key):
        a = self.a; T = self.o.get(key, 0); TB = self.o.get(key + "b", T)
        if not T: return
        if TB == T:
            a.I(f"s_waitcnt vmcnt({T})"); return
        l = self.nl("thr")
        if TB: a.I(f"s_waitcnt vmcnt({TB})")
        a.I(f"s_cmp_lg_u32 s{sBUR}, 0"); a.I(f"s_cbranch_scc1 {l}"); a.I(f"s_waitcnt vmcnt({T})"); a.L(l)
    def barrier(self): self.a.I("s_barrier")
    def only_w0(self, lab):
        a = self.a
        a.I(f"s_cmp_lg_u32 s{sW}, 0"); a.I(f"s_cbranch_scc1 {lab}"); a.cond += 1
    def end_cond(self, lab):
        self.a.cond -= 1; self.a.L(lab)
    def poll(self, loads, regs, vt):
        a = self.a
        l = self.nl("poll"); a.L(l)
        cur = None
        for m, ins in loads:
            if m != cur: a.I(f"s_mov_b64 exec, {m or mFULL}"); cur = m
            a.I(ins)
        if cur is not None: a.I(f"s_mov_b64 exec, {mFULL}")
        a.I(f"s_sub_u32 s{sCNT}, s{sCNT}, 1"); a.I("s_cbranch_scc1 L_abort")
        a.wvm0()
        self.check(regs, vt)
        a.I(f"s_cbranch_vccnz {l}")
    def check(self, regs, vt):
        a = self.a; r = list(regs)
        if len(r) % 2 == 1: a.I(f"v_max3_u32 v{vt}, v{r[0]}, v{r[1]}, v{r[2]}"); r = r[3:]
        else: a.I(f"v_max_u32 v{vt}, v{r[0]}, v{r[1]}"); r = r[2:]
        for k in range(0, len(r), 2): a.I(f"v_max3_u32 v{vt}, v{r[k]}, v{r[k+1]}, v{vt}")
        a.I(f"v_cmp_eq_u32 vcc, -1, v{vt}")
    def sleep(self, key, dflt):
        n = self.o.get(key, dflt)
        if n: self.a.I(f"s_sleep {n}")
    def trread(self, dst, addr, off):
        a = self.a
        a.I(f"ds_read_b64_tr_b16 {V(dst,2)}, v{addr} offset:{off}")
        return a.I(f"ds_read_b64_tr_b16 {V(dst+2,2)}, v{addr} offset:{off+512}")
    def pack_pub(self, val, tmp):
        a = self.a
        a.I(f"v_mov_b32_dpp v{tmp}, v{val} quad_perm:[1,1,3,3] {DPP}")
        a.I(f"v_cvt_pk_bf16_f32 v{tmp}, v{val}, v{tmp}")
        a.I(f"v_min_u32 v{tmp}, -2, v{tmp}")
    def mad(self, dst, x, c, y):
        a = self.a
        a.I(f"s_movk_i32 s{sT2}, {c}"); a.I(f"v_mad_u32_u24 v{dst}, v{x}, s{sT2}, v{y}")

    XA, XT, GA, TA, WB = 28, 32, 36, 40, 44
    def ln_prep(self, off, preset=True):
        a = self.a
        if preset:
            for r in range(8): a.I(f"v_mov_b32 v{self.XA + r}, 0x3f803f80")
        self.rd = [self.trread(self.WB + 4 * j, vTR, off + j * 1024) for j in range(4)]
    def ln_mm(self):
        a = self.a
        cur, nxt = self.XA, self.XT
        for j in range(4):
            c = "0" if j == 0 else None
            if j == 0: a.wlg(self.rd[3])
            a.I(f"{MF} {V(self.TA)}, {V(cur)}, {V(self.WB + 4*j)}, {c or V(self.TA)}")
            if j < 3:
                for r in range(2): a.I(f"v_mov_b32_dpp v{nxt + r}, v{cur + r} row_shl:2 {DPP}")
            a.I(f"{MF} {V(self.GA)}, {V(cur)}, {V(cur)}, {c or V(self.GA)}")
            if j < 3:
                for r in range(2, 4): a.I(f"v_mov_b32_dpp v{nxt + r}, v{cur + r} row_shl:2 {DPP}")
            cur, nxt = nxt, cur
        a.I(f"s_mov_b64 exec, {mG02}")
        a.I(f"ds_write2st64_b32 v{vRW}, v{self.TA}, v{self.TA+1} offset0:0 offset1:1")
        a.I(f"ds_write2st64_b32 v{vRW}, v{self.GA}, v{self.GA+1} offset0:4 offset1:5")
        a.I(f"s_mov_b64 exec, {mFULL}")
        a.wlg0(); self.barrier()
    def ln_finish(self):
        a = self.a
        i_sq = a.I(f"ds_read_b128 {V(68)}, v{vSQ} offset:1024")
        i_sm = a.I(f"ds_read_b128 {V(72)}, v{vSM} offset:{1024+512}")
        i_raw = a.I(f"ds_read_b128 {V(60)}, v{vL16}")
        i_cs = a.I(f"ds_read_b128 {V(64)}, v{vCS} offset:512")
        a.I(f"v_mov_b32 v44, s{sEPS}")
        a.wlg(i_sm)
        a.I("v_pk_add_f32 v[68:69], v[68:69], v[70:71]")
        a.I("v_pk_add_f32 v[72:73], v[72:73], v[74:75]")
        a.I("v_add_f32 v68, v68, v69")
        a.I("v_add_f32 v72, v72, v73")
        a.I(f"v_mul_f32 v72, s{sINV}, v72")
        a.I(f"v_fma_f32 v68, v68, s{sINV}, v44")
        a.I("v_fma_f32 v68, -v72, v72, v68")
        a.I(f"v_max_f32 v68, s{sEPS}, v68")
        a.I("v_rsq_f32 v68, v68")
        a.wlg(i_cs)
        a.I("v_pk_add_f32 v[60:61], v[60:61], v[62:63]")
        a.I("v_pk_add_f32 v[64:65], v[64:65], v[66:67]")
        a.I("v_add_f32 v60, v60, v61")
        a.I("v_add_f32 v64, v64, v65")
        a.I("v_fma_f32 v60, -v72, v64, v60")

    def qk(self, fill=None, order=(0, 1, 2, 3)):
        a = self.a
        steps = [(v, j) for v in order for j in range(4)]
        def bld(n, r):
            v, j = steps[n]
            a.I(f"v_and_b32_dpp v{RB[n%2]+r}, v{QC+r}, v{vMK+v} quad_perm:[{j},{j},{j},{j}] {DPP}")
        for r in range(4): bld(0, r)
        for n, (v, j) in enumerate(steps):
            for u in range(4):
                t = 4 * v + u
                c = "0" if n == 0 else V(SC + 4 * u)
                a.I(f"{MF} {V(SC+4*u)}, {Ar(16*t + 4*j)}, {V(RB[n%2])}, {c}")
                if n + 1 < 16:
                    if u == 0: bld(n + 1, 0); bld(n + 1, 1)
                    if u == 1: bld(n + 1, 2); bld(n + 1, 3)
            if fill: fill()
    def xlane(self, r, t, op):
        L = []
        L.append(f"{op}_dpp v{r}, v{r}, v{r} quad_perm:[1,0,3,2] {DPP}")
        L.append(f"{op}_dpp v{r}, v{r}, v{r} quad_perm:[2,3,0,1] {DPP}")
        L.append(f"v_mov_b32 v{t}, v{r}")
        L.append(f"v_permlane32_swap_b32 v{t}, v{r}")
        L.append(f"{op} v{r}, v{r}, v{t}")
        L.append(f"v_mov_b32 v{t}, v{r}")
        L.append(f"v_permlane16_swap_b32 v{t}, v{r}")
        L.append(f"{op} v{r}, v{r}, v{t}")
        return L
    def sm_max(self):
        a = self.a; s = SC
        a.I(f"v_max3_f32 v{vM}, v{s}, v{s+1}, v{s+2}")
        a.I(f"v_max3_f32 v{vL}, v{s+3}, v{s+4}, v{s+5}")
        for k in range(s + 6, s + 14, 4):
            a.I(f"v_max3_f32 v{vM}, v{k}, v{k+1}, v{vM}")
            a.I(f"v_max3_f32 v{vL}, v{k+2}, v{k+3}, v{vL}")
        a.I(f"v_max3_f32 v{vM}, v{s+14}, v{s+15}, v{vM}")
        a.I(f"v_max_f32 v{vM}, v{vM}, v{vL}")
        for x in self.xlane(vM, vL, "v_max_f32"): a.I(x)
        a.I(f"v_mul_f32 v{vM}, s{sC}, v{vM}")
    def sm_exp(self, sig):
        L = []; b = SC + 8 * sig
        for k in range(8): L.append(f"v_fma_f32 v{b+k}, v{b+k}, s{sC}, -v{vM}")
        for k in range(8): L.append(f"v_exp_f32 v{b+k}, v{b+k}")
        for k in range(4): L.append(f"v_cvt_pk_bf16_f32 v{P+4*sig+k}, v{b+2*k}, v{b+2*k+1}")
        return L
    def sm_sum(self):
        s = SC; pk = lambda x, y: f"v_pk_add_f32 v[{x}:{x+1}], v[{x}:{x+1}], v[{y}:{y+1}]"
        L = [pk(s, s+2), pk(s+4, s+6), pk(s+8, s+10), pk(s+12, s+14), pk(s, s+4), pk(s+8, s+12), pk(s, s+8), f"v_add_f32 v{vL}, v{s}, v{s+1}"]
        return L + self.xlane(vL, F, "v_add_f32")
    def ml_write(self):
        a = self.a
        a.I(f"s_mov_b64 exec, {mL0}")
        a.I(f"ds_write2_b32 v{vRW}, v{vM}, v{vL} offset0:{ML_LDS//4 - 384} offset1:{ML_LDS//4 - 384 + 4}") if False else None
        a.I(f"ds_write_b32 v{vRW}, v{vM} offset:{ML_LDS}")
        a.I(f"ds_write_b32 v{vRW}, v{vL} offset:{ML_LDS + 16}")
        a.I(f"s_mov_b64 exec, {mFULL}")
    def f_read(self):
        a = self.a
        a.I(f"v_mov_b32 v74, 0")
        a.I(f"ds_read_b128 {V(F)}, v74 offset:{ML_LDS}")
        return a.I(f"ds_read_b128 {V(FL)}, v74 offset:{ML_LDS + 16}")
    def f_calc(self):
        L = [f"v_max3_f32 v{vM}, v{F}, v{F+1}, v{F+2}", f"v_max_f32 v{vM}, v{vM}, v{F+3}"]
        for k in range(4): L.append(f"v_sub_f32 v{F+k}, v{F+k}, v{vM}")
        for k in range(4): L.append(f"v_exp_f32 v{F+k}, v{F+k}")
        L.append(f"v_mul_f32 v{vL}, v{F}, v{FL}")
        for k in range(1, 4): L.append(f"v_fmac_f32 v{vL}, v{F+k}, v{FL+k}")
        L.append(f"v_min_u32 v{vM}, -2, v{vM}"); L.append(f"v_min_u32 v{vL}, -2, v{vL}")
        return L
    def perm_group(self, blk, t1=74, t2=75):
        a = self.a
        R = lambda s, d: blk + 4 * s + d
        lo = lambda dst, x, y: a.I(f"v_perm_b32 v{dst}, v{y}, v{x}, s{sPLO}")
        hi = lambda dst, x, y: a.I(f"v_perm_b32 v{dst}, v{y}, v{x}, s{sPHI}")
        for p in range(4):
            x, y = R(2*p, p), R(2*p+1, p)
            lo(t1, x, y); hi(y, x, y); a.I(f"v_mov_b32 v{x}, v{t1}")
        for p in range(4):
            for d in range(p + 1, 4):
                ax, ay = R(2*p, d), R(2*p+1, d); bx, by = R(2*d, p), R(2*d+1, p)
                lo(t1, ax, ay); hi(t2, ax, ay); lo(ax, bx, by); hi(ay, bx, by)
                a.I(f"v_mov_b32 v{bx}, v{t1}"); a.I(f"v_mov_b32 v{by}, v{t2}")

    def build(self):
        a = self.a; o = self.o
        KV = "" if o.get("kvdef") else " nt"
        WP = " nt" if o.get("wpol") else ""
        a.raw(HEADER.rstrip())
        a.raw("; @launch grid=(256,1,1) block=(256,1,1) lds=163840")
        a.raw('.amdgcn_target "amdgcn-amd-amdhsa--gfx950"')
        a.raw(".text"); a.raw(f".globl {KNAME}"); a.raw(".p2align 8"); a.raw(f".type {KNAME},@function"); a.raw(f"{KNAME}:")
        a.I("s_cmp_ge_u32 s2, 256"); a.I("s_cbranch_scc1 L_exit")
        if o.get("stamps"): a.I(("s_memtime" if o.get("cyc") else "s_memrealtime") + " s[8:9]")
        a.I("s_load_dwordx16 s[76:91], s[0:1], 0")
        a.I("s_load_dwordx8 s[92:99], s[0:1], 64")
        a.I("s_load_dwordx2 s[100:101], s[0:1], 96")
        a.I("v_lshrrev_b32 v1, 6, v0")
        a.I(f"v_readfirstlane_b32 s{sW}, v1")
        a.I("v_and_b32 v0, 63, v0")
        a.I(f"s_and_b32 s{sX}, s2, 7"); a.I(f"s_lshr_b32 s{sI}, s2, 3")
        vg, vn = 28, 29
        KD = 84; KR = 88; WD = 92
        a.I(f"v_lshrrev_b32 v{vg}, 4, v0"); a.I(f"v_and_b32 v{vn}, 15, v0")
        a.I(f"v_lshlrev_b32 v{vVO}, 4, v0")
        a.I(f"v_lshlrev_b32 v30, 2, v{vg}"); a.I(f"v_xor_b32 v30, v30, v{vn}")
        for q in range(4):
            a.I(f"v_xor_b32 v31, {q}, v30"); a.I(f"v_lshlrev_b32 v31, 4, v31")
            a.I(f"v_lshl_add_u32 v31, v{vg}, 8, v31"); a.I(f"v_add_u32 v{KD+q}, {q*1024}, v31")
        a.I(f"s_bfe_u32 s{sT0}, s{sI}, 0x10002"); a.I(f"s_lshl_b32 s{sT0}, s{sT0}, 5")
        a.I(f"s_lshl_b32 s{sT1}, s{sX}, 2"); a.I(f"s_add_u32 s{sT0}, s{sT0}, s{sT1}")
        a.I(f"s_lshr_b32 s{sT1}, s{sI}, 3"); a.I(f"s_add_u32 s{sT0}, s{sT0}, s{sT1}")
        a.I(f"s_lshl_b32 s{sT0}, s{sT0}, 4")
        a.I(f"s_and_b32 s{sT1}, s{sI}, 3"); a.I(f"s_lshl_b32 s{sT1}, s{sT1}, 2"); a.I(f"s_add_u32 s{sT0}, s{sT0}, s{sT1}")
        a.I(f"s_add_u32 s{sT0}, s{sT0}, s{sW}"); a.I(f"s_lshl_b32 s{sT0}, s{sT0}, 16")
        a.I(f"s_lshl_b32 s{sROT}, s2, 2"); a.I(f"s_add_u32 s{sROT}, s{sROT}, s{sW}")
        a.I(f"s_mul_i32 s{sROT}, s{sROT}, 0x9E3779B1"); a.I(f"s_lshr_b32 s{sROT}, s{sROT}, 28"); a.I(f"s_lshl_b32 s{sROT}, s{sROT}, 12")
        a.I(f"s_mul_i32 s{sWB}, s{sW}, {WAREA}"); a.I(f"s_add_u32 s{sWB}, s{sWB}, {WBASE0}")
        a.I(f"s_mov_b32 s{rK+2}, 65536"); a.I(f"s_mov_b32 s{rK+3}, 0x20000")
        a.I("s_waitcnt lgkmcnt(0)")
        a.I(f"s_add_u32 s{rK}, s78, s{sT0}"); a.I(f"s_addc_u32 s{rK+1}, s79, 0")
        kid = {}
        def ktile(t):
            if t >= 6: a.I("s_waitcnt lgkmcnt(4)")
            a.I(f"s_add_u32 s{sT1}, s{sROT}, {t*4096}"); a.I(f"s_and_b32 s{sT1}, s{sT1}, 0xffff")
            for q in range(4):
                if t >= 2: self.thr("tk")
                a.I(f"s_add_u32 m0, s{sWB}, {V_OFF + (t % 6) * 4096 + q * 1024}")
                kid[t] = a.I(f"buffer_load_dwordx4 v{KD+q}, {S(rK)}, s{sT1} offen{KV} lds")
        def kread(t):
            a.wvm(kid[t])
            for j in range(4): a.I(f"ds_read_b128 {Ar(16*t+4*j)}, v{KR+j} offset:{V_OFF + (t % 6) * 4096}")
        ktile(0)
        a.I(f"s_add_u32 s{rV}, s80, s{sT0}"); a.I(f"s_addc_u32 s{rV+1}, s81, 0")
        wsz = WS_BYTES
        a.I(f"s_load_dword s{sXCC}, s[100:101], {EPO}")
        for r, sz in ((rV, 65536), (rWQ, 1 << 22), (rWO, 1 << 22), (rW1, 512 * 2752), (rW2, 1376 * 1024), (rWS, wsz), (rT, 2048), (rDBG, 256), (rOUT, 2048)):
            a.I(f"s_mov_b32 s{r+2}, {sz}"); a.I(f"s_mov_b32 s{r+3}, 0x20000")
        for r, p in ((rWS, 100), (rT, 76), (rWQ, 82), (rWO, 84), (rW1, 88), (rW2, 92), (rDBG, 98), (rOUT, 96)):
            a.I(f"s_mov_b64 s[{r}:{r+1}], s[{p}:{p+1}]")
        self.only_w0("L_noclear")
        for r in range(4): a.I(f"v_mov_b32 v{32+r}, -1")
        a.I(f"s_lshl_b32 s{sT1}, s2, 11")
        a.I(f"buffer_store_dwordx4 {V(32)}, v{vVO}, {S(rWS)}, s{sT1} offen sc1")
        clr = a.I(f"buffer_store_dwordx4 {V(32)}, v{vVO}, {S(rWS)}, s{sT1} offen offset:1024 sc1")
        self.end_cond("L_noclear")
        a.I("v_bfe_u32 v30, v0, 3, 2"); a.I("v_lshrrev_b32 v31, 5, v0"); a.I("v_lshl_add_u32 v30, v30, 1, v31")
        a.I("v_bfe_u32 v31, v0, 1, 2"); a.I("v_lshl_add_u32 v30, v30, 2, v31")
        a.I("v_and_b32 v31, 1, v0"); a.I("v_lshlrev_b32 v31, 4, v31")
        self.mad(WD, 30, 8192, 31); self.mad(WD + 1, 30, 1024, 31); self.mad(WD + 2, 30, 2752, 31)
        a.I(f"s_lshl_b32 s{sT0}, s{sW}, 20"); a.I(f"s_lshl_b32 s{sT1}, s{sX}, 10"); a.I(f"s_add_u32 s{sT0}, s{sT0}, s{sT1}")
        a.I(f"s_lshl_b32 s{sT1}, s{sI}, 5"); a.I(f"s_add_u32 s{sP0}, s{sT0}, s{sT1}")
        def wdma(voff, srd, sbase, goff, lds_expr):
            if goff: a.I(f"s_add_u32 s{sT0}, s{sbase}, {goff}"); sb = sT0
            else: sb = sbase
            a.I(lds_expr)
            if (o.get("nowq") and srd == rWQ) or (o.get("nowo") and srd == rWO): return xid0[0]
            return a.I(f"buffer_load_dwordx4 v{voff}, {S(srd)}, s{sb} offen{WP} lds")
        xid0 = [kid[0]]
        wq = lambda j: wdma(WD, rWQ, sP0, j * 32 * 8192, f"s_add_u32 m0, s{sWB}, {WQ_OFF + j*1024}")
        wqid = [wq(0)]
        a.I(f"v_bfe_u32 v30, v0, 4, 1")
        a.I(f"v_lshlrev_b32 v31, 1, v{vn}")
        self.mad(vPX, 30, 1024, 31); self.mad(vPQ, 30, 256, 31); self.mad(vPH, 30, 384, 31)
        a.I(f"v_add_u32 v{vR2}, v31, v30"); a.I(f"v_lshlrev_b32 v{vR2}, 2, v{vR2}")
        a.I(f"v_mul_u32_u24 v{vSQ}, 272, v30"); a.I(f"v_lshlrev_b32 v{vSM}, 4, v30"); a.I(f"v_lshlrev_b32 v{vCS}, 4, v{vn}")
        a.I(f"v_and_b32 v32, 3, v0"); a.I(f"v_lshl_add_u32 v32, v30, 2, v32"); a.I(f"v_lshlrev_b32 v{vMLG}, 3, v32")
        a.I("v_bfe_u32 v32, v0, 1, 3"); a.I(f"v_lshl_add_u32 v32, v32, 2, v{vg}"); a.I("v_lshlrev_b32 v32, 4, v32"); a.I("v_and_b32 v33, 1, v0")
        self.mad(vXG, 33, 1024, 32); self.mad(vHG, 33, 384, 32)
        for r in range(8): a.I(f"v_mov_b32 v{36 + r}, 0x3f803f80")
        a.I(f"v_cmp_gt_u32 {mN8}, 8, v{vn}"); a.I(f"v_cmp_gt_u32 {mN4}, 4, v{vn}")
        a.I(f"s_mov_b64 {mFULL}, -1")
        a.I(f"s_add_u32 s{sJ}, s{sI}, {o.get('rj', 8)}"); a.I(f"s_and_b32 s{sJ}, s{sJ}, 31")
        a.I(f"s_add_u32 s{sJ2}, s{sI}, {o.get('rj2', 16)}"); a.I(f"s_and_b32 s{sJ2}, s{sJ2}, 31")
        a.I(f"s_lshl_b32 s{sT0}, s{sW}, 8")
        a.I(f"s_mov_b64 exec, {mN8}")
        xid = a.I(f"buffer_load_dwordx4 {V(36)}, v{vXG}, {S(rT)}, s{sT0} offen")
        a.I(f"s_mov_b64 exec, {mFULL}")
        a.I(f"s_lshl_b32 s{sT0}, s{sJ}, 5")
        a.I(f"buffer_load_ushort v{vXR}, v{vPX}, {S(rT)}, s{sT0} offen")
        a.I(f"s_mov_b64 s[{rT}:{rT+1}], s[94:95]"); a.I(f"s_mov_b32 s{rT+2}, 1024")
        a.I(f"buffer_load_ushort v{vB2}, v31, {S(rT)}, s{sT0} offen")
        a.I(f"s_mul_i32 s{sP1}, s{sX}, 11"); a.I(f"s_max_u32 s{sT0}, s{sX}, 6"); a.I(f"s_sub_u32 s{sT0}, s{sT0}, 6"); a.I(f"s_sub_u32 s{sP1}, s{sP1}, s{sT0}")
        a.I(f"s_sub_u32 s{sP2}, s{sI}, {HCU0}")
        a.I(f"s_cmp_lt_u32 s{sX}, 6"); a.I(f"s_cselect_b32 s{sT0}, 11, 10")
        a.I(f"s_cselect_b32 s34, 0x0fff0fff, 0x03ff03ff") if False else None
        a.I("s_mov_b32 s35, 0x03ff03ff"); a.I("s_cselect_b32 s34, 0x0fff0fff, s35")
        a.I(f"s_cmp_lt_u32 s{sP2}, s{sT0}"); a.I(f"s_cselect_b32 s{sHCU}, 1, 0")
        a.I(f"s_add_u32 s{sP3}, s{sP1}, s{sP2}"); a.I(f"s_lshl_b32 s{sP3}, s{sP3}, 5")
        a.I(f"s_mov_b64 s[{rT}:{rT+1}], s[90:91]"); a.I(f"s_mov_b32 s{rT+2}, 2752")
        bid = a.I(f"buffer_load_ushort v{vB1}, v31, {S(rT)}, s{sP3} offen")
        ktile(1)
        wqid.append(wq(1))
        if o.get("stamps"):
            for k in range(12): a.I(f"s_mov_b32 s{90+k}, 0")
            for k, x in enumerate(o["stamps"]):
                if x == "start": a.I(f"s_mov_b32 s{90+k}, s8")
        a.I(f"s_lshr_b32 s{sT0}, s{sI}, 2"); a.I(f"s_cmp_eq_u32 s{sT0}, 3"); a.I(f"s_cselect_b32 s{sBUR}, 1, 0")
        a.I(f"s_lshr_b32 s{sT0}, s{sJ}, 2"); a.I(f"s_cmp_eq_u32 s{sT0}, 3"); a.I(f"s_cselect_b32 s{sBUR}, 1, s{sBUR}")
        if o.get("bur2", 0):
            a.I(f"s_lshr_b32 s{sT0}, s{sJ2}, 2"); a.I(f"s_cmp_eq_u32 s{sT0}, 3"); a.I(f"s_cselect_b32 s{sBUR}, 1, s{sBUR}")
        a.I("v_and_b32 v32, 7, v0"); a.I("v_bfe_u32 v33, v0, 3, 1"); a.I("v_lshl_add_u32 v32, v32, 2, v33")
        a.I(f"v_lshl_add_u32 v32, v32, 2, v{vg}"); a.I(f"v_lshlrev_b32 v{vAPG}, 4, v32")
        a.I(f"v_lshl_add_u32 v32, v{vn}, 2, v{vg}"); a.I(f"v_lshlrev_b32 v{vQG}, 4, v32")
        a.I(f"v_lshlrev_b32 v{vL4}, 2, v0"); a.I(f"v_lshlrev_b32 v{vL8}, 3, v0"); a.I(f"v_lshlrev_b32 v{vL16}, 4, v0")
        a.I(f"s_lshl_b32 s{sT0}, s{sW}, 2"); a.I(f"v_lshl_add_u32 v{vRW}, v0, 4, s{sT0}")
        a.I(f"s_lshl_b32 s{sT0}, s{sW}, 9"); a.I(f"v_lshl_add_u32 v{vAW}, v0, 5, s{sT0}")
        a.I(f"v_lshl_add_u32 v{vTR}, v0, 3, s{sWB}"); a.I(f"v_lshl_add_u32 v{vLV}, v0, 4, s{sWB}")
        for v in range(4):
            a.I(f"v_cmp_eq_u32 vcc, {v}, v{vn}"); a.I(f"v_cndmask_b32 v{vMK+v}, 0, -1, vcc")
        a.I("v_and_b32 v32, 3, v0"); a.I("v_bfe_u32 v33, v0, 2, 2"); a.I("v_lshl_add_u32 v32, v32, 2, v33")
        a.I(f"v_lshlrev_b32 v32, 8, v32"); a.I(f"v_add_u32 v32, s{sWB}, v32")
        a.I(f"v_xor_b32 v33, v{vg}, v{vn}")
        for j in range(4):
            a.I(f"v_xor_b32 v34, {4*j}, v33"); a.I(f"v_lshl_add_u32 v{KR+j}, v34, 4, v32")
        a.I(f"s_getreg_b32 s{sT0}, hwreg(HW_REG_XCC_ID, 0, 4)")
        a.I("s_waitcnt lgkmcnt(0)")
        a.I(f"s_and_b32 s{sXCC}, s{sXCC}, -16"); a.I(f"s_add_u32 s{sXCC}, s{sXCC}, 16"); a.I(f"s_or_b32 s{sXCC}, s{sXCC}, s{sT0}")
        self.only_w0("L_noflag")
        a.I(f"s_lshl_b32 s{sT0}, s{sX}, 7"); a.I(f"s_lshl_b32 s{sT1}, s{sI}, 2"); a.I(f"s_add_u32 s{sT0}, s{sT0}, s{sT1}"); a.I(f"s_add_u32 s{sT0}, s{sT0}, {TOK}")
        a.I(f"v_mov_b32 v32, s{sXCC}")
        a.wvm(clr)
        a.I("s_mov_b64 exec, 1")
        a.I(f"buffer_store_dword v32, v{vL4}, {S(rWS)}, s{sT0} offen sc1")
        a.I(f"s_mov_b64 exec, {mFULL}")
        self.end_cond("L_noflag")
        a.I(f"s_mov_b32 s{sC}, {f2u(math.log2(math.e) / math.sqrt(128.0))}")
        k1 = -2.0 * math.sqrt(2.0 / math.pi) * math.log2(math.e)
        a.I(f"s_mov_b32 s{sK1}, {f2u(k1)}"); a.I(f"s_mov_b32 s{sK2}, {f2u(k1 * 0.044715)}")
        a.I(f"s_mov_b32 s{sINV}, {f2u(1.0 / 512)}"); a.I(f"s_mov_b32 s{sEPS}, {f2u(1e-5)}")
        a.I(f"s_mov_b32 s{sPLO}, 0x05040100"); a.I(f"s_mov_b32 s{sPHI}, 0x07060302")
        a.I("s_mov_b32 s22, -1"); a.I("s_mov_b32 s23, 0"); a.I("s_mov_b32 s24, 0x55555555"); a.I("s_mov_b32 s25, 0")
        a.I("s_mov_b32 s30, 0xffff"); a.I("s_mov_b32 s31, 0xffff"); a.I("s_mov_b64 s[32:33], 1")
        a.I("s_mov_b32 s76, 0xffff"); a.I("s_mov_b32 s77, 0")
        a.I(f"s_mul_i32 s{sREG}, s{sX}, {2*REGION}")
        a.I(f"s_lshl_b32 s{sYP}, s{sJ}, 10"); a.I(f"s_add_u32 s{sYP}, s{sYP}, {YP}")
        a.I(f"s_mov_b32 s{sPASS}, 0"); a.I(f"s_mov_b32 s{sCNT}, {o.get('timeout', 400000)}"); a.I(f"s_mov_b32 s{sMODE}, 1")
        D = o.get("kd", 2)
        def kstep(t):
            ktile(t)
            if t - D >= 0: kread(t - D)
        if D == 1: kread(0)
        kstep(2); wqid.append(wq(2))
        kstep(3); wqid.append(wq(3))
        a.I(f"s_lshl_b32 s{sT0}, s{sX}, 19"); a.I(f"s_lshl_b32 s{sT1}, s{sW}, 17"); a.I(f"s_add_u32 s{sT0}, s{sT0}, s{sT1}")
        a.I(f"s_lshl_b32 s{sT1}, s{sJ}, 5"); a.I(f"s_add_u32 s{sP0}, s{sT0}, s{sT1}")
        wo = lambda j: wdma(WD + 1, rWO, sP0, j * 32 * 1024, f"s_add_u32 m0, s{sWB}, {WO_OFF + j*1024}")
        kstep(4); wo(0)
        kstep(5)
        a.C("Q1"); self.stamp("q1in")
        a.wvm([bid, xid] + wqid)
        a.I(f"v_lshlrev_b32 v{vXR}, 16, v{vXR}"); a.I(f"v_lshlrev_b32 v{vB1}, 16, v{vB1}"); a.I(f"v_lshlrev_b32 v{vB2}, 16, v{vB2}")
        for r in range(8): a.I(f"v_mov_b32 v{self.XA + r}, v{36 + r}")
        self.ln_prep(WQ_OFF, preset=False)
        self.ln_mm()
        self.only_w0("L_q1nf")
        self.ln_finish()
        a.I("v_mul_f32 v60, v60, v68")
        self.pack_pub(60, 83)
        self.end_cond("L_q1nf")
        self.stamp("q1done")
        kstep(6); wo(1)
        a.C("flags check")
        def flagchk():
            for r in range(4): a.I(f"v_xor_b32 v{28+r}, s{sXCC}, v{28+r}")
            a.I("v_or3_b32 v28, v28, v29, v30"); a.I("v_or_b32 v28, v28, v31")
            a.I("v_cmp_lt_u32 vcc, 15, v28")
        a.I(f"s_mov_b32 s{sP2}, {TOK}")
        fins = f"buffer_load_dwordx4 {V(28)}, v{vL16}, {S(rWS)}, s{sP2} offen sc1"
        fid = a.I(fins)
        kstep(7)
        a.wvm(fid); flagchk()
        a.I("s_cbranch_vccz L_flagok")
        a.L("L_flagpoll"); a.cond += 1
        a.I("s_sleep 8")
        a.I(fins); a.I(f"s_sub_u32 s{sCNT}, s{sCNT}, 1"); a.I("s_cbranch_scc1 L_abort")
        a.wvm0(); flagchk(); a.I("s_cbranch_vccnz L_flagpoll")
        self.end_cond("L_flagok")
        self.stamp("flagok")
        a.I("v_cmp_ne_u32 vcc, 0, v28")
        a.I(f"s_lshl_b32 s{sT0}, s{sX}, 3"); a.I(f"s_nop 0"); a.I(f"s_lshr_b64 vcc, vcc, s{sT0}"); a.I(f"s_and_b32 s{sMODE}, vcc_lo, 0xff")
        if o.get("force_slow"): a.I(f"s_mov_b32 s{sMODE}, 1")
        self.only_w0("L_q1np")
        self.q_soff()
        self.q_publish(83)
        self.end_cond("L_q1np")
        kstep(8); wo(2)
        kstep(9); wo(3)
        a.I(f"s_lshl_b32 s{sT0}, s{sP1}, 14"); a.I(f"s_lshl_b32 s{sT1}, s{sW}, 16"); a.I(f"s_add_u32 s{sT0}, s{sT0}, s{sT1}")
        a.I(f"s_lshl_b32 s{sT1}, s{sJ2}, 5"); a.I(f"s_add_u32 s{sP0}, s{sT0}, s{sT1}")
        a.I(f"s_mov_b32 s{sW2B}, s{sP0}")
        a.I(f"s_mul_i32 s{sT0}, s{sW}, {128*2752}"); a.I(f"s_add_u32 s{sW1B}, s{sT0}, s{sP3}")
        self.wdma = wdma; self.WD = WD
        for t in range(10, 16): kstep(t)
        def prewarm():
            a.I("v_lshrrev_b32 v74, 2, v0"); a.I("v_and_b32 v75, 3, v0"); a.I("v_lshlrev_b32 v75, 7, v75"); a.I("v_min_u32 v75, 348, v75")
            self.mad(74, 74, 2752, 75)
            a.I(f"s_lshl_b32 s{sT0}, s{sI}, 2"); a.I(f"s_add_u32 s{sT0}, s{sT0}, s{sW}")
            a.I(f"s_mul_i32 s{sT1}, s{sT0}, {4*2752}"); a.I(f"s_lshl_b32 s{sT2}, s{sT0W}, 5"); a.I(f"s_add_u32 s{sT1}, s{sT1}, s{sT2}")
            a.I(f"s_mov_b64 exec, {mLO16}")
            a.I(f"buffer_load_dword v95, v74, {S(rW1)}, s{sT1} offen")
            a.I(f"s_mul_i32 s{sT1}, s{sT0}, {12*128}"); a.I(f"s_lshl_b32 s{sT2}, s{sT0W}, 14"); a.I(f"s_add_u32 s{sT1}, s{sT1}, s{sT2}")
            a.I("v_lshlrev_b32 v74, 7, v0")
            a.I("s_mov_b64 exec, 0xfff")
            a.I(f"buffer_load_dword v95, v74, {S(rW2)}, s{sT1} offen")
            a.I(f"s_mov_b64 exec, {mFULL}")
        vid = {}
        def vload(c, e):
            sig, v = c >> 2, c & 3
            t = 4 * v + 2 * sig + (e >> 2)
            if e % 4 == 0:
                a.I(f"s_add_u32 s{sT1}, s{sROT}, {t*4096}"); a.I(f"s_and_b32 s{sP2}, s{sT1}, 0xffff")
            self.thr("tv")
            vid[(c, e)] = a.I(f"buffer_load_dwordx4 {V(gblk(c) + 4*e)}, v{vVO}, {S(rV)}, s{sP2} offen offset:{(e&3)*1024}{KV}")
        a.C("q1 gather")
        for r in range(4): a.I(f"v_mov_b32 v{QC + r}, 0")
        a.I(f"s_lshr_b32 s{sP3}, s{sI}, 2"); a.I(f"s_lshl_b32 s{sP3}, s{sP3}, 8"); a.I(f"s_add_u32 s{sP3}, s{sP3}, s{sREG}")
        qins = f"buffer_load_dwordx4 {V(QC)}, v{vQG}, {S(rWS)}, s{sP3} offen sc1"
        a.I(f"s_mov_b64 exec, {mN4}"); qid = a.I(qins); a.I(f"s_mov_b64 exec, {mFULL}")
        for e in range(4): vload(0, e)
        for t in range(16 - D, 16): kread(t)
        for e in range(4, 8): vload(0, e)
        for j in range(4): self.trread(WOP + 4 * j, vTR, WO_OFF + j * 1024)
        a.wvm(qid)
        self.check(range(QC, QC + 4), 32)
        a.I("s_cbranch_vccz L_q1ok"); a.cond += 1
        self.poll([(mN4, qins)], range(QC, QC + 4), 32)
        self.end_cond("L_q1ok")
        self.stamp("q1ok")
        a.wlg0()
        fl = [lambda e=e: vload(1, e) for e in range(8)]
        cnt = [0]
        def fill():
            cnt[0] += 1
            if fl and cnt[0] % 2 == 0: fl.pop(0)()
        self.qk(fill=fill)
        while fl: fl.pop(0)()
        self.sm_max()
        for s in self.sm_exp(0) + self.sm_exp(1) + self.sm_sum(): a.I(s)
        self.ml_write()
        self.stamp("sm1")
        first = True
        for c in range(8):
            sig, v = c >> 2, c & 3
            if c + 2 < 8:
                if c + 2 >= 5: a.wlg0()
                for e in range(8): vload(c + 2, e)
            if c == o.get("pwc", 3) and o.get("prew", 1): prewarm()
            blk = gblk(c)
            if c == 7:
                self.stamp("g6done")
                a.wlg0(); self.barrier()
                fr = self.f_read(); a.wlg(fr)
                for s in self.f_calc(): a.I(s)
            a.wvm(vid[(c, 7)])
            if c == 7: self.stamp("vlast")
            self.perm_group(blk)
            for rho in range(4):
                b = RB[rho % 2]
                for r in range(4):
                    a.I(f"v_and_b32_dpp v{b+r}, v{P+4*sig+r}, v{vMK+rho} quad_perm:[{v},{v},{v},{v}] {DPP}")
                a.I(f"{MF} {V(SC)}, {V(b)}, {V(blk + 4*rho)}, {'0' if first else V(SC)}")
                a.I(f"{MF} {V(SC+4)}, {V(b)}, {V(blk + 4*(rho+4))}, {'0' if first else V(SC+4)}")
                first = False
            if c < 3:
                for e in range(8): a.I(f"ds_write_b128 v{vLV}, {V(blk + 4*e)} offset:{V_OFF + (8*c+e)*1024}")
        a.I(f"s_mov_b64 exec, {mLO16}")
        a.I(f"ds_write_b128 v{vAW}, {V(SC)}"); a.I(f"ds_write_b128 v{vAW}, {V(SC+4)} offset:16")
        a.I(f"s_mov_b64 exec, {mFULL}")
        self.tail()
        for ls, ins, ld in self.ool:
            a.L(ls); a.I(ins); a.I(f"s_branch {ld}")
        a.L("L_abort"); self.stamp_out(); a.L("L_exit"); a.I("s_endpgm")
        a.raw('.section .rodata,"a"'); a.raw(".p2align 6"); a.raw(f".amdhsa_kernel {KNAME}")
        for s in (".amdhsa_next_free_vgpr 512", ".amdhsa_next_free_sgpr 102", ".amdhsa_accum_offset 256", ".amdhsa_group_segment_fixed_size 0",
                  ".amdhsa_kernarg_size 104", ".amdhsa_user_sgpr_count 2", ".amdhsa_user_sgpr_kernarg_segment_ptr 1", ".amdhsa_system_sgpr_workgroup_id_x 1"):
            a.raw("  " + s)
        a.raw(".end_amdhsa_kernel")
        return a.text()

    def q_soff(self):
        a = self.a
        a.I(f"s_lshr_b32 s{sT0}, s{sI}, 3"); a.I(f"s_lshl_b32 s{sT0}, s{sT0}, 9")
        a.I(f"s_and_b32 s{sT1}, s{sI}, 7"); a.I(f"s_lshl_b32 s{sT1}, s{sT1}, 5")
        a.I(f"s_add_u32 s{sT0}, s{sT0}, s{sT1}"); a.I(f"s_add_u32 s{sT0}, s{sT0}, s{sREG}")
    def q_publish(self, pv):
        a = self.a
        a.I(f"s_mov_b64 exec, {mEVEN}")
        self.publish(f"buffer_store_dword v{pv}, v{vPQ}, {S(rWS)}, s{sT0} offen")
        a.I(f"s_mov_b64 exec, {mFULL}")

    def rstage(self, name, voff, ypoff, xs, addb2):
        a = self.a
        a.I(f"s_lshl_b32 s{sT1}, s{sJ}, 5"); a.I(f"s_add_u32 s{sT0}, s{sT1}, s{sREG}"); a.I(f"s_add_u32 s{sT0}, s{sT0}, {xs}")
        for r in range(8): a.I(f"v_mov_b32 v{28+r}, 0")
        if addb2: a.I(f"v_add_f32 v{vXR}, v{vXR}, v{vB2}")
        if ypoff: a.I(f"s_add_u32 s{sT2}, s{sYP}, {ypoff}"); sb = sT2
        else: sb = sYP
        self.sleep("d_cross", 7)
        self.poll([(mLO32, f"buffer_load_dword v{28+x}, v{voff}, {S(rWS)}, s{sb} offen offset:{x*128} sc1") for x in range(8)], range(28, 36), 36)
        self.stamp(name)
        a.I("v_pk_add_f32 v[28:29], v[28:29], v[30:31]"); a.I("v_pk_add_f32 v[32:33], v[32:33], v[34:35]")
        a.I(f"v_add_f32 v28, v28, v{vXR}")
        a.I("v_pk_add_f32 v[28:29], v[28:29], v[32:33]")
        a.I("v_add_f32 v28, v28, v29")
        self.pack_pub(28, 29)
        a.I(f"s_mov_b64 exec, {mEVEN}")
        if addb2:
            a.I(f"s_cmp_lg_u32 s{sPASS}, 0"); a.I("s_cbranch_scc1 L_final")
        self.publish(f"buffer_store_dword v29, v{vPX}, {S(rWS)}, s{sT0} offen")
        a.I(f"s_mov_b64 exec, {mFULL}")
        a.I(f"v_cvt_pk_bf16_f32 v{vXR}, v28, v28"); a.I(f"v_and_b32 v{vXR}, 0xffff0000, v{vXR}")

    def tail(self):
        a = self.a; o = self.o
        a.L("L_fin")
        a.C("attention finish"); self.stamp("fin")
        a.I(f"s_lshl_b32 s{sT0}, s{sI}, 8"); a.I(f"s_add_u32 s{sT0}, s{sT0}, s{sREG}"); a.I(f"s_add_u32 s{sT0}, s{sT0}, {AP}")
        a.I(f"s_lshl_b32 s{sT1}, s{sI}, 3"); a.I(f"s_add_u32 s{sT1}, s{sT1}, s{sREG}"); a.I(f"s_add_u32 s{sT1}, s{sT1}, {ML}")
        a.wlg0(); self.barrier()
        self.only_w0("L_fin_done")
        ids = [a.I(f"ds_read_b64 {V(28+2*w, 2)}, v{vL8} offset:{w*512}") for w in range(4)]
        a.I(f"s_mov_b64 exec, {mL0}")
        self.publish(f"buffer_store_dwordx2 v[{vM}:{vL}], v{vL4}, {S(rWS)}, s{sT1} offen")
        a.I(f"s_mov_b64 exec, {mFULL}")
        a.wlg(ids[0])
        a.I(f"v_mul_f32 v28, v{F}, v28"); a.I(f"v_mul_f32 v29, v{F}, v29")
        for w in range(1, 4):
            a.wlg(ids[w])
            a.I(f"v_fmac_f32 v28, v{F+w}, v{28+2*w}"); a.I(f"v_fmac_f32 v29, v{F+w}, v{29+2*w}")
        a.I("v_cvt_pk_bf16_f32 v28, v28, v29"); a.I("v_min_u32 v28, -2, v28")
        self.publish(f"buffer_store_dword v28, v{vL4}, {S(rWS)}, s{sT0} offen")
        self.end_cond("L_fin_done")
        self.stamp("finpub")
        a.C("stage O")
        a.I(f"s_lshl_b32 s{sT0}, s{sW}, 11"); a.I(f"s_add_u32 s{sT0}, s{sT0}, s{sREG}"); a.I(f"s_add_u32 s{sT0}, s{sT0}, {AP}")
        a.I(f"s_lshl_b32 s{sT1}, s{sW}, 6"); a.I(f"s_add_u32 s{sT1}, s{sT1}, s{sREG}"); a.I(f"s_add_u32 s{sT1}, s{sT1}, {ML}")
        self.barrier()
        self.sleep("d_e1", 2)
        self.poll([(None, f"buffer_load_dwordx2 v[36:37], v{vMLG}, {S(rWS)}, s{sT1} offen sc1"),
                   (None, f"buffer_load_dwordx4 {V(28)}, v{vAPG}, {S(rWS)}, s{sT0} offen sc1"),
                   (None, f"buffer_load_dwordx4 {V(32)}, v{vAPG}, {S(rWS)}, s{sT0} offen offset:128 sc1")],
                  [36, 37] + list(range(28, 36)), 38)
        self.stamp("e1")
        a.I(f"{MF} {V(40)}, {V(28)}, {V(WOP)}, 0")
        a.I(f"v_max_f32_dpp v38, v36, v36 quad_perm:[1,0,3,2] {DPP}")
        a.I(f"{MF} {V(40)}, {V(32)}, {V(WOP+8)}, {V(40)}")
        for r in range(4): a.I(f"v_mov_b32_dpp v{28+r}, v{28+r} row_shl:8 {DPP}")
        a.I(f"v_max_f32_dpp v38, v38, v38 quad_perm:[2,3,0,1] {DPP}")
        a.I(f"v_mov_b32_dpp v32, v32 row_shl:8 {DPP}")
        a.I(f"{MF} {V(40)}, {V(28)}, {V(WOP+4)}, {V(40)}")
        for r in range(1, 4): a.I(f"v_mov_b32_dpp v{32+r}, v{32+r} row_shl:8 {DPP}")
        a.I("v_sub_f32 v36, v36, v38")
        a.I("v_exp_f32 v36, v36")
        a.I(f"{MF} {V(40)}, {V(32)}, {V(WOP+12)}, {V(40)}")
        a.I("v_mul_f32 v37, v36, v37")
        a.I(f"s_lshl_b32 s{sT0}, s{sX}, 7"); a.I(f"s_add_u32 s{sT0}, s{sT0}, s{sYP}")
        a.I(f"v_add_f32_dpp v37, v37, v37 quad_perm:[1,0,3,2] {DPP}")
        a.I(f"v_add_f32_dpp v37, v37, v37 quad_perm:[2,3,0,1] {DPP}")
        a.I("v_rcp_f32 v37, v37")
        a.I("v_mul_f32 v36, v36, v37")
        a.I(f"v_mul_f32_dpp v38, v36, v40 quad_perm:[0,0,0,0] {DPP}")
        for r in range(1, 4): a.I(f"v_fmac_f32_dpp v38, v36, v{40+r} quad_perm:[{r},{r},{r},{r}] {DPP}")
        a.I(f"s_mov_b64 exec, {mLO32}")
        a.I(f"ds_write_b32 v{vRW}, v38")
        a.I(f"s_mov_b64 exec, {mFULL}")
        a.wlg0(); self.barrier()
        self.only_w0("L_o_done")
        a.I(f"ds_read_b128 {V(40)}, v{vL16}"); a.wlg0()
        a.I("v_pk_add_f32 v[40:41], v[40:41], v[42:43]"); a.I("v_add_f32 v40, v40, v41"); a.I("v_min_u32 v40, -2, v40")
        a.I(f"s_mov_b64 exec, {mLO32}")
        a.I(f"buffer_store_dword v40, v{vL4}, {S(rWS)}, s{sT0} offen sc1")
        a.I(f"s_mov_b64 exec, {mFULL}")
        self.end_cond("L_o_done")
        self.stamp("opub")
        a.I(f"s_cmp_lg_u32 s{sPASS}, 0"); a.I("s_cbranch_scc1 L_nodma"); a.cond += 1
        a.I(f"s_cmp_eq_u32 s{sHCU}, 0"); a.I("s_cbranch_scc1 L_now1")
        for j in range(4): self.wdma(self.WD + 2, rW1, sW1B, j * 32 * 2752, f"s_add_u32 m0, s{sWB}, {W1_OFF + j*1024}")
        a.L("L_now1")
        a.I(f"s_lshl_b32 s{sT1}, s{sW}, 11")
        for j in range(2): self.wdma(self.WD + 1, rW2, sW2B, j * 32 * 1024, f"s_add_u32 m0, s{sT1}, {W2_LDS + j*1024}")
        self.end_cond("L_nodma")
        a.C("stage R")
        self.only_w0("L_r_done")
        self.rstage("e2a", vL4, 0, XSA, False)
        self.end_cond("L_r_done")
        self.stamp("rpub")
        a.C("stage H")
        a.I(f"s_cmp_eq_u32 s{sW}, 0"); a.I("s_cbranch_scc1 L_nowait"); a.wvm0(); a.L("L_nowait")
        self.ln_prep(W1_OFF)
        a.I(f"s_lshl_b32 s{sT0}, s{sW}, 8"); a.I(f"s_add_u32 s{sT0}, s{sT0}, s{sREG}"); a.I(f"s_add_u32 s{sT0}, s{sT0}, {XSA}")
        self.barrier()
        a.I(f"s_cmp_eq_u32 s{sHCU}, 0"); a.I("s_cbranch_scc1 L_h_done"); a.cond += 1
        self.sleep("d_x", 1)
        self.poll([(mN8, f"buffer_load_dwordx4 {V(self.XA)}, v{vXG}, {S(rWS)}, s{sT0} offen sc1")], range(self.XA, self.XA + 4), 60)
        self.stamp("e2b")
        a.I(f"s_sub_u32 s{sT0}, s{sI}, {HCU0}"); a.I(f"s_lshl_b32 s{sT0}, s{sT0}, 5"); a.I(f"s_add_u32 s{sT0}, s{sT0}, s{sREG}"); a.I(f"s_add_u32 s{sT0}, s{sT0}, {HS}")
        self.ln_mm()
        a.I(f"s_cmp_lg_u32 s{sW}, 0"); a.I("s_cbranch_scc1 L_h_done")
        self.ln_finish()
        a.I(f"v_fma_f32 v60, v60, v68, v{vB1}")
        a.I(f"v_mov_b32 v62, s{sK1}")
        a.I("v_mul_f32 v61, v60, v60")
        a.I(f"v_fma_f32 v61, v61, s{sK2}, v62")
        a.I("v_mul_f32 v61, v61, v60")
        a.I("v_exp_f32 v61, v61")
        a.I("v_add_f32 v61, 1.0, v61")
        a.I("v_rcp_f32 v61, v61")
        a.I("v_mul_f32 v60, v60, v61")
        self.pack_pub(60, 61)
        a.I(f"s_mov_b64 exec, {mEVEN}")
        self.publish(f"buffer_store_dword v61, v{vPH}, {S(rWS)}, s{sT0} offen")
        a.I(f"s_mov_b64 exec, {mFULL}")
        self.end_cond("L_h_done")
        self.stamp("hpub")
        a.C("stage X2")
        self.only_w0("L_x2_done")
        for r in range(4): a.I(f"v_mov_b32 v{28 + r}, 0")
        rd = [self.trread(44 + 4 * k, vL8, W2_LDS + k * 1024) for k in range(6)]
        a.I(f"s_add_u32 s{sT0}, s{sREG}, {HS}")
        a.I(f"s_lshl_b32 s{sT1}, s{sJ2}, 10"); a.I(f"s_lshl_b32 s{sT2}, s{sX}, 7"); a.I(f"s_add_u32 s{sT1}, s{sT1}, s{sT2}")
        a.I(f"s_lshl_b32 s{sT2}, s{sPASS}, 15"); a.I(f"s_add_u32 s{sT1}, s{sT1}, s{sT2}"); a.I(f"s_add_u32 s{sT1}, s{sT1}, {YP2}")
        self.sleep("d_h", 0)
        self.poll([(mH, f"buffer_load_dwordx4 {V(28)}, v{vHG}, {S(rWS)}, s{sT0} offen sc1")], range(28, 32), 40)
        self.stamp("e3")
        a.wlg0()
        cur, nxt = 28, 32
        for k in range(6):
            a.I(f"{MF} {V(36)}, {V(cur)}, {V(44 + 4*k)}, {'0' if k == 0 else V(36)}")
            if k < 5:
                for r in range(4): a.I(f"v_mov_b32_dpp v{nxt + r}, v{cur + r} row_shl:2 {DPP}")
                cur, nxt = nxt, cur
        a.I(f"s_mov_b64 exec, {mLO16}")
        a.I("v_min_u32 v36, -2, v36"); a.I("v_min_u32 v37, -2, v37")
        a.I(f"buffer_store_dwordx2 v[36:37], v{vL8}, {S(rWS)}, s{sT1} offen sc1")
        a.I(f"s_mov_b64 exec, {mFULL}")
        self.stamp("xpub")
        a.I(f"s_mul_i32 s{sT0}, s{sPASS}, s{sX}"); a.I(f"s_cmp_lg_u32 s{sT0}, 0"); a.I("s_cbranch_scc1 L_abort")
        a.C("stage R2")
        self.rstage("e3b", vR2, YP2 - YP, XSB, True)
        self.end_cond("L_x2_done")
        self.stamp("r2pub")
        a.I(f"s_cmp_lg_u32 s{sPASS}, 0"); a.I("s_cbranch_scc1 L_abort")
        a.C("stage Q2")
        self.ln_prep(WQ_OFF)
        a.I(f"s_lshl_b32 s{sP0}, s{sW}, 8"); a.I(f"s_add_u32 s{sP0}, s{sP0}, s{sREG}"); a.I(f"s_add_u32 s{sP0}, s{sP0}, {XSB}")
        a.I(f"s_mov_b32 s{sPASS}, 1"); a.I(f"s_add_u32 s{sREG}, s{sREG}, {REGION}"); a.I(f"s_add_u32 s{sYP}, s{sYP}, 32768")
        self.q_soff()
        a.I(f"s_lshr_b32 s{sP3}, s{sI}, 2"); a.I(f"s_lshl_b32 s{sP3}, s{sP3}, 8"); a.I(f"s_add_u32 s{sP3}, s{sP3}, s{sREG}")
        self.barrier()
        self.sleep("d_x", 1)
        self.poll([(mN8, f"buffer_load_dwordx4 {V(self.XA)}, v{vXG}, {S(rWS)}, s{sP0} offen sc1")], range(self.XA, self.XA + 4), 60)
        self.stamp("e4")
        self.ln_mm()
        self.only_w0("L_q2_done")
        self.ln_finish()
        a.I("v_mul_f32 v60, v60, v68")
        self.pack_pub(60, 61)
        self.q_publish(61)
        self.end_cond("L_q2_done")
        self.stamp("qpub")
        a.C("attention 2")
        for r in range(4): a.I(f"v_mov_b32 v{QC + r}, 0")
        self.barrier()
        self.sleep("d_q", 2)
        self.poll([(mN4, f"buffer_load_dwordx4 {V(QC)}, v{vQG}, {S(rWS)}, s{sP3} offen sc1")], range(QC, QC + 4), 32)
        self.stamp("e5")
        lv = []
        cnt = [0]
        def fill():
            cnt[0] += 1
            if cnt[0] > 8:
                for _ in range(3):
                    e = len(lv)
                    lv.append(a.I(f"ds_read_b128 {Ar(128 + 4*e)}, v{vLV} offset:{V_OFF + e*1024}"))
        self.qk(fill=fill, order=(3, 2, 0, 1))
        self.stamp("qk2")
        self.sm_max()
        for s in self.sm_exp(0): a.I(s)
        self.stamp("sm2")
        fl = self.sm_exp(1) + self.sm_sum()
        post = []
        def opnd(c, e):
            return Ar(128 + 32 * c + 4 * e) if c < 3 else V(gblk(c) + 4 * e)
        order = [3, 0, 1, 2, 4, 5, 6, 7]
        def buildA(c, b):
            sig, v = c >> 2, c & 3
            if v == 0: return P + 4 * sig
            for r in range(4): a.I(f"v_mov_b32_dpp v{b+r}, v{P+4*sig+r} row_shl:{v} {DPP}")
            return b
        A = buildA(order[0], RB[0])
        for gi, c in enumerate(order):
            An = None
            for e in range(8):
                if gi == 1 and e == 0: a.wlg(lv[-1])
                a.I(f"{MF} {Ar(224 + 4*e)}, {V(A)}, {opnd(c, e)}, {'0' if gi == 0 else Ar(224 + 4*e)}")
                if e in (2, 3) and gi + 1 < 8:
                    pass
                elif fl:
                    a.I(fl.pop(0))
                    if fl and not fl[0].startswith("v_exp"): a.I(fl.pop(0))
                elif post:
                    a.I(post.pop(0))
                if e == 2 and gi + 1 < 8:
                    An = buildA(order[gi + 1], RB[(gi + 1) % 2])
                if gi == 4 and e == 0:
                    assert not fl
                    self.ml_write()
                if gi == 5 and e == 0:
                    a.wlg0(); self.barrier(); fr = self.f_read()
                if gi == 5 and e == 6:
                    a.wlg(fr); post = self.f_calc()
            if An is not None or gi + 1 < 8: A = An
        while post: a.I(post.pop(0))
        a.I(f"s_mov_b64 exec, {mLO16}")
        for e in range(0, 8, 2):
            a.I(f"ds_write2_b32 v{vAW}, a{224 + 4*e}, a{228 + 4*e} offset0:{e} offset1:{e+1}")
        a.I(f"s_mov_b64 exec, {mFULL}")
        a.I("s_branch L_fin")
        a.L("L_final")
        a.I(f"buffer_store_dword v29, v{vPX}, {S(rOUT)}, s{sT1} offen")
        a.I(f"s_cmp_lg_u32 s{sI}, 0"); a.I("s_cbranch_scc1 L_noepo")
        a.I(f"v_mov_b32 v30, s{sXCC}"); a.I(f"s_mov_b32 s{sT0}, {EPO}"); a.I("s_mov_b64 exec, 1")
        a.I(f"buffer_store_dword v30, v{vL4}, {S(rWS)}, s{sT0} offen")
        a.L("L_noepo")
        if o.get("stamps"):
            a.wvm0(); self.stamp("end")
            a.I("s_branch L_abort")
        a.I("s_endpgm")

if __name__ == "__main__":
    opt = {}
    out = sys.argv[1]
    for kv in sys.argv[2:]:
        k, v = kv.split("="); opt[k] = v.split(",") if k == "stamps" else int(v)
    g = Gen(opt)
    t = g.build()
    open(out, "w").write(t)
    print("lines", t.count("\n"), "auto nops", g.a.nops)
```

```python
import sys, math, struct
from asmlib import Asm
KNAME = "interleave_layers__gqa_block_cached__dense_activation_gelu__decode_kernel"
HEADER = open("interleave_layers__gqa_block_cached__dense_activation_gelu__decode.s.ref").read().split("; Override launch")[0]

MISC = 0; ML_LDS = 2048; W2_LDS = 5120; WBASE0 = 13312; WAREA = 36864
WQ_OFF = 0; WO_OFF = 4096; W1_OFF = 8192; V_OFF = 12288
REGION = 24576; QS = 0; AP = 2048; ML = 10240; XSA = 10496; XSB = 12544; HS = 14592
YP = 393216; YP2 = 458752; TOK = 0xA0000; EPO = 0xA0400; WS_BYTES = 0xA0800
sW, sX, sI, sREG, sYP, sMODE, sPASS, sCNT, sWB = 3, 4, 5, 6, 7, 9, 10, 11, 12
sT0, sT1, sT2, sPLO, sPHI, sJ, sROT = 13, 14, 15, 16, 17, 18, 19
mFULL, mLO32, mEVEN, mN8, mN4, mG02, mL0, mH, mLO16 = "s[20:21]", "s[22:23]", "s[24:25]", "s[26:27]", "s[28:29]", "s[30:31]", "s[32:33]", "s[34:35]", "s[76:77]"
rK, rV, rWQ, rWO, rW1, rW2, rWS, rT, rDBG, rOUT = 36, 40, 44, 48, 52, 56, 60, 64, 68, 72
sC, sXCC, sHCU, sJ2 = 78, 79, 80, 81
sK1, sK2, sINV, sEPS = 82, 83, 84, 85
sBUR = 8
sW2B, sW1B, sT0W = 66, 67, 87
sP0, sP1, sP2, sP3 = 86, 87, 88, 89
def S(r): return f"s[{r}:{r+3}]"
def V(r, n=4): return f"v[{r}:{r+n-1}]"
def Ar(r, n=4): return f"a[{r}:{r+n-1}]"
DPP = "row_mask:0xf bank_mask:0xf"
MF = "v_mfma_f32_16x16x32_bf16"
vTR, vB1, vB2, vXR, vXG, vPX, vPQ, vPH, vAPG, vMLG, vQG, vHG, vL4, vR2, vL8, vL16, vRW, vAW, vCS, vSQ, vSM, vLV, vIDX, vPW, vPR, vM01 = range(1, 27)
vVO = vL16
QC = 28; QB = (32, 36); RB = (40, 44); SC = 48; vM, vL = 56, 57; PA = 28; F = 58; FL = 48; ACC = 64; WOP = 64
BLKA, BLKB, HF = 96, 160, 224
P_LDS = 2560
ORED = 4608
SMF = "v_smfmac_f32_16x16x64_bf16"
HCU0 = 16
f2u = lambda x: "0x%08x" % struct.unpack("<I", struct.pack("<f", x))[0]
def sgblk(sg): return (BLKA, BLKB)[sg & 1]

class Gen:
    def __init__(self, opt):
        self.a = Asm(); self.o = opt; self.lab = 0; self.ool = []; self.ool2 = []
    def nl(self, p):
        self.lab += 1; return f"L_{p}_{self.lab}"
    def stamp(self, name):
        st = self.o.get("stamps", [])
        a = self.a
        hits = [k for k, x in enumerate(st) if x.split("@")[0] == name]
        if not hits: return
        a.I(("s_memtime" if self.o.get("cyc") else "s_memrealtime") + " s[64:65]"); a.I("s_waitcnt lgkmcnt(0)")
        for k in hits:
            if "@" in st[k]:
                a.I(f"s_cmp_eq_u32 s{sPASS}, {st[k].split('@')[1]}"); a.I(f"s_cselect_b32 s{90+k}, s64, s{90+k}")
            else:
                a.I(f"s_mov_b32 s{90+k}, s64")
    def stamp_out(self):
        if not self.o.get("stamps"): return
        a = self.a
        a.I("s_mov_b64 exec, 1")
        a.I(f"s_lshl_b32 s64, s2, 2"); a.I(f"s_add_u32 s64, s64, s{sW}"); a.I("s_lshl_b32 s64, s64, 6"); a.I("s_add_u32 s64, s64, 0x80000")
        a.I("v_mov_b32 v44, 0")
        for k in range(12): a.I(f"v_mov_b32 v{28+k}, s{90+k}")
        for k in range(3): a.I(f"buffer_store_dwordx4 {V(28+4*k)}, v44, {S(rWS)}, s64 offen offset:{16*k}")
        if self.o.get("dbgst"):
            a.I(f"s_lshl_b32 s64, s2, 2"); a.I(f"s_add_u32 s64, s64, s{sW}"); a.I("s_cmp_lg_u32 s64, 0"); a.I("s_cbranch_scc1 L_exit")
            a.I("s_nop 1")
            for k in range(1, 12): a.I(f"v_subrev_u32 v{28+k}, s90, v{28+k}")
            for k in range(3): a.I(f"buffer_store_dwordx4 {V(28+4*k)}, v44, {S(rDBG)}, 0 offen offset:{16*k}")

    def publish(self, instr, precmp=False):
        a = self.a
        if isinstance(instr, str): instr = [instr]
        ls, ld = self.nl("slow"), self.nl("pubd")
        if not precmp: a.I(f"s_cmp_lg_u32 s{sMODE}, 0")
        a.I(f"s_cbranch_scc1 {ls}")
        a.cond += 1
        for x in instr: a.I(x)
        a.cond -= 1
        a.L(ld)
        self.ool.append((ls, [x + (" sc1" if x.startswith("buffer_store") else "") for x in instr], ld))
    def thr(self, key):
        a = self.a; T = self.o.get(key, 0); TB = self.o.get(key + "b", T)
        if not T: return
        if TB == T:
            a.I(f"s_waitcnt vmcnt({T})"); return
        l = self.nl("thr")
        if TB: a.I(f"s_waitcnt vmcnt({TB})")
        a.I(f"s_cmp_lg_u32 s{sBUR}, 0"); a.I(f"s_cbranch_scc1 {l}"); a.I(f"s_waitcnt vmcnt({T})"); a.L(l)
    def barrier(self): self.a.I("s_barrier")
    def only_w0(self, lab):
        a = self.a
        a.I(f"s_cmp_lg_u32 s{sW}, 0"); a.I(f"s_cbranch_scc1 {lab}"); a.cond += 1
    def end_cond(self, lab):
        self.a.cond -= 1; self.a.L(lab)
    def poll(self, loads, regs, vt, depth=1, gap=2):
        a = self.a
        def issue():
            cur = None
            for m, ins in loads:
                if m != cur: a.I(f"s_mov_b64 exec, {m or mFULL}"); cur = m
                a.I(ins)
            if cur is not None: a.I(f"s_mov_b64 exec, {mFULL}")
        for _ in range(depth - 1):
            issue()
            if gap: a.I(f"s_sleep {gap}")
        l = self.nl("poll"); a.L(l)
        issue()
        a.I(f"s_sub_u32 s{sCNT}, s{sCNT}, 1"); a.I("s_cbranch_scc1 L_abort")
        a.I(f"s_waitcnt vmcnt({(depth - 1) * len(loads)})")
        self.check(regs, vt)
        if self.o.get("bo"):
            lr = self.nl("retry")
            a.I(f"s_cbranch_vccnz {lr}")
            self.ool2.append((lr, l))
        else:
            a.I(f"s_cbranch_vccnz {l}")
    def check(self, regs, vt):
        a = self.a; r = list(regs)
        if len(r) % 2 == 1: a.I(f"v_max3_u32 v{vt}, v{r[0]}, v{r[1]}, v{r[2]}"); r = r[3:]
        else: a.I(f"v_max_u32 v{vt}, v{r[0]}, v{r[1]}"); r = r[2:]
        for k in range(0, len(r), 2): a.I(f"v_max3_u32 v{vt}, v{r[k]}, v{r[k+1]}, v{vt}")
        a.I(f"v_cmp_eq_u32 vcc, -1, v{vt}")
    def sleep(self, key, dflt):
        n = self.o.get(key, dflt)
        if n: self.a.I(f"s_sleep {n}")
    def trread(self, dst, addr, off):
        a = self.a
        a.I(f"ds_read_b64_tr_b16 {V(dst,2)}, v{addr} offset:{off}")
        return a.I(f"ds_read_b64_tr_b16 {V(dst+2,2)}, v{addr} offset:{off+512}")
    def pack_pub(self, val, tmp):
        a = self.a
        a.I(f"v_mov_b32_dpp v{tmp}, v{val} quad_perm:[1,1,3,3] {DPP}")
        a.I(f"v_cvt_pk_bf16_f32 v{tmp}, v{val}, v{tmp}")
        a.I(f"v_min_u32 v{tmp}, -2, v{tmp}")
    def mad(self, dst, x, c, y):
        a = self.a
        a.I(f"s_movk_i32 s{sT2}, {c}"); a.I(f"v_mad_u32_u24 v{dst}, v{x}, s{sT2}, v{y}")

    XA, XT, GA, TA, WB, XU = 28, 32, 36, 40, 44, 76
    RED = 0
    def ln_prep(self, off, preset=True):
        a = self.a
        if preset:
            for r in range(8): a.I(f"v_mov_b32 v{self.XA + r}, 0x3f803f80")
        for r in range(4): a.I(f"v_mov_b32 v{self.XU + r}, 0x3f803f80")
        self.rd = [self.trread(self.WB + 4 * j, vTR, off + j * 1024) for j in range(4)]
    def ln_mm(self):
        a = self.a
        regs = [self.XA, self.XT, self.XU, self.XT]
        base = self.RED // 256
        for j in range(4):
            c = "0" if j == 0 else None
            cur = regs[j]
            if j == 0: a.wlg(self.rd[3])
            a.I(f"{MF} {V(self.TA)}, {V(cur)}, {V(self.WB + 4*j)}, {c or V(self.TA)}")
            if j == 0:
                for r in range(4): a.I(f"v_mov_b32_dpp v{self.XT + r}, v{self.XA + r} row_shl:2 {DPP}")
            a.I(f"{MF} {V(self.GA)}, {V(cur)}, {V(cur)}, {c or V(self.GA)}")
            if j == 0:
                for r in range(4): a.I(f"v_mov_b32_dpp v{self.XU + r}, v{self.XA + r} row_shl:4 {DPP}")
            if j == 1:
                for r in range(4): a.I(f"v_mov_b32_dpp v{self.XT + r}, v{self.XA + r} row_shl:6 {DPP}")
        a.I(f"s_mov_b64 exec, {mG02}")
        a.I(f"ds_write2st64_b32 v{vRW}, v{self.TA}, v{self.TA+1} offset0:{base} offset1:{base+1}")
        a.I(f"ds_write2st64_b32 v{vRW}, v{self.GA}, v{self.GA+1} offset0:{base+4} offset1:{base+5}")
        a.I(f"s_mov_b64 exec, {mFULL}")
        a.wlg0(); self.barrier()
    def ln_finish(self):
        a = self.a
        i_sq = a.I(f"ds_read_b128 {V(68)}, v{vSQ} offset:1024")
        i_sm = a.I(f"ds_read_b128 {V(72)}, v{vSM} offset:{1024+512}")
        i_raw = a.I(f"ds_read_b128 {V(60)}, v{vL16}")
        i_cs = a.I(f"ds_read_b128 {V(64)}, v{vCS} offset:512")
        a.I(f"v_mov_b32 v44, s{sEPS}")
        a.wlg(i_sm)
        a.I("v_pk_add_f32 v[68:69], v[68:69], v[70:71]")
        a.I("v_pk_add_f32 v[72:73], v[72:73], v[74:75]")
        a.I("v_add_f32 v68, v68, v69")
        a.I("v_add_f32 v72, v72, v73")
        a.I(f"v_mul_f32 v72, s{sINV}, v72")
        a.I(f"v_fma_f32 v68, v68, s{sINV}, v44")
        a.I("v_fma_f32 v68, -v72, v72, v68")
        a.I(f"v_max_f32 v68, s{sEPS}, v68")
        a.I("v_rsq_f32 v68, v68")
        a.wlg(i_cs)
        a.I("v_pk_add_f32 v[60:61], v[60:61], v[62:63]")
        a.I("v_pk_add_f32 v[64:65], v[64:65], v[66:67]")
        a.I("v_add_f32 v60, v60, v61")
        a.I("v_add_f32 v64, v64, v65")
        a.I("v_fma_f32 v60, -v72, v64, v60")

    def qk_prep(self, qc=True):
        a = self.a
        if qc:
            for r in range(4): a.I(f"v_mov_b32 v{QC + r}, 0")
        for u in range(4):
            for r in range(2): a.I(f"v_mov_b32 v{SC + 4*u + r}, 0")
        for e in range(8):
            for r in range(2): a.I(f"v_mov_b32 v{ACC + 4*e + r}, 0")
    def qk(self, fill=None):
        a = self.a
        def base(H, rs):
            for r in rs: a.I(f"v_and_b32_dpp v{QB[H]+r}, v{QC+r}, v{vM01} quad_perm:[{2*H},{2*H+1},0,0] {DPP}")
        base(0, range(4))
        steps = [(G, H) for G in range(4) for H in range(2)]
        def reg(n):
            G, H = steps[n]
            return QB[H] if G == 0 else RB[n % 2]
        def bld(n, rs):
            G, H = steps[n]
            if G == 0: base(1, rs); return
            for r in rs: a.I(f"v_mov_b32_dpp v{RB[n%2]+r}, v{QB[H]+r} row_shr:{4*G} {DPP} bound_ctrl:0")
        for n, (G, H) in enumerate(steps):
            for u in range(4):
                t = 8 * (u >> 1) + 2 * G + (u & 1)
                a.I(f"{SMF} {V(SC+4*u)}, {V(reg(n))}, {Ar(16*t + 8*H, 8)}, v{vIDX}")
                if n + 1 < 8 and u < 2: bld(n + 1, (0, 1) if u == 0 else (2, 3))
                if fill and u >= 2: fill(n)
    def xlane(self, r, t, op):
        L = []
        L.append(f"{op}_dpp v{r}, v{r}, v{r} quad_perm:[1,0,3,2] {DPP}")
        L.append(f"{op}_dpp v{r}, v{r}, v{r} quad_perm:[2,3,0,1] {DPP}")
        L.append(f"{op}_dpp v{r}, v{r}, v{r} row_ror:4 {DPP}")
        L.append(f"{op}_dpp v{r}, v{r}, v{r} row_ror:8 {DPP}")
        L.append(f"v_mov_b32 v{t}, v{r}")
        L.append(f"v_permlane32_swap_b32 v{t}, v{r}")
        L.append(f"{op} v{r}, v{r}, v{t}")
        L.append(f"v_mov_b32 v{t}, v{r}")
        L.append(f"v_permlane16_swap_b32 v{t}, v{r}")
        L.append(f"{op} v{r}, v{r}, v{t}")
        return L
    def softmax(self, early_m):
        a = self.a; s = SC
        for u in range(4): a.I(f"v_add_f32 v{s+u}, v{s+4*u}, v{s+4*u+1}")
        a.I(f"v_max_f32 v{vM}, v{s}, v{s+1}")
        a.I(f"v_max3_f32 v{vM}, v{s+2}, v{s+3}, v{vM}")
        for x in self.xlane(vM, vL, "v_max_f32"): a.I(x)
        a.I(f"v_mul_f32 v{vM}, s{sC}, v{vM}")
        for k in range(4): a.I(f"v_fma_f32 v{s+k}, v{s+k}, s{sC}, -v{vM}")
        for k in range(4): a.I(f"v_exp_f32 v{s+k}, v{s+k}")
        a.I(f"v_cvt_pk_bf16_f32 v{s+4}, v{s}, v{s+1}"); a.I(f"v_cvt_pk_bf16_f32 v{s+5}, v{s+2}, v{s+3}")
        a.I(f"ds_write2_b32 v{vPW}, v{s+4}, v{s+5} offset0:0 offset1:64")
        a.I(f"s_mov_b64 exec, {mL0}"); a.I(f"ds_write_b32 v{vRW}, v{vM} offset:{ML_LDS}"); a.I(f"s_mov_b64 exec, {mFULL}")
        a.I(f"v_pk_add_f32 v[{s}:{s+1}], v[{s}:{s+1}], v[{s+2}:{s+3}]")
        a.I(f"v_add_f32 v{vL}, v{s}, v{s+1}")
        a.I(f"v_mov_b32 v62, 0")
        a.wlg0()
        if early_m: self.barrier()
        order = (2, 3, 0, 1) if early_m else (0, 1, 2, 3)
        ids = {g: a.I(f"ds_read_b128 {V(PA + 4*g)}, v{vPR} offset:{g*128}") for g in order}
        return ids, self.xlane(vL, 63, "v_add_f32")
    def attn_out(self):
        a = self.a
        for e in range(8): a.I(f"v_add_f32 v{44 + e}, v{ACC + 4*e}, v{ACC + 4*e + 1}")
        a.I(f"s_mov_b64 exec, {mLO16}")
        a.I(f"ds_write_b128 v{vAW}, {V(44)}"); a.I(f"ds_write_b128 v{vAW}, {V(48)} offset:16")
        a.I(f"s_mov_b64 exec, {mFULL}")
        for j in range(4): self.trread(WOP + 4 * j, vTR, WO_OFF + j * 1024)
    def l_write(self):
        a = self.a
        a.I(f"s_mov_b64 exec, {mL0}"); a.I(f"ds_write_b32 v{vRW}, v{vL} offset:{ML_LDS + 16}"); a.I(f"s_mov_b64 exec, {mFULL}")
    def f_read(self):
        return self.a.I(f"ds_read_b128 {V(F)}, v62 offset:{ML_LDS}")
    def f_calc(self):
        L = [f"v_max3_f32 v{vM}, v{F}, v{F+1}, v{F+2}", f"v_max_f32 v{vM}, v{vM}, v{F+3}"]
        for k in range(4): L.append(f"v_sub_f32 v{F+k}, v{F+k}, v{vM}")
        for k in range(4): L.append(f"v_exp_f32 v{F+k}, v{F+k}")
        L.append(f"v_min_u32 v{vM}, -2, v{vM}")
        return L
    def perm_half(self, blk, h, t1=54, t2=55):
        a = self.a
        R = lambda s, d: blk + 8 * s + 4 * h + d
        lo = lambda dst, x, y: a.I(f"v_perm_b32 v{dst}, v{y}, v{x}, s{sPLO}")
        hi = lambda dst, x, y: a.I(f"v_perm_b32 v{dst}, v{y}, v{x}, s{sPHI}")
        for p in range(4):
            x, y = R(2*p, p), R(2*p+1, p)
            lo(t1, x, y); hi(y, x, y); a.I(f"v_mov_b32 v{x}, v{t1}")
        for p in range(4):
            for d in range(p + 1, 4):
                ax, ay = R(2*p, d), R(2*p+1, d); bx, by = R(2*d, p), R(2*d+1, p)
                lo(t1, ax, ay); hi(t2, ax, ay); lo(ax, bx, by); hi(ay, bx, by)
                a.I(f"v_mov_b32 v{bx}, v{t1}"); a.I(f"v_mov_b32 v{by}, v{t2}")

    def build(self):
        a = self.a; o = self.o
        KV = "" if o.get("kvdef") else " nt"
        WP = " nt" if o.get("wpol") else ""
        a.raw(HEADER.rstrip())
        a.raw("; @launch grid=(256,1,1) block=(256,1,1) lds=163840")
        a.raw('.amdgcn_target "amdgcn-amd-amdhsa--gfx950"')
        a.raw(".text"); a.raw(f".globl {KNAME}"); a.raw(".p2align 8"); a.raw(f".type {KNAME},@function"); a.raw(f"{KNAME}:")
        a.I("s_cmp_ge_u32 s2, 256"); a.I("s_cbranch_scc1 L_exit")
        if o.get("stamps"): a.I(("s_memtime" if o.get("cyc") else "s_memrealtime") + " s[8:9]")
        a.I("s_load_dwordx16 s[76:91], s[0:1], 0")
        a.I("s_load_dwordx8 s[92:99], s[0:1], 64")
        a.I("s_load_dwordx2 s[100:101], s[0:1], 96")
        a.I("v_lshrrev_b32 v1, 6, v0")
        a.I(f"v_readfirstlane_b32 s{sW}, v1")
        a.I("v_and_b32 v0, 63, v0")
        a.I(f"s_and_b32 s{sX}, s2, 7"); a.I(f"s_lshr_b32 s{sI}, s2, 3")
        vg, vn = 28, 29
        KD = 84; KR = 88; WD = 92
        a.I(f"v_lshrrev_b32 v{vg}, 4, v0"); a.I(f"v_and_b32 v{vn}, 15, v0")
        a.I(f"v_lshlrev_b32 v{vVO}, 4, v0")
        a.I(f"v_xor_b32 v30, v{vg}, v{vn}")
        for q in range(4):
            a.I(f"v_xor_b32 v31, {4*q}, v30"); a.I(f"v_lshlrev_b32 v31, 4, v31")
            a.I(f"v_lshl_add_u32 v31, v{vg}, 8, v31"); a.I(f"v_add_u32 v{KD+q}, {q*1024}, v31")
        a.I(f"s_bfe_u32 s{sT0}, s{sI}, 0x10002"); a.I(f"s_lshl_b32 s{sT0}, s{sT0}, 5")
        a.I(f"s_lshl_b32 s{sT1}, s{sX}, 2"); a.I(f"s_add_u32 s{sT0}, s{sT0}, s{sT1}")
        a.I(f"s_lshr_b32 s{sT1}, s{sI}, 3"); a.I(f"s_add_u32 s{sT0}, s{sT0}, s{sT1}")
        a.I(f"s_lshl_b32 s{sT0}, s{sT0}, 4")
        a.I(f"s_and_b32 s{sT1}, s{sI}, 3"); a.I(f"s_lshl_b32 s{sT1}, s{sT1}, 2"); a.I(f"s_add_u32 s{sT0}, s{sT0}, s{sT1}")
        a.I(f"s_add_u32 s{sT0}, s{sT0}, s{sW}"); a.I(f"s_lshl_b32 s{sT0}, s{sT0}, 16")
        a.I(f"s_lshl_b32 s{sROT}, s2, 2"); a.I(f"s_add_u32 s{sROT}, s{sROT}, s{sW}")
        a.I(f"s_mul_i32 s{sROT}, s{sROT}, 0x9E3779B1"); a.I(f"s_lshr_b32 s{sROT}, s{sROT}, 28"); a.I(f"s_lshl_b32 s{sROT}, s{sROT}, 12")
        a.I(f"s_mul_i32 s{sWB}, s{sW}, {WAREA}"); a.I(f"s_add_u32 s{sWB}, s{sWB}, {WBASE0}")
        a.I(f"s_mov_b32 s{rK+2}, 65536"); a.I(f"s_mov_b32 s{rK+3}, 0x20000")
        a.I("s_waitcnt lgkmcnt(0)")
        a.I(f"s_add_u32 s{rK}, s78, s{sT0}"); a.I(f"s_addc_u32 s{rK+1}, s79, 0")
        kid = {}
        def ktile(t):
            if t >= 6: a.I("s_waitcnt lgkmcnt(4)")
            a.I(f"s_add_u32 s{sT1}, s{sROT}, {t*4096}"); a.I(f"s_and_b32 s{sT1}, s{sT1}, 0xffff")
            for q in range(4):
                if t >= 2: self.thr("tk")
                a.I(f"s_add_u32 m0, s{sWB}, {V_OFF + (t % 6) * 4096 + q * 1024}")
                kid[t] = a.I(f"buffer_load_dwordx4 v{KD+q}, {S(rK)}, s{sT1} offen{KV} lds")
        def kread(t):
            a.wvm(kid[t])
            for j in range(4): a.I(f"ds_read_b128 {Ar(16*t+4*j)}, v{KR+j} offset:{V_OFF + (t % 6) * 4096}")
        ktile(0)
        a.I(f"s_add_u32 s{rV}, s80, s{sT0}"); a.I(f"s_addc_u32 s{rV+1}, s81, 0")
        wsz = WS_BYTES
        a.I(f"s_load_dword s{sXCC}, s[100:101], {EPO}")
        for r, sz in ((rV, 65536), (rWQ, 1 << 22), (rWO, 1 << 22), (rW1, 512 * 2752), (rW2, 1376 * 1024), (rWS, wsz), (rT, 2048), (rDBG, 256), (rOUT, 2048)):
            a.I(f"s_mov_b32 s{r+2}, {sz}"); a.I(f"s_mov_b32 s{r+3}, 0x20000")
        for r, p in ((rWS, 100), (rT, 76), (rWQ, 82), (rWO, 84), (rW1, 88), (rW2, 92), (rDBG, 98), (rOUT, 96)):
            a.I(f"s_mov_b64 s[{r}:{r+1}], s[{p}:{p+1}]")
        self.only_w0("L_noclear")
        for r in range(4): a.I(f"v_mov_b32 v{32+r}, -1")
        a.I(f"s_lshl_b32 s{sT1}, s2, 11")
        a.I(f"buffer_store_dwordx4 {V(32)}, v{vVO}, {S(rWS)}, s{sT1} offen sc1")
        clr = a.I(f"buffer_store_dwordx4 {V(32)}, v{vVO}, {S(rWS)}, s{sT1} offen offset:1024 sc1")
        self.end_cond("L_noclear")
        a.I("v_bfe_u32 v30, v0, 3, 2"); a.I("v_lshrrev_b32 v31, 5, v0"); a.I("v_lshl_add_u32 v30, v30, 1, v31")
        a.I("v_bfe_u32 v31, v0, 1, 2"); a.I("v_lshl_add_u32 v30, v30, 2, v31")
        a.I("v_and_b32 v31, 1, v0"); a.I("v_lshlrev_b32 v31, 4, v31")
        self.mad(WD, 30, 8192, 31); self.mad(WD + 1, 30, 1024, 31); self.mad(WD + 2, 30, 2752, 31)
        a.I(f"s_lshl_b32 s{sT0}, s{sW}, 20"); a.I(f"s_lshl_b32 s{sT1}, s{sX}, 10"); a.I(f"s_add_u32 s{sT0}, s{sT0}, s{sT1}")
        a.I(f"s_lshl_b32 s{sT1}, s{sI}, 5"); a.I(f"s_add_u32 s{sP0}, s{sT0}, s{sT1}")
        def wdma(voff, srd, sbase, goff, lds_expr):
            if goff: a.I(f"s_add_u32 s{sT0}, s{sbase}, {goff}"); sb = sT0
            else: sb = sbase
            a.I(lds_expr)
            if (o.get("nowq") and srd == rWQ) or (o.get("nowo") and srd == rWO): return xid0[0]
            return a.I(f"buffer_load_dwordx4 v{voff}, {S(srd)}, s{sb} offen{WP} lds")
        xid0 = [kid[0]]
        wq = lambda j: wdma(WD, rWQ, sP0, j * 32 * 8192, f"s_add_u32 m0, s{sWB}, {WQ_OFF + j*1024}")
        wqid = [wq(0)]
        a.I(f"v_bfe_u32 v30, v0, 4, 1")
        a.I(f"v_lshlrev_b32 v31, 1, v{vn}")
        self.mad(vPX, 30, 1024, 31); self.mad(vPH, 30, 384, 31)
        a.I("v_bfe_u32 v32, v0, 2, 2"); a.I("v_bfe_u32 v33, v0, 1, 1"); a.I("v_lshl_add_u32 v32, v33, 2, v32"); a.I("v_lshlrev_b32 v32, 2, v32")
        self.mad(vPQ, 30, 256, 32)
        a.I(f"v_add_u32 v{vR2}, v31, v30"); a.I(f"v_lshlrev_b32 v{vR2}, 2, v{vR2}")
        a.I(f"v_mul_u32_u24 v{vSQ}, 272, v30"); a.I(f"v_lshlrev_b32 v{vSM}, 4, v30"); a.I(f"v_lshlrev_b32 v{vCS}, 4, v{vn}")
        a.I(f"v_and_b32 v32, 3, v0"); a.I(f"v_lshl_add_u32 v32, v30, 2, v32"); a.I(f"v_lshlrev_b32 v{vMLG}, 3, v32")
        a.I("v_bfe_u32 v32, v0, 1, 3"); a.I(f"v_lshl_add_u32 v32, v32, 2, v{vg}"); a.I("v_lshlrev_b32 v32, 4, v32"); a.I("v_and_b32 v33, 1, v0")
        self.mad(vXG, 33, 1024, 32); self.mad(vHG, 33, 384, 32)
        for r in range(8): a.I(f"v_mov_b32 v{36 + r}, 0x3f803f80")
        a.I(f"v_cmp_gt_u32 {mN8}, 8, v{vn}"); a.I(f"v_cmp_gt_u32 {mN4}, 4, v{vn}")
        a.I(f"s_mov_b64 {mFULL}, -1")
        a.I(f"s_add_u32 s{sJ}, s{sI}, {o.get('rj', 8)}"); a.I(f"s_and_b32 s{sJ}, s{sJ}, 31")
        a.I(f"s_add_u32 s{sJ2}, s{sI}, {o.get('rj2', 16)}"); a.I(f"s_and_b32 s{sJ2}, s{sJ2}, 31")
        a.I(f"s_lshl_b32 s{sT0}, s{sW}, 8")
        a.I(f"s_mov_b64 exec, {mN8}")
        xid = a.I(f"buffer_load_dwordx4 {V(36)}, v{vXG}, {S(rT)}, s{sT0} offen")
        a.I(f"s_mov_b64 exec, {mFULL}")
        a.I(f"s_lshl_b32 s{sT0}, s{sJ}, 5")
        a.I(f"buffer_load_ushort v{vXR}, v{vPX}, {S(rT)}, s{sT0} offen")
        a.I(f"s_mov_b64 s[{rT}:{rT+1}], s[94:95]"); a.I(f"s_mov_b32 s{rT+2}, 1024")
        a.I(f"buffer_load_ushort v{vB2}, v31, {S(rT)}, s{sT0} offen")
        a.I(f"s_mul_i32 s{sP1}, s{sX}, 11"); a.I(f"s_max_u32 s{sT0}, s{sX}, 6"); a.I(f"s_sub_u32 s{sT0}, s{sT0}, 6"); a.I(f"s_sub_u32 s{sP1}, s{sP1}, s{sT0}")
        a.I(f"s_sub_u32 s{sP2}, s{sI}, {HCU0}")
        a.I(f"s_cmp_lt_u32 s{sX}, 6"); a.I(f"s_cselect_b32 s{sT0}, 11, 10")
        a.I(f"s_cselect_b32 s34, 0x0fff0fff, 0x03ff03ff") if False else None
        a.I("s_mov_b32 s35, 0x03ff03ff"); a.I("s_cselect_b32 s34, 0x0fff0fff, s35")
        a.I(f"s_cmp_lt_u32 s{sP2}, s{sT0}"); a.I(f"s_cselect_b32 s{sHCU}, 1, 0")
        a.I(f"s_add_u32 s{sP3}, s{sP1}, s{sP2}"); a.I(f"s_lshl_b32 s{sP3}, s{sP3}, 5")
        a.I(f"s_mov_b64 s[{rT}:{rT+1}], s[90:91]"); a.I(f"s_mov_b32 s{rT+2}, 2752")
        bid = a.I(f"buffer_load_ushort v{vB1}, v31, {S(rT)}, s{sP3} offen")
        ktile(1)
        wqid.append(wq(1))
        if o.get("stamps"):
            for k in range(12): a.I(f"s_mov_b32 s{90+k}, 0")
            for k, x in enumerate(o["stamps"]):
                if x == "start": a.I(f"s_mov_b32 s{90+k}, s8")
        a.I(f"s_lshr_b32 s{sT0}, s{sI}, 2"); a.I(f"s_cmp_eq_u32 s{sT0}, 3"); a.I(f"s_cselect_b32 s{sBUR}, 1, 0")
        a.I(f"s_lshr_b32 s{sT0}, s{sJ}, 2"); a.I(f"s_cmp_eq_u32 s{sT0}, 3"); a.I(f"s_cselect_b32 s{sBUR}, 1, s{sBUR}")
        if o.get("bur2", 0):
            a.I(f"s_lshr_b32 s{sT0}, s{sJ2}, 2"); a.I(f"s_cmp_eq_u32 s{sT0}, 3"); a.I(f"s_cselect_b32 s{sBUR}, 1, s{sBUR}")
        a.I("v_and_b32 v32, 7, v0"); a.I("v_bfe_u32 v33, v0, 3, 1"); a.I("v_lshl_add_u32 v32, v32, 2, v33")
        a.I(f"v_lshl_add_u32 v32, v32, 2, v{vg}"); a.I(f"v_lshlrev_b32 v{vAPG}, 4, v32")
        a.I("v_bfe_u32 v32, v0, 1, 1"); a.I(f"v_lshl_add_u32 v32, v32, 2, v{vg}"); a.I("v_and_b32 v33, 1, v0"); a.I("v_lshl_add_u32 v32, v32, 1, v33"); a.I(f"v_lshlrev_b32 v{vQG}, 4, v32")
        a.I(f"v_mov_b32 v34, 0xeeee"); a.I(f"v_mov_b32 v35, 0x4444"); a.I("v_cmp_eq_u32 vcc, 1, v33"); a.I(f"v_cndmask_b32 v{vIDX}, v35, v34, vcc")
        a.I(f"v_cmp_gt_u32 vcc, 2, v{vn}"); a.I(f"v_cndmask_b32 v{vM01}, 0, -1, vcc")
        a.I(f"s_lshl_b32 s{sT0}, s{sW}, 9"); a.I(f"s_add_u32 s{sT0}, s{sT0}, {P_LDS}")
        a.I(f"v_lshl_add_u32 v32, v{vg}, 1, v33"); a.I(f"v_lshl_add_u32 v{vPR}, v32, 4, s{sT0}")
        a.I("v_lshrrev_b32 v32, 5, v0"); a.I("v_bfe_u32 v34, v0, 4, 1"); a.I("v_lshl_add_u32 v32, v32, 1, v34")
        a.I("v_bfe_u32 v34, v0, 1, 1"); a.I("v_lshl_add_u32 v32, v32, 1, v34")
        a.I("v_bfe_u32 v34, v0, 2, 1"); a.I("v_lshl_add_u32 v32, v32, 1, v34")
        a.I("v_lshl_add_u32 v32, v32, 1, v33")
        a.I("v_bfe_u32 v34, v0, 3, 1"); a.I("v_lshl_add_u32 v32, v32, 1, v34")
        a.I(f"v_lshl_add_u32 v{vPW}, v32, 2, s{sT0}")
        a.I(f"v_lshlrev_b32 v{vL4}, 2, v0"); a.I(f"v_lshlrev_b32 v{vL8}, 3, v0")
        a.I(f"s_lshl_b32 s{sT0}, s{sW}, 2"); a.I(f"v_lshl_add_u32 v{vRW}, v0, 4, s{sT0}")
        a.I(f"s_lshl_b32 s{sT0}, s{sW}, 9"); a.I(f"v_lshl_add_u32 v{vAW}, v0, 5, s{sT0}")
        a.I(f"v_lshl_add_u32 v{vTR}, v0, 3, s{sWB}"); a.I(f"v_lshl_add_u32 v{vLV}, v0, 4, s{sWB}")
        a.I(f"v_lshlrev_b32 v32, 8, v{vn}"); a.I(f"v_add_u32 v32, s{sWB}, v32")
        a.I(f"v_xor_b32 v33, v{vg}, v{vn}")
        for j in range(4):
            a.I(f"v_xor_b32 v34, {4*j}, v33"); a.I(f"v_lshl_add_u32 v{KR+j}, v34, 4, v32")
        a.I(f"s_getreg_b32 s{sT0}, hwreg(HW_REG_XCC_ID, 0, 4)")
        a.I("s_waitcnt lgkmcnt(0)")
        a.I(f"s_and_b32 s{sXCC}, s{sXCC}, -16"); a.I(f"s_add_u32 s{sXCC}, s{sXCC}, 16"); a.I(f"s_or_b32 s{sXCC}, s{sXCC}, s{sT0}")
        self.only_w0("L_noflag")
        a.I(f"s_lshl_b32 s{sT0}, s{sX}, 7"); a.I(f"s_lshl_b32 s{sT1}, s{sI}, 2"); a.I(f"s_add_u32 s{sT0}, s{sT0}, s{sT1}"); a.I(f"s_add_u32 s{sT0}, s{sT0}, {TOK}")
        a.I(f"v_mov_b32 v32, s{sXCC}")
        a.wvm(clr)
        a.I("s_mov_b64 exec, 1")
        a.I(f"buffer_store_dword v32, v{vL4}, {S(rWS)}, s{sT0} offen sc1")
        a.I(f"s_mov_b64 exec, {mFULL}")
        self.end_cond("L_noflag")
        a.I(f"s_mov_b32 s{sC}, {f2u(math.log2(math.e) / math.sqrt(128.0))}")
        k1 = -2.0 * math.sqrt(2.0 / math.pi) * math.log2(math.e)
        a.I(f"s_mov_b32 s{sK1}, {f2u(k1)}"); a.I(f"s_mov_b32 s{sK2}, {f2u(k1 * 0.044715)}")
        a.I(f"s_mov_b32 s{sINV}, {f2u(1.0 / 512)}"); a.I(f"s_mov_b32 s{sEPS}, {f2u(1e-5)}")
        a.I(f"s_mov_b32 s{sPLO}, 0x05040100"); a.I(f"s_mov_b32 s{sPHI}, 0x07060302")
        a.I("s_mov_b32 s22, -1"); a.I("s_mov_b32 s23, 0"); a.I("s_mov_b32 s24, 0x55555555"); a.I("s_mov_b32 s25, 0")
        a.I("s_mov_b32 s30, 0xffff"); a.I("s_mov_b32 s31, 0xffff"); a.I("s_mov_b64 s[32:33], 1")
        a.I("s_mov_b32 s76, 0xffff"); a.I("s_mov_b32 s77, 0")
        a.I(f"s_mul_i32 s{sREG}, s{sX}, {2*REGION}")
        a.I(f"s_lshl_b32 s{sYP}, s{sJ}, 10"); a.I(f"s_add_u32 s{sYP}, s{sYP}, {YP}")
        a.I(f"s_mov_b32 s{sPASS}, 0"); a.I(f"s_mov_b32 s{sCNT}, {o.get('timeout', 400000)}"); a.I(f"s_mov_b32 s{sMODE}, 1")
        D = o.get("kd", 2)
        def kstep(t):
            ktile(t)
            if t - D >= 0: kread(t - D)
        if D == 1: kread(0)
        kstep(2); wqid.append(wq(2))
        kstep(3); wqid.append(wq(3))
        a.I(f"s_lshl_b32 s{sT0}, s{sX}, 19"); a.I(f"s_lshl_b32 s{sT1}, s{sW}, 17"); a.I(f"s_add_u32 s{sT0}, s{sT0}, s{sT1}")
        a.I(f"s_lshl_b32 s{sT1}, s{sJ}, 5"); a.I(f"s_add_u32 s{sP0}, s{sT0}, s{sT1}")
        wo = lambda j: wdma(WD + 1, rWO, sP0, j * 32 * 1024, f"s_add_u32 m0, s{sWB}, {WO_OFF + j*1024}")
        kstep(4); wo(0)
        kstep(5)
        a.C("Q1"); self.stamp("q1in")
        a.wvm([bid, xid] + wqid)
        a.I(f"v_lshlrev_b32 v{vXR}, 16, v{vXR}"); a.I(f"v_lshlrev_b32 v{vB1}, 16, v{vB1}"); a.I(f"v_lshlrev_b32 v{vB2}, 16, v{vB2}")
        for r in range(8): a.I(f"v_mov_b32 v{self.XA + r}, v{36 + r}")
        if o.get("tok", 2) == 1:
            self.only_w0("L_tk0"); a.I("v_mov_b32 v60, 0"); a.I(f"ds_write_b32 v60, v60 offset:{ML_LDS + 64}"); self.end_cond("L_tk0")
        self.ln_prep(WQ_OFF, preset=False)
        self.ln_mm()
        self.only_w0("L_q1nf")
        self.ln_finish()
        a.I("v_mul_f32 v60, v60, v68")
        self.pack_pub(60, 27)
        self.end_cond("L_q1nf")
        self.stamp("q1done")
        kstep(6); wo(1)
        a.C("flags check")
        def flagchk():
            for r in range(4): a.I(f"v_xor_b32 v{28+r}, s{sXCC}, v{28+r}")
            a.I("v_or3_b32 v28, v28, v29, v30"); a.I("v_or_b32 v28, v28, v31")
            a.I("v_cmp_lt_u32 vcc, 15, v28")
        a.I(f"s_mov_b32 s{sP2}, {TOK}")
        fins = f"buffer_load_dwordx4 {V(28)}, v{vL16}, {S(rWS)}, s{sP2} offen sc1"
        tk = o.get("tok", 2)
        if tk == 0:
            kstep(7); a.I(f"s_mov_b32 s{sMODE}, 0")
        else:
            if tk == 1:
                self.only_w0("L_tk1"); fid = a.I(fins); self.end_cond("L_tk1")
                kstep(7)
                self.only_w0("L_tk2")
            else:
                fid = a.I(fins)
                kstep(7)
            a.wvm(fid); flagchk()
            a.I("s_cbranch_vccz L_flagok")
            a.L("L_flagpoll"); a.cond += 1
            a.I("s_sleep 8")
            a.I(fins); a.I(f"s_sub_u32 s{sCNT}, s{sCNT}, 1"); a.I("s_cbranch_scc1 L_abort")
            a.wvm0(); flagchk(); a.I("s_cbranch_vccnz L_flagpoll")
            self.end_cond("L_flagok")
            a.I("v_cmp_ne_u32 vcc, 0, v28")
            a.I(f"s_lshl_b32 s{sT0}, s{sX}, 3"); a.I(f"s_nop 0"); a.I(f"s_lshr_b64 vcc, vcc, s{sT0}"); a.I(f"s_and_b32 s{sMODE}, vcc_lo, 0xff")
            if tk == 1:
                a.I("v_mov_b32 v28, 1"); a.I("v_mov_b32 v29, 0")
                a.I(f"ds_write_b32 v29, v28 offset:{ML_LDS + 64}")
                self.end_cond("L_tk2")
        self.stamp("flagok")
        if o.get("force_slow"): a.I(f"s_mov_b32 s{sMODE}, 1")
        self.only_w0("L_q1np")
        self.q_soff()
        self.q_publish(27)
        self.end_cond("L_q1np")
        kstep(8); wo(2)
        kstep(9); wo(3)
        a.I(f"s_lshl_b32 s{sT0}, s{sP1}, 14"); a.I(f"s_lshl_b32 s{sT1}, s{sW}, 16"); a.I(f"s_add_u32 s{sT0}, s{sT0}, s{sT1}")
        a.I(f"s_lshl_b32 s{sT1}, s{sJ2}, 5"); a.I(f"s_add_u32 s{sP0}, s{sT0}, s{sT1}")
        a.I(f"s_mov_b32 s{sW2B}, s{sP0}")
        a.I(f"s_mul_i32 s{sT0}, s{sW}, {128*2752}"); a.I(f"s_add_u32 s{sW1B}, s{sT0}, s{sP3}")
        self.wdma = wdma; self.WD = WD
        for t in range(10, 16): kstep(t)
        def prewarm():
            a.I("v_lshrrev_b32 v52, 2, v0"); a.I("v_and_b32 v53, 3, v0"); a.I("v_lshlrev_b32 v53, 7, v53"); a.I("v_min_u32 v53, 348, v53")
            self.mad(52, 52, 2752, 53)
            a.I(f"s_lshl_b32 s{sT0}, s{sI}, 2"); a.I(f"s_add_u32 s{sT0}, s{sT0}, s{sW}")
            a.I(f"s_mul_i32 s{sT1}, s{sT0}, {4*2752}"); a.I(f"s_lshl_b32 s{sT2}, s{sT0W}, 5"); a.I(f"s_add_u32 s{sT1}, s{sT1}, s{sT2}")
            a.I(f"s_mov_b64 exec, {mLO16}")
            a.I(f"buffer_load_dword v27, v52, {S(rW1)}, s{sT1} offen")
            a.I(f"s_mul_i32 s{sT1}, s{sT0}, {12*128}"); a.I(f"s_lshl_b32 s{sT2}, s{sT0W}, 14"); a.I(f"s_add_u32 s{sT1}, s{sT1}, s{sT2}")
            a.I("v_lshlrev_b32 v52, 7, v0")
            a.I("s_mov_b64 exec, 0xfff")
            a.I(f"buffer_load_dword v27, v52, {S(rW2)}, s{sT1} offen")
            a.I(f"s_mov_b64 exec, {mFULL}")
        vid = {}
        def vload(sg, k):
            h, x, b = k >> 3, (k >> 1) & 3, k & 1
            if k % 8 == 0:
                for bb in range(2):
                    a.I(f"s_add_u32 s{sT1}, s{sROT}, {(4*sg + 2*h + bb)*4096}"); a.I(f"s_and_b32 s{(sP0, sP2)[bb]}, s{sT1}, 0xffff")
            self.thr("tv")
            vid[(sg, k)] = a.I(f"buffer_load_dwordx4 {V(sgblk(sg) + 8*(2*x + b) + 4*h)}, v{vVO}, {S(rV)}, s{(sP0, sP2)[b]} offen offset:{x*1024}{KV}")
        a.C("q1 gather")
        if o.get("tok", 2) == 1:
            a.I("v_mov_b32 v29, 0")
            a.L("L_tkw")
            a.I(f"ds_read_b32 v28, v29 offset:{ML_LDS + 64}")
            a.I(f"s_sub_u32 s{sCNT}, s{sCNT}, 1"); a.I("s_cbranch_scc1 L_abort")
            a.wlg0(); a.I("v_cmp_ne_u32 vcc, 1, v28"); a.I("s_cbranch_vccnz L_tkw")
        for r in range(4): a.I(f"v_mov_b32 v{QC + r}, 0")
        a.I(f"s_lshr_b32 s{sP3}, s{sI}, 2"); a.I(f"s_lshl_b32 s{sP3}, s{sP3}, 8"); a.I(f"s_add_u32 s{sP3}, s{sP3}, s{sREG}")
        qins = f"buffer_load_dwordx4 {V(QC)}, v{vQG}, {S(rWS)}, s{sP3} offen sc1"
        a.I(f"s_mov_b64 exec, {mN4}"); qid = a.I(qins); a.I(f"s_mov_b64 exec, {mFULL}")
        for k in range(4): vload(0, k)
        for t in range(16 - D, 16): kread(t)
        for k in range(4, 8): vload(0, k)
        self.qk_prep(qc=False)
        a.wvm(qid)
        self.check(range(QC, QC + 4), 32)
        a.I("s_cbranch_vccz L_q1ok"); a.cond += 1
        self.poll([(mN4, qins)], range(QC, QC + 4), 32)
        self.end_cond("L_q1ok")
        self.stamp("q1ok")
        a.wlg0()
        fl = [lambda k=k: vload(0, k) for k in range(8, 16)]
        cnt = [0]
        def fill(n):
            cnt[0] += 1
            if fl and cnt[0] % 2 == 1: fl.pop(0)()
        self.qk(fill=fill)
        while fl: fl.pop(0)()
        ids, lsum = self.softmax(False)
        for x in lsum: a.I(x)
        self.l_write()
        self.stamp("sm1")
        for k in range(16): vload(1, k)
        for sg in range(4):
            blk = sgblk(sg)
            a.wvm(vid[(sg, 7)])
            self.perm_half(blk, 0)
            if sg == 2 and o.get("prew", 1) == 2: prewarm()
            if sg == 3:
                self.stamp("g6done")
                a.wlg0(); self.barrier()
                fr = self.f_read(); a.wlg(fr)
                for x in self.f_calc(): a.I(x)
            smf = lambda e: a.I(f"{SMF} {V(ACC + 4*e)}, {V(PA + 4*sg)}, {V(blk + 8*e, 8)}, v{vIDX}")
            if sg == 3 and o.get("fastlast", 1):
                R = lambda r, d: blk + 8 * r + 4 + d
                lo = lambda dst, x, y: a.I(f"v_perm_b32 v{dst}, v{y}, v{x}, s{sPLO}")
                hi = lambda dst, x, y: a.I(f"v_perm_b32 v{dst}, v{y}, v{x}, s{sPHI}")
                a.wvm(vid[(sg, 13)])
                for p in range(3):
                    x, y = R(2*p, p), R(2*p+1, p)
                    lo(54, x, y); hi(y, x, y); a.I(f"v_mov_b32 v{x}, v54")
                    lo(44 + p, R(2*p, 3), R(2*p+1, 3)); hi(48 + p, R(2*p, 3), R(2*p+1, 3))
                for p in range(3):
                    for d in range(p + 1, 3):
                        ax, ay = R(2*p, d), R(2*p+1, d); bx, by = R(2*d, p), R(2*d+1, p)
                        lo(54, ax, ay); hi(55, ax, ay); lo(ax, bx, by); hi(ay, bx, by)
                        a.I(f"v_mov_b32 v{bx}, v54"); a.I(f"v_mov_b32 v{by}, v55")
                a.wvm(vid[(sg, 15)])
                self.stamp("vlast")
                lo(R(0, 3), R(6, 0), R(7, 0)); hi(R(1, 3), R(6, 0), R(7, 0))
                lo(R(2, 3), R(6, 1), R(7, 1)); hi(R(3, 3), R(6, 1), R(7, 1))
                smf(0)
                lo(R(4, 3), R(6, 2), R(7, 2)); hi(R(5, 3), R(6, 2), R(7, 2))
                smf(1)
                lo(47, R(6, 3), R(7, 3)); hi(R(7, 3), R(6, 3), R(7, 3))
                smf(2)
                a.I(f"v_mov_b32 v{R(6, 0)}, v44"); a.I(f"v_mov_b32 v{R(6, 1)}, v45")
                smf(3)
                a.I(f"v_mov_b32 v{R(6, 2)}, v46"); a.I(f"v_mov_b32 v{R(6, 3)}, v47")
                smf(4)
                a.I(f"v_mov_b32 v{R(7, 0)}, v48"); a.I(f"v_mov_b32 v{R(7, 1)}, v49")
                smf(5)
                a.I(f"v_mov_b32 v{R(7, 2)}, v50")
                smf(6); smf(7)
            else:
                a.wvm(vid[(sg, 15)])
                if sg == 3: self.stamp("vlast")
                self.perm_half(blk, 1)
                if sg == 0: a.wlg0()
                for e in range(8): smf(e)
            if sg < 2:
                for e in range(8 if sg == 0 else 4):
                    for hh in range(2):
                        a.I(f"ds_write_b128 v{vLV}, {V(blk + 8*e + 4*hh)} offset:{V_OFF + (16*sg + 2*e + hh)*1024}")
                if sg == 1:
                    for r in range(32): a.I(f"v_mov_b32 v{HF + r}, v{blk + 32 + r}")
                a.wlg0()
                for k in range(16): vload(sg + 2, k)
                if sg == 1 and o.get("prew", 1) == 1: prewarm()
        self.attn_out()
        self.tail()
        for ls, ins, ld in self.ool:
            a.L(ls)
            for x in ins: a.I(x)
            a.I(f"s_branch {ld}")
        for lr, l in self.ool2:
            a.L(lr); a.I(f"s_sleep {o['bo']}"); a.I(f"s_branch {l}")
        a.L("L_abort"); self.stamp_out(); a.L("L_exit"); a.I("s_endpgm")
        a.raw('.section .rodata,"a"'); a.raw(".p2align 6"); a.raw(f".amdhsa_kernel {KNAME}")
        for s in (".amdhsa_next_free_vgpr 512", ".amdhsa_next_free_sgpr 102", ".amdhsa_accum_offset 256", ".amdhsa_group_segment_fixed_size 0",
                  ".amdhsa_kernarg_size 104", ".amdhsa_user_sgpr_count 2", ".amdhsa_user_sgpr_kernarg_segment_ptr 1", ".amdhsa_system_sgpr_workgroup_id_x 1"):
            a.raw("  " + s)
        a.raw(".end_amdhsa_kernel")
        return a.text()

    def q_soff(self):
        a = self.a
        a.I(f"s_lshr_b32 s{sT0}, s{sI}, 3"); a.I(f"s_lshl_b32 s{sT0}, s{sT0}, 9")
        a.I(f"s_and_b32 s{sT1}, s{sI}, 7"); a.I(f"s_lshl_b32 s{sT1}, s{sT1}, 5")
        a.I(f"s_add_u32 s{sT0}, s{sT0}, s{sT1}"); a.I(f"s_add_u32 s{sT0}, s{sT0}, s{sREG}")
    def q_publish(self, pv):
        a = self.a
        a.I(f"s_mov_b64 exec, {mEVEN}")
        self.publish(f"buffer_store_dword v{pv}, v{vPQ}, {S(rWS)}, s{sT0} offen")
        a.I(f"s_mov_b64 exec, {mFULL}")

    def rstage(self, name, voff, ypoff, xs, addb2):
        a = self.a
        a.I(f"s_lshl_b32 s{sT1}, s{sJ}, 5"); a.I(f"s_add_u32 s{sT0}, s{sT1}, s{sREG}"); a.I(f"s_add_u32 s{sT0}, s{sT0}, {xs}")
        for r in range(8): a.I(f"v_mov_b32 v{80+r}, 0")
        if addb2: a.I(f"v_add_f32 v{vXR}, v{vXR}, v{vB2}")
        if ypoff: a.I(f"s_add_u32 s{sT2}, s{sYP}, {ypoff}"); sb = sT2
        else: sb = sYP
        self.sleep("d_cross", 7)
        self.poll([(mLO32, f"buffer_load_dword v{80+x}, v{voff}, {S(rWS)}, s{sb} offen offset:{x*128} sc1") for x in range(8)], range(80, 88), 36,
                  depth=self.o.get("p_c", 1), gap=self.o.get("gapc", 3))
        self.stamp(name)
        a.I("v_pk_add_f32 v[88:89], v[80:81], v[82:83]"); a.I("v_pk_add_f32 v[90:91], v[84:85], v[86:87]")
        a.I(f"v_add_f32 v88, v88, v{vXR}")
        a.I("v_pk_add_f32 v[88:89], v[88:89], v[90:91]")
        a.I("v_add_f32 v88, v88, v89")
        self.pack_pub(88, 89)
        a.I(f"s_mov_b64 exec, {mEVEN}")
        if addb2:
            a.I(f"s_cmp_lg_u32 s{sPASS}, 0"); a.I("s_cbranch_scc1 L_final")
        self.publish(f"buffer_store_dword v89, v{vPX}, {S(rWS)}, s{sT0} offen")
        a.I(f"s_mov_b64 exec, {mFULL}")
        a.I(f"v_cvt_pk_bf16_f32 v{vXR}, v88, v88"); a.I(f"v_and_b32 v{vXR}, 0xffff0000, v{vXR}")

    def tail(self):
        a = self.a; o = self.o
        a.L("L_fin")
        a.C("attention finish"); self.stamp("fin")
        a.I(f"s_lshl_b32 s{sT0}, s{sI}, 8"); a.I(f"s_add_u32 s{sT0}, s{sT0}, s{sREG}"); a.I(f"s_add_u32 s{sT0}, s{sT0}, {AP}")
        a.I(f"s_lshl_b32 s{sT1}, s{sI}, 3"); a.I(f"s_add_u32 s{sT1}, s{sT1}, s{sREG}"); a.I(f"s_add_u32 s{sT1}, s{sT1}, {ML}")
        a.wlg0(); self.barrier()
        self.only_w0("L_fin_done")
        ids = [a.I(f"ds_read_b64 {V(28+2*w, 2)}, v{vL8} offset:{w*512}") for w in range(2)]
        lid = a.I(f"ds_read_b128 {V(36)}, v62 offset:{ML_LDS + 16}")
        ids += [a.I(f"ds_read_b64 {V(28+2*w, 2)}, v{vL8} offset:{w*512}") for w in range(2, 4)]
        a.I(f"s_cmp_lg_u32 s{sMODE}, 0")
        a.wlg(ids[0])
        a.I(f"v_mul_f32 v28, v{F}, v28"); a.I(f"v_mul_f32 v29, v{F}, v29")
        a.wlg(ids[1])
        a.I(f"v_fmac_f32 v28, v{F+1}, v30"); a.I(f"v_fmac_f32 v29, v{F+1}, v31")
        a.wlg(lid)
        a.I(f"v_mul_f32 v{vL}, v{F}, v36"); a.I(f"v_fmac_f32 v{vL}, v{F+1}, v37")
        a.wlg(ids[2])
        a.I(f"v_fmac_f32 v28, v{F+2}, v32"); a.I(f"v_fmac_f32 v29, v{F+2}, v33"); a.I(f"v_fmac_f32 v{vL}, v{F+2}, v38")
        a.wlg(ids[3])
        a.I(f"v_fmac_f32 v28, v{F+3}, v34"); a.I(f"v_fmac_f32 v29, v{F+3}, v35"); a.I(f"v_fmac_f32 v{vL}, v{F+3}, v39")
        a.I("v_cvt_pk_bf16_f32 v28, v28, v29"); a.I(f"v_min_u32 v{vL}, -2, v{vL}"); a.I("v_min_u32 v28, -2, v28")
        self.publish([f"buffer_store_dword v28, v{vL4}, {S(rWS)}, s{sT0} offen", f"s_mov_b64 exec, {mL0}",
                      f"buffer_store_dwordx2 v[{vM}:{vL}], v{vL4}, {S(rWS)}, s{sT1} offen", f"s_mov_b64 exec, {mFULL}"], precmp=True)
        self.end_cond("L_fin_done")
        self.stamp("finpub")
        a.C("stage O")
        a.I(f"s_lshl_b32 s{sT0}, s{sW}, 11"); a.I(f"s_add_u32 s{sT0}, s{sT0}, s{sREG}"); a.I(f"s_add_u32 s{sT0}, s{sT0}, {AP}")
        a.I(f"s_lshl_b32 s{sT1}, s{sW}, 6"); a.I(f"s_add_u32 s{sT1}, s{sT1}, s{sREG}"); a.I(f"s_add_u32 s{sT1}, s{sT1}, {ML}")
        if o.get("b_o", 1): self.barrier()
        self.sleep("d_e1", 2)
        self.poll([(None, f"buffer_load_dwordx2 v[36:37], v{vMLG}, {S(rWS)}, s{sT1} offen sc1"),
                   (None, f"buffer_load_dwordx4 {V(28)}, v{vAPG}, {S(rWS)}, s{sT0} offen sc1"),
                   (None, f"buffer_load_dwordx4 {V(32)}, v{vAPG}, {S(rWS)}, s{sT0} offen offset:128 sc1")],
                  [36, 37] + list(range(28, 36)), 38, depth=o.get("p_e1", 1), gap=o.get("gap", 2))
        self.stamp("e1")
        a.I(f"{MF} {V(40)}, {V(28)}, {V(WOP)}, 0")
        a.I(f"v_max_f32_dpp v38, v36, v36 quad_perm:[1,0,3,2] {DPP}")
        a.I(f"{MF} {V(40)}, {V(32)}, {V(WOP+8)}, {V(40)}")
        for r in range(4): a.I(f"v_mov_b32_dpp v{44+r}, v{28+r} row_shl:8 {DPP}")
        a.I(f"v_max_f32_dpp v38, v38, v38 quad_perm:[2,3,0,1] {DPP}")
        a.I(f"v_mov_b32_dpp v48, v32 row_shl:8 {DPP}")
        a.I(f"{MF} {V(40)}, {V(44)}, {V(WOP+4)}, {V(40)}")
        for r in range(1, 4): a.I(f"v_mov_b32_dpp v{48+r}, v{32+r} row_shl:8 {DPP}")
        a.I("v_sub_f32 v38, v36, v38")
        a.I("v_exp_f32 v38, v38")
        a.I(f"{MF} {V(40)}, {V(48)}, {V(WOP+12)}, {V(40)}")
        a.I("v_mul_f32 v39, v38, v37")
        a.I(f"s_lshl_b32 s{sT0}, s{sX}, 7"); a.I(f"s_add_u32 s{sT0}, s{sT0}, s{sYP}")
        a.I(f"v_add_f32_dpp v39, v39, v39 quad_perm:[1,0,3,2] {DPP}")
        a.I(f"v_add_f32_dpp v39, v39, v39 quad_perm:[2,3,0,1] {DPP}")
        a.I("v_rcp_f32 v39, v39")
        a.I("v_mul_f32 v38, v38, v39")
        a.I(f"v_mul_f32_dpp v52, v38, v40 quad_perm:[0,0,0,0] {DPP}")
        for r in range(1, 4): a.I(f"v_fmac_f32_dpp v52, v38, v{40+r} quad_perm:[{r},{r},{r},{r}] {DPP}")
        a.I(f"s_mov_b64 exec, {mLO32}")
        a.I(f"ds_write_b32 v{vRW}, v52 offset:{ORED}")
        a.I(f"s_mov_b64 exec, {mFULL}")
        a.wlg0(); self.barrier()
        self.only_w0("L_o_done")
        a.I(f"ds_read_b128 {V(40)}, v{vL16} offset:{ORED}"); a.wlg0()
        a.I("v_pk_add_f32 v[40:41], v[40:41], v[42:43]"); a.I("v_add_f32 v40, v40, v41"); a.I("v_min_u32 v40, -2, v40")
        a.I(f"s_mov_b64 exec, {mLO32}")
        a.I(f"buffer_store_dword v40, v{vL4}, {S(rWS)}, s{sT0} offen sc1")
        a.I(f"s_mov_b64 exec, {mFULL}")
        self.end_cond("L_o_done")
        self.stamp("opub")
        a.I(f"s_cmp_lg_u32 s{sPASS}, 0"); a.I("s_cbranch_scc1 L_nodma"); a.cond += 1
        a.I("v_bfe_u32 v44, v0, 3, 2"); a.I("v_lshrrev_b32 v45, 5, v0"); a.I("v_lshl_add_u32 v44, v44, 1, v45")
        a.I("v_bfe_u32 v45, v0, 1, 2"); a.I("v_lshl_add_u32 v44, v44, 2, v45")
        a.I("v_and_b32 v45, 1, v0"); a.I("v_lshlrev_b32 v45, 4, v45")
        self.WD = 45
        self.mad(46, 44, 1024, 45); self.mad(47, 44, 2752, 45)
        a.I(f"s_cmp_eq_u32 s{sHCU}, 0"); a.I("s_cbranch_scc1 L_now1")
        for j in range(4): self.wdma(self.WD + 2, rW1, sW1B, j * 32 * 2752, f"s_add_u32 m0, s{sWB}, {W1_OFF + j*1024}")
        a.L("L_now1")
        a.I(f"s_lshl_b32 s{sT1}, s{sW}, 11")
        for j in range(2): self.wdma(self.WD + 1, rW2, sW2B, j * 32 * 1024, f"s_add_u32 m0, s{sT1}, {W2_LDS + j*1024}")
        self.end_cond("L_nodma")
        a.C("stage R")
        self.only_w0("L_r_done")
        self.rstage("e2a", vL4, 0, XSA, False)
        self.end_cond("L_r_done")
        self.stamp("rpub")
        a.C("stage H")
        a.I(f"s_cmp_eq_u32 s{sW}, 0"); a.I("s_cbranch_scc1 L_nowait"); a.wvm0(); a.L("L_nowait")
        self.ln_prep(W1_OFF)
        a.I(f"s_lshl_b32 s{sT0}, s{sW}, 8"); a.I(f"s_add_u32 s{sT0}, s{sT0}, s{sREG}"); a.I(f"s_add_u32 s{sT0}, s{sT0}, {XSA}")
        self.barrier()
        a.I(f"s_cmp_eq_u32 s{sHCU}, 0"); a.I("s_cbranch_scc1 L_h_done"); a.cond += 1
        self.sleep("d_x", 1)
        self.poll([(mN8, f"buffer_load_dwordx4 {V(self.XA)}, v{vXG}, {S(rWS)}, s{sT0} offen sc1")], range(self.XA, self.XA + 4), 60, depth=o.get("p_x", 1), gap=o.get("gap", 2))
        self.stamp("e2b")
        a.I(f"s_sub_u32 s{sT0}, s{sI}, {HCU0}"); a.I(f"s_lshl_b32 s{sT0}, s{sT0}, 5"); a.I(f"s_add_u32 s{sT0}, s{sT0}, s{sREG}"); a.I(f"s_add_u32 s{sT0}, s{sT0}, {HS}")
        self.ln_mm()
        a.I(f"s_cmp_lg_u32 s{sW}, 0"); a.I("s_cbranch_scc1 L_h_done")
        self.ln_finish()
        a.I(f"v_fma_f32 v60, v60, v68, v{vB1}")
        a.I(f"v_mov_b32 v62, s{sK1}")
        a.I("v_mul_f32 v61, v60, v60")
        a.I(f"v_fma_f32 v61, v61, s{sK2}, v62")
        a.I("v_mul_f32 v61, v61, v60")
        a.I("v_exp_f32 v61, v61")
        a.I("v_add_f32 v61, 1.0, v61")
        a.I("v_rcp_f32 v61, v61")
        a.I("v_mul_f32 v60, v60, v61")
        self.pack_pub(60, 61)
        a.I(f"s_mov_b64 exec, {mEVEN}")
        self.publish(f"buffer_store_dword v61, v{vPH}, {S(rWS)}, s{sT0} offen")
        a.I(f"s_mov_b64 exec, {mFULL}")
        self.end_cond("L_h_done")
        self.stamp("hpub")
        a.C("stage X2")
        self.only_w0("L_x2_done")
        for r in range(4): a.I(f"v_mov_b32 v{92 + r}, 0")
        rd = [self.trread(44 + 4 * k, vL8, W2_LDS + k * 1024) for k in range(6)]
        a.I(f"s_add_u32 s{sT0}, s{sREG}, {HS}")
        a.I(f"s_lshl_b32 s{sT1}, s{sJ2}, 10"); a.I(f"s_lshl_b32 s{sT2}, s{sX}, 7"); a.I(f"s_add_u32 s{sT1}, s{sT1}, s{sT2}")
        a.I(f"s_lshl_b32 s{sT2}, s{sPASS}, 15"); a.I(f"s_add_u32 s{sT1}, s{sT1}, s{sT2}"); a.I(f"s_add_u32 s{sT1}, s{sT1}, {YP2}")
        self.sleep("d_h", 0)
        self.poll([(mH, f"buffer_load_dwordx4 {V(92)}, v{vHG}, {S(rWS)}, s{sT0} offen sc1")], range(92, 96), 40, depth=o.get("p_x", 1), gap=o.get("gap", 2))
        self.stamp("e3")
        a.wlg0()
        for k in range(6):
            cur = 92 if k == 0 else (32, 40)[k % 2]
            a.I(f"{MF} {V(36)}, {V(cur)}, {V(44 + 4*k)}, {'0' if k == 0 else V(36)}")
            if k < 5:
                for r in range(4): a.I(f"v_mov_b32_dpp v{(32, 40)[(k+1) % 2] + r}, v{92 + r} row_shl:{2*(k+1)} {DPP}")
        a.I(f"s_mov_b64 exec, {mLO16}")
        a.I("v_min_u32 v36, -2, v36"); a.I("v_min_u32 v37, -2, v37")
        a.I(f"buffer_store_dwordx2 v[36:37], v{vL8}, {S(rWS)}, s{sT1} offen sc1")
        a.I(f"s_mov_b64 exec, {mFULL}")
        self.stamp("xpub")
        a.I(f"s_mul_i32 s{sT0}, s{sPASS}, s{sX}"); a.I(f"s_cmp_lg_u32 s{sT0}, 0"); a.I("s_cbranch_scc1 L_abort")
        a.C("stage R2")
        self.rstage("e3b", vR2, YP2 - YP, XSB, True)
        self.end_cond("L_x2_done")
        self.stamp("r2pub")
        a.I(f"s_cmp_lg_u32 s{sPASS}, 0"); a.I("s_cbranch_scc1 L_abort")
        a.C("stage Q2")
        self.ln_prep(WQ_OFF)
        a.I(f"s_lshl_b32 s{sP0}, s{sW}, 8"); a.I(f"s_add_u32 s{sP0}, s{sP0}, s{sREG}"); a.I(f"s_add_u32 s{sP0}, s{sP0}, {XSB}")
        a.I(f"s_mov_b32 s{sPASS}, 1"); a.I(f"s_add_u32 s{sREG}, s{sREG}, {REGION}"); a.I(f"s_add_u32 s{sYP}, s{sYP}, 32768")
        self.q_soff()
        a.I(f"s_lshr_b32 s{sP3}, s{sI}, 2"); a.I(f"s_lshl_b32 s{sP3}, s{sP3}, 8"); a.I(f"s_add_u32 s{sP3}, s{sP3}, s{sREG}")
        self.barrier()
        self.sleep("d_x", 1)
        self.poll([(mN8, f"buffer_load_dwordx4 {V(self.XA)}, v{vXG}, {S(rWS)}, s{sP0} offen sc1")], range(self.XA, self.XA + 4), 60, depth=o.get("p_x", 1), gap=o.get("gap", 2))
        self.stamp("e4")
        self.ln_mm()
        a.wvm0()
        self.only_w0("L_q2_done")
        self.ln_finish()
        a.I("v_mul_f32 v60, v60, v68")
        self.pack_pub(60, 61)
        self.q_publish(61)
        self.end_cond("L_q2_done")
        self.stamp("qpub")
        a.C("attention 2")
        self.qk_prep()
        if o.get("b_q", 1): self.barrier()
        self.sleep("d_q", 0)
        self.poll([(mN4, f"buffer_load_dwordx4 {V(QC)}, v{vQG}, {S(rWS)}, s{sP3} offen sc1")], range(QC, QC + 4), 32, depth=o.get("p_x", 1), gap=o.get("gap", 2))
        self.stamp("e5")
        lv = []
        landmap = [0, 8, 16, 24, 128, 136, 144, 152, 32, 40, 48, 56]
        land = lambda op: landmap[op]
        def fillv(n):
            if n >= 2:
                for _ in range(2):
                    k = len(lv)
                    lv.append(a.I(f"ds_read_b128 {Ar(land(k >> 1) + 4*(k & 1))}, v{vLV} offset:{V_OFF + k*1024}"))
        self.qk(fill=fillv)
        self.stamp("qk2")
        a.wvm0()
        ids, post = self.softmax(True)
        fr = self.f_read()
        self.stamp("sm2")
        def opnd(sg, e):
            if sg == 0: return Ar(land(e), 8)
            if sg == 1: return Ar(land(8 + e), 8) if e < 4 else V(HF + 8 * (e - 4), 8)
            return V(sgblk(sg) + 8 * e, 8)
        for gi, sg in enumerate((2, 3, 0, 1)):
            a.wlg(ids[sg])
            if gi == 2: a.wlg(fr); post = post + self.f_calc()
            for e in range(8):
                a.I(f"{SMF} {V(ACC + 4*e)}, {V(PA + 4*sg)}, {opnd(sg, e)}, v{vIDX}")
                if post: a.I(post.pop(0))
                if gi == 1 and e == 7: self.l_write()
        assert not post
        self.attn_out()
        a.I("s_branch L_fin")
        a.L("L_final")
        a.I(f"buffer_store_dword v89, v{vPX}, {S(rOUT)}, s{sT1} offen")
        a.I(f"s_cmp_lg_u32 s{sI}, 0"); a.I("s_cbranch_scc1 L_noepo")
        a.I(f"v_mov_b32 v30, s{sXCC}"); a.I(f"s_mov_b32 s{sT0}, {EPO}"); a.I("s_mov_b64 exec, 1")
        a.I(f"buffer_store_dword v30, v{vL4}, {S(rWS)}, s{sT0} offen")
        a.L("L_noepo")
        if o.get("stamps"):
            a.wvm0(); self.stamp("end")
            a.I("s_branch L_abort")
        a.I("s_endpgm")

if __name__ == "__main__":
    opt = {}
    out = sys.argv[1]
    for kv in sys.argv[2:]:
        k, v = kv.split("="); opt[k] = v.split(",") if k == "stamps" else int(v)
    g = Gen(opt)
    t = g.build()
    open(out, "w").write(t)
    print("lines", t.count("\n"), "auto nops", g.a.nops)
```

```python
import re
TRANS = ("v_exp_f32", "v_log_f32", "v_rcp_f32", "v_rsq_f32", "v_sqrt_f32", "v_sin_f32", "v_cos_f32")

def regs_of(tok):
    tok = tok.strip()
    m = re.fullmatch(r"-?\|?([vas])(\d+)\|?", tok)
    if m: return [m.group(1) + m.group(2)]
    m = re.fullmatch(r"([vas])\[(\d+):(\d+)\]", tok)
    if m: return [m.group(1) + str(k) for k in range(int(m.group(2)), int(m.group(3)) + 1)]
    if tok == "vcc": return ["vcc"]
    if tok == "exec": return ["exec"]
    if tok == "m0": return ["m0"]
    return []

class Ins:
    __slots__ = ("text", "op", "kind", "w", "r", "dppr", "A", "B", "C", "Ctok", "Dtok", "pos", "states", "data", "lds")

def split_ops(s):
    out = []; depth = 0; cur = ""
    for ch in s:
        if ch == "[": depth += 1
        if ch == "]": depth -= 1
        if ch == "," and depth == 0:
            out.append(cur); cur = ""
        else: cur += ch
    out.append(cur)
    return [o.strip() for o in out]

def parse(text):
    I = Ins(); I.text = text
    t = text.split(";")[0].strip()
    parts = t.split(None, 1)
    op = parts[0]; I.op = op
    rest = parts[1] if len(parts) > 1 else ""
    ops = split_ops(rest) if rest else []
    mods = ""
    if ops:
        lp = ops[-1].split(None, 1)
        ops[-1] = lp[0]; mods = lp[1] if len(lp) > 1 else ""
    I.w = []; I.r = []; I.dppr = []; I.A = []; I.B = []; I.C = []; I.Ctok = None; I.Dtok = None; I.data = []; I.lds = False
    I.states = 1
    if op == "s_nop":
        I.kind = "nop"; I.states = int(ops[0], 0) + 1
    elif op.startswith("v_mfma") or op.startswith("v_smfmac"):
        I.kind = "mfma"; I.w = regs_of(ops[0]); I.A = regs_of(ops[1]); I.B = regs_of(ops[2]); I.Dtok = ops[0]
        if op.startswith("v_smfmac"):
            I.C = regs_of(ops[0]); I.Ctok = ops[0]; I.B = I.B + regs_of(ops[3])
        else:
            I.C = regs_of(ops[3]); I.Ctok = ops[3]
        I.r = I.A + I.B + I.C
    elif op.startswith("v_"):
        I.kind = "trans" if op.replace("_e32", "").replace("_e64", "") in TRANS else "valu"
        if op.startswith("v_permlane"):
            I.kind = "perml"; I.w = regs_of(ops[0]) + regs_of(ops[1]); I.r = list(I.w)
        elif op.startswith("v_readfirstlane") or op.startswith("v_readlane"):
            I.kind = "rdlane"; I.w = regs_of(ops[0]); I.r = sum((regs_of(o) for o in ops[1:]), [])
        else:
            I.w = regs_of(ops[0]); I.r = sum((regs_of(o) for o in ops[1:]), [])
            if op.startswith("v_fmac") or op.startswith("v_dot2c"): I.r += I.w
            if op.startswith("v_cndmask") and len(ops) == 3: I.r += ["vcc"]
            if op.endswith("_dpp"): I.dppr = regs_of(ops[1])
    elif op.startswith("ds_read"):
        I.kind = "dsr"; I.w = regs_of(ops[0]); I.r = regs_of(ops[1])
    elif op.startswith("ds_write") or op.startswith("ds_add"):
        I.kind = "dsw"; I.r = sum((regs_of(o) for o in ops), [])
    elif op.startswith("buffer_load") or op.startswith("global_load"):
        I.kind = "vml"
        if " lds" in (" " + mods) or "_lds_" in op:
            I.lds = True; I.r = sum((regs_of(o) for o in ops), []) + ["m0"]
        else:
            I.w = regs_of(ops[0]); I.r = sum((regs_of(o) for o in ops[1:]), [])
    elif op.startswith("buffer_store") or op.startswith("global_store") or op.startswith("buffer_atomic"):
        I.kind = "vms"; I.r = sum((regs_of(o) for o in ops), [])
        if op.endswith("x4") or op.endswith("x3"): I.data = regs_of(ops[0])
    elif op.startswith("s_"):
        I.kind = "salu"
        if op.startswith("s_cmp") or op.startswith("s_cbranch") or op in ("s_branch", "s_barrier", "s_waitcnt", "s_sleep", "s_endpgm", "s_setprio", "s_bitcmp1_b32", "s_bitcmp0_b32"):
            I.r = sum((regs_of(o) for o in ops), [])
        else:
            I.w = regs_of(ops[0]) if ops else []; I.r = sum((regs_of(o) for o in ops[1:]), [])
    else:
        raise ValueError("unknown op " + text)
    return I

VALUK = ("valu", "trans", "perml", "rdlane")

def need(P, C):
    n = 0
    pw = set(P.w)
    isv = lambda r: r[0] in "va" and r != "vcc"
    if P.kind in VALUK:
        vw = {r for r in pw if isv(r)}
        sw = {r for r in pw if not isv(r)}
        if C.kind == "mfma" and vw & set(C.r): n = max(n, 2)
        if C.dppr and vw & set(C.dppr): n = max(n, 2)
        if C.kind == "perml" and vw & set(C.r): n = max(n, 2)
        if C.kind == "rdlane" and vw & set(C.r): n = max(n, 1)
        if P.kind == "trans" and C.kind in ("valu", "perml", "rdlane") and vw & set(C.r): n = max(n, 1)
        if sw:
            if C.kind in VALUK and sw & set(C.r): n = max(n, 4 if C.kind == "rdlane" else 2)
            if C.kind in ("vml", "vms") and sw & set(C.r): n = max(n, 5)
    if P.kind == "mfma":
        if C.kind == "mfma":
            if pw & (set(C.A) | set(C.B)): n = max(n, 8)
            if pw & set(C.C) and not (C.Ctok == P.Dtok and C.op == P.op): n = max(n, 6)
        elif C.kind in VALUK:
            if pw & (set(C.r) | set(C.w)): n = max(n, 8)
            if set(P.C) & set(C.w): n = max(n, 3)
        elif C.kind in ("dsr", "dsw", "vml", "vms"):
            if pw & (set(C.r) | set(C.w)): n = max(n, 8)
    if P.kind == "salu" and "m0" in pw and C.lds: n = max(n, 1)
    if P.kind == "vms" and P.data:
        if set(P.data) & set(C.w): n = max(n, 2)
    return n

class Asm:
    def __init__(self):
        self.out = []
        self.hist = []
        self.pos = 0
        self.alts = []
        self.snap = {}
        self.vm = []
        self.lg = []
        self.nid = 0
        self._cond = 0; self.stack = []; self.nblk = 0
        self.nops = 0
    @property
    def cond(self): return self._cond
    @cond.setter
    def cond(self, v):
        if v > self._cond:
            self.nblk += 1; self.stack.append(self.nblk)
        elif v < self._cond:
            self.stack.pop()
        self._cond = v
    def raw(self, s): self.out.append(s)
    def C(self, s): self.out.append("    ; " + s)
    def _req(self, I):
        req = 0
        for P in self.hist[-24:]:
            d = self.pos - P.pos
            req = max(req, need(P, I) - d)
        for (h, pb, pl) in self.alts:
            if self.pos - pl > 24: continue
            for P in h[-24:]:
                d = (pb - P.pos) + (self.pos - pl)
                req = max(req, need(P, I) - d)
        return req
    def I(self, text):
        I = parse(text)
        req = self._req(I)
        if req > 0:
            self.nops += 1
            n = parse(f"s_nop {req-1}")
            self.out.append(f"    s_nop {req-1}    ; auto"); self.pos += n.states; n.pos = self.pos; self.hist.append(n)
        self.out.append("    " + text)
        self.pos += I.states; I.pos = self.pos; self.hist.append(I)
        ret = None
        if I.kind in ("vml", "vms"):
            self.nid += 1; self.vm.append((self.nid, tuple(self.stack))); ret = self.nid
        elif I.kind in ("dsr", "dsw"):
            self.nid += 1; self.lg.append((self.nid, tuple(self.stack))); ret = self.nid
        if I.op.startswith("s_cbranch") or I.op == "s_branch":
            lab = text.split()[1]
            self.snap.setdefault(lab, []).append((list(self.hist[-24:]), self.pos))
        return ret
    def L(self, lab):
        self.out.append(lab + ":")
        for (h, pb) in self.snap.get(lab, []):
            self.alts.append((h, pb, self.pos))
        self.alts = [a for a in self.alts if self.pos - a[2] <= 24]
    def _cnt(self, lst, ids):
        if not isinstance(ids, (list, tuple)): ids = [ids]
        idx = max(k for k, (i, c) in enumerate(lst) if i in ids)
        cur = set(self.stack)
        return sum(1 for (i, c) in lst[idx + 1:] if set(c) <= cur)
    def wvm(self, ids):
        n = min(63, self._cnt(self.vm, ids)); self.I(f"s_waitcnt vmcnt({n})")
    def wlg(self, ids):
        n = min(15, self._cnt(self.lg, ids)); self.I(f"s_waitcnt lgkmcnt({n})")
    def wvm0(self): self.I("s_waitcnt vmcnt(0)")
    def wlg0(self): self.I("s_waitcnt lgkmcnt(0)")
    def text(self): return "\n".join(self.out) + "\n"
```

```python
import sys, math, struct
from asmlib import Asm
KNAME = "interleave_layers__gqa_block_cached__dense_activation_gelu__decode_kernel"
HEADER = open("interleave_layers__gqa_block_cached__dense_activation_gelu__decode.s.ref").read().split("; Override launch")[0]

MISC = 0; ML_LDS = 2048; W2_LDS = 5120; WBASE0 = 13312; WAREA = 36864
WQ_OFF = 0; WO_OFF = 4096; W1_OFF = 8192; V_OFF = 12288
REGION = 24576; QS = 0; AP = 2048; ML = 10240; XSA = 10496; XSB = 12544; HS = 14592
YP = 393216; YP2 = 458752; TOK = 0xA0000; EPO = 0xA0800; WS_BYTES = 0xA0900
sW, sX, sI, sREG, sYP, sMODE, sPASS, sCNT, sWB = 3, 4, 5, 6, 7, 9, 10, 11, 12
sT0, sT1, sT2, sPLO, sPHI, sJ, sROT = 13, 14, 15, 16, 17, 18, 19
mFULL, mLO32, mEVEN, mN8, mN4, mG02, mL0, mH, mLO16 = "s[20:21]", "s[22:23]", "s[24:25]", "s[26:27]", "s[28:29]", "s[30:31]", "s[32:33]", "s[34:35]", "s[76:77]"
rK, rV, rWQ, rWO, rW1, rW2, rWS, rT, rDBG, rOUT = 36, 40, 44, 48, 52, 56, 60, 64, 68, 72
sC, sXCC, sHCU, sJ2 = 78, 79, 80, 81
sK1, sK2, sINV, sEPS = 82, 83, 84, 85
sBUR = 8
sW2B, sW1B, sT0W = 66, 67, 87
sP0, sP1, sP2, sP3 = 86, 87, 88, 89
def S(r): return f"s[{r}:{r+3}]"
def V(r, n=4): return f"v[{r}:{r+n-1}]"
def Ar(r, n=4): return f"a[{r}:{r+n-1}]"
DPP = "row_mask:0xf bank_mask:0xf"
MF = "v_mfma_f32_16x16x32_bf16"
vTR, vB1, vB2, vXR, vXG, vPX, vPQ, vPH, vAPG, vMLG, vQG, vHG, vL4, vR2, vL8, vL16, vRW, vAW, vCS, vSQ, vSM, vLV, vIDX, vPW, vPR, vM01 = range(1, 27)
vVO = vL16
QC = 28; QB = (32, 36); RB = (40, 44); SC = 48; vM, vL = 56, 57; PA = 28; F = 58; FL = 48; ACC = 64; WOP = 64
BLKA, BLKB, HF = 96, 160, 224
P_LDS = 2560
ORED = 4608
SMF = "v_smfmac_f32_16x16x64_bf16"
HCU0 = 16
f2u = lambda x: "0x%08x" % struct.unpack("<I", struct.pack("<f", x))[0]
def sgblk(sg): return (BLKA, BLKB)[sg & 1]

class Gen:
    def __init__(self, opt):
        self.a = Asm(); self.o = opt; self.mls = opt.get('mls', 3); self.lab = 0; self.ool = []; self.ool2 = []
    def nl(self, p):
        self.lab += 1; return f"L_{p}_{self.lab}"
    def stamp(self, name):
        st = self.o.get("stamps", [])
        a = self.a
        hits = [k for k, x in enumerate(st) if x.split("@")[0] == name]
        if not hits: return
        a.I(("s_memtime" if self.o.get("cyc") else "s_memrealtime") + " s[64:65]"); a.I("s_waitcnt lgkmcnt(0)")
        for k in hits:
            if "@" in st[k]:
                a.I(f"s_cmp_eq_u32 s{sPASS}, {st[k].split('@')[1]}"); a.I(f"s_cselect_b32 s{90+k}, s64, s{90+k}")
            else:
                a.I(f"s_mov_b32 s{90+k}, s64")
    def stamp_out(self):
        if not self.o.get("stamps"): return
        a = self.a
        a.I("s_mov_b64 exec, 1")
        a.I(f"s_lshl_b32 s64, s2, 2"); a.I(f"s_add_u32 s64, s64, s{sW}"); a.I("s_lshl_b32 s64, s64, 6"); a.I("s_add_u32 s64, s64, 0x80000")
        a.I("v_mov_b32 v44, 0")
        for k in range(12): a.I(f"v_mov_b32 v{28+k}, s{90+k}")
        for k in range(3): a.I(f"buffer_store_dwordx4 {V(28+4*k)}, v44, {S(rWS)}, s64 offen offset:{16*k}")
        if self.o.get("dbgst"):
            a.I(f"s_lshl_b32 s64, s2, 2"); a.I(f"s_add_u32 s64, s64, s{sW}"); a.I("s_cmp_lg_u32 s64, 0"); a.I("s_cbranch_scc1 L_exit")
            a.I("s_nop 1")
            for k in range(1, 12): a.I(f"v_subrev_u32 v{28+k}, s90, v{28+k}")
            for k in range(3): a.I(f"buffer_store_dwordx4 {V(28+4*k)}, v44, {S(rDBG)}, 0 offen offset:{16*k}")

    def publish(self, instr, precmp=False):
        a = self.a
        if isinstance(instr, str): instr = [instr]
        ls, ld = self.nl("slow"), self.nl("pubd")
        if not precmp: a.I(f"s_cmp_lg_u32 s{sMODE}, 0")
        a.I(f"s_cbranch_scc1 {ls}")
        a.cond += 1
        for x in instr: a.I(x)
        a.cond -= 1
        a.L(ld)
        self.ool.append((ls, [x + (" sc1" if x.startswith("buffer_store") else "") for x in instr], ld))
    def thr(self, key, steer=True):
        a = self.a; T = self.o.get(key, 0); TB = self.o.get(key + "b", T)
        if not steer: TB = T
        if not T: return
        if TB == T:
            a.I(f"s_waitcnt vmcnt({T})"); return
        l = self.nl("thr")
        if TB: a.I(f"s_waitcnt vmcnt({TB})")
        a.I(f"s_cmp_lg_u32 s{sBUR}, 0"); a.I(f"s_cbranch_scc1 {l}"); a.I(f"s_waitcnt vmcnt({T})"); a.L(l)
    def rec(self, fn):
        real = self.a; items = []
        class Proxy:
            cond = 0
            grp = None
            def I(p, t):
                if t.startswith("s_mov_b64 exec") and mFULL not in t: p.grp = []
                if p.grp is not None:
                    p.grp.append(t)
                    if t.startswith("s_mov_b64 exec") and mFULL in t:
                        g = p.grp; p.grp = None
                        items.append(lambda: [real.I(x) for x in g])
                    return None
                items.append(lambda: real.I(t)); return None
            def wvm(p, ids): items.append(lambda: real.wvm(ids() if callable(ids) else ids))
            def wlg(p, ids): items.append(lambda: real.wlg0())
            def wlg0(p): items.append(lambda: real.wlg0())
            def C(p, t): pass
        self.a = Proxy()
        fn(self.a)
        self.a = real
        return items
    def interleave(self, loads, work, start=0):
        n = len(loads) - start; k = 0
        for i, ld in enumerate(loads):
            ld()
            if i >= start:
                tgt = (i - start + 1) * len(work) // n
                while k < tgt: work[k](); k += 1
    def barrier(self): self.a.I("s_barrier")
    def only_w0(self, lab):
        a = self.a
        a.I(f"s_cmp_lg_u32 s{sW}, 0"); a.I(f"s_cbranch_scc1 {lab}"); a.cond += 1
    def end_cond(self, lab):
        self.a.cond -= 1; self.a.L(lab)
    def poll(self, loads, regs, vt, depth=1, gap=2, spec=None):
        a = self.a
        def issue():
            cur = None
            for m, ins in loads:
                if m != cur: a.I(f"s_mov_b64 exec, {m or mFULL}"); cur = m
                a.I(ins)
            if cur is not None: a.I(f"s_mov_b64 exec, {mFULL}")
        for _ in range(depth - 1):
            issue()
            if gap: a.I(f"s_sleep {gap}")
        l = self.nl("poll"); a.L(l)
        issue()
        a.I(f"s_sub_u32 s{sCNT}, s{sCNT}, 1"); a.I("s_cbranch_scc1 L_abort")
        a.I(f"s_waitcnt vmcnt({(depth - 1) * len(loads)})")
        if spec and self.o.get("spec", 1): spec()
        self.check(regs, vt)
        post = (spec and not self.o.get("spec", 1))
        if self.o.get("bo"):
            lr = self.nl("retry")
            a.I(f"s_cbranch_vccnz {lr}")
            self.ool2.append((lr, l))
        else:
            a.I(f"s_cbranch_vccnz {l}")
        if post: spec()
    def check(self, regs, vt):
        a = self.a; r = list(regs)
        if len(r) % 2 == 1: a.I(f"v_max3_u32 v{vt}, v{r[0]}, v{r[1]}, v{r[2]}"); r = r[3:]
        else: a.I(f"v_max_u32 v{vt}, v{r[0]}, v{r[1]}"); r = r[2:]
        for k in range(0, len(r), 2): a.I(f"v_max3_u32 v{vt}, v{r[k]}, v{r[k+1]}, v{vt}")
        a.I(f"v_cmp_eq_u32 vcc, -1, v{vt}")
    def sleep(self, key, dflt):
        n = self.o.get(key, dflt)
        if n: self.a.I(f"s_sleep {n}")
    def trread(self, dst, addr, off):
        a = self.a
        a.I(f"ds_read_b64_tr_b16 {V(dst,2)}, v{addr} offset:{off}")
        return a.I(f"ds_read_b64_tr_b16 {V(dst+2,2)}, v{addr} offset:{off+512}")
    def pack_pub(self, val, tmp):
        a = self.a
        a.I(f"v_mov_b32_dpp v{tmp}, v{val} quad_perm:[1,1,3,3] {DPP}")
        a.I(f"v_cvt_pk_bf16_f32 v{tmp}, v{val}, v{tmp}")
        a.I(f"v_min_u32 v{tmp}, -2, v{tmp}")
    def mad(self, dst, x, c, y):
        a = self.a
        a.I(f"s_movk_i32 s{sT2}, {c}"); a.I(f"v_mad_u32_u24 v{dst}, v{x}, s{sT2}, v{y}")

    XA, XT, GA, TA, WB, XU = 28, 32, 36, 40, 44, 76
    RED = 0
    def ln_prep(self, off, preset=True):
        a = self.a
        if preset:
            for r in range(8): a.I(f"v_mov_b32 v{self.XA + r}, 0x3f803f80")
        for r in range(4): a.I(f"v_mov_b32 v{self.XU + r}, 0x3f803f80")
        self.rd = [self.trread(self.WB + 4 * j, vTR, off + j * 1024) for j in range(4)]
    def ln_head(self):
        a = self.a
        a.I(f"{MF} {V(self.TA)}, {V(self.XA)}, {V(self.WB)}, 0")
        a.I(f"{MF} {V(self.GA)}, {V(self.XA)}, {V(self.XA)}, 0")
    def ln_mm(self, head=True):
        a = self.a
        regs = [self.XA, self.XT, self.XU, self.XT]
        base = self.RED // 256
        if head: a.wlg0(); self.ln_head()
        for r in range(4): a.I(f"v_mov_b32_dpp v{self.XT + r}, v{self.XA + r} row_shl:2 {DPP}")
        for r in range(2): a.I(f"v_mov_b32_dpp v{self.XU + r}, v{self.XA + r} row_shl:4 {DPP}")
        for j in range(1, 4):
            cur = regs[j]
            a.I(f"{MF} {V(self.TA)}, {V(cur)}, {V(self.WB + 4*j)}, {V(self.TA)}")
            if j == 1:
                for r in range(2, 4): a.I(f"v_mov_b32_dpp v{self.XU + r}, v{self.XA + r} row_shl:4 {DPP}")
            a.I(f"{MF} {V(self.GA)}, {V(cur)}, {V(cur)}, {V(self.GA)}")
            if j == 1:
                for r in range(4): a.I(f"v_mov_b32_dpp v{self.XT + r}, v{self.XA + r} row_shl:6 {DPP}")
        a.I(f"s_mov_b64 exec, {mG02}")
        a.I(f"ds_write2st64_b32 v{vRW}, v{self.TA}, v{self.TA+1} offset0:{base} offset1:{base+1}")
        a.I(f"ds_write2st64_b32 v{vRW}, v{self.GA}, v{self.GA+1} offset0:{base+4} offset1:{base+5}")
        a.I(f"s_mov_b64 exec, {mFULL}")
        a.wlg0(); self.barrier()
    def ln_finish(self):
        a = self.a
        i_sq = a.I(f"ds_read_b128 {V(68)}, v{vSQ} offset:1024")
        i_sm = a.I(f"ds_read_b128 {V(72)}, v{vSM} offset:{1024+512}")
        i_raw = a.I(f"ds_read_b128 {V(60)}, v{vL16}")
        i_cs = a.I(f"ds_read_b128 {V(64)}, v{vCS} offset:512")
        a.I(f"v_mov_b32 v44, s{sEPS}")
        a.wlg(i_sm)
        a.I("v_pk_add_f32 v[68:69], v[68:69], v[70:71]")
        a.I("v_pk_add_f32 v[72:73], v[72:73], v[74:75]")
        a.I("v_add_f32 v68, v68, v69")
        a.I("v_add_f32 v72, v72, v73")
        a.I(f"v_mul_f32 v72, s{sINV}, v72")
        a.I(f"v_fma_f32 v68, v68, s{sINV}, v44")
        a.I("v_fma_f32 v68, -v72, v72, v68")
        a.I(f"v_max_f32 v68, s{sEPS}, v68")
        a.I("v_rsq_f32 v68, v68")
        a.wlg(i_cs)
        a.I("v_pk_add_f32 v[60:61], v[60:61], v[62:63]")
        a.I("v_pk_add_f32 v[64:65], v[64:65], v[66:67]")
        a.I("v_add_f32 v60, v60, v61")
        a.I("v_add_f32 v64, v64, v65")
        a.I("v_fma_f32 v60, -v72, v64, v60")

    def qk_prep(self, qc=True):
        a = self.a
        if qc:
            for r in range(4): a.I(f"v_mov_b32 v{QC + r}, 0")
        for u in range(4):
            for r in range(2): a.I(f"v_mov_b32 v{SC + 4*u + r}, 0")
        for e in range(8):
            for r in range(2): a.I(f"v_mov_b32 v{ACC + 4*e + r}, 0")
    def qk(self, fill=None):
        a = self.a
        def base(H, rs):
            for r in rs: a.I(f"v_and_b32_dpp v{QB[H]+r}, v{QC+r}, v{vM01} quad_perm:[{2*H},{2*H+1},0,0] {DPP}")
        base(0, range(4))
        steps = [(G, H) for G in range(4) for H in range(2)]
        def reg(n):
            G, H = steps[n]
            return QB[H] if G == 0 else RB[n % 2]
        def bld(n, rs):
            G, H = steps[n]
            if G == 0: base(1, rs); return
            for r in rs: a.I(f"v_mov_b32_dpp v{RB[n%2]+r}, v{QB[H]+r} row_shr:{4*G} {DPP} bound_ctrl:0")
        for n, (G, H) in enumerate(steps):
            for u in range(4):
                t = 8 * (u >> 1) + 2 * G + (u & 1)
                a.I(f"{SMF} {V(SC+4*u)}, {V(reg(n))}, {Ar(16*t + 8*H, 8)}, v{vIDX}")
                if n + 1 < 8 and u < 2: bld(n + 1, (0, 1) if u == 0 else (2, 3))
                if fill and u >= 2: fill(n)
    def xlane(self, r, t, op):
        L = []
        L.append(f"{op}_dpp v{r}, v{r}, v{r} quad_perm:[1,0,3,2] {DPP}")
        L.append(f"{op}_dpp v{r}, v{r}, v{r} quad_perm:[2,3,0,1] {DPP}")
        L.append(f"{op}_dpp v{r}, v{r}, v{r} row_ror:4 {DPP}")
        L.append(f"{op}_dpp v{r}, v{r}, v{r} row_ror:8 {DPP}")
        L.append(f"v_mov_b32 v{t}, v{r}")
        L.append(f"v_permlane32_swap_b32 v{t}, v{r}")
        L.append(f"{op} v{r}, v{r}, v{t}")
        L.append(f"v_mov_b32 v{t}, v{r}")
        L.append(f"v_permlane16_swap_b32 v{t}, v{r}")
        L.append(f"{op} v{r}, v{r}, v{t}")
        return L
    def softmax(self, early_m):
        a = self.a; s = SC
        for u in range(4): a.I(f"v_add_f32 v{s+u}, v{s+4*u}, v{s+4*u+1}")
        a.I(f"v_max_f32 v{vM}, v{s}, v{s+1}")
        a.I(f"v_max3_f32 v{vM}, v{s+2}, v{s+3}, v{vM}")
        for x in self.xlane(vM, vL, "v_max_f32"): a.I(x)
        a.I(f"v_mul_f32 v{vM}, s{sC}, v{vM}")
        for k in range(4): a.I(f"v_fma_f32 v{s+k}, v{s+k}, s{sC}, -v{vM}")
        for k in range(4): a.I(f"v_exp_f32 v{s+k}, v{s+k}")
        a.I(f"v_cvt_pk_bf16_f32 v{s+4}, v{s}, v{s+1}"); a.I(f"v_cvt_pk_bf16_f32 v{s+5}, v{s+2}, v{s+3}")
        a.I(f"ds_write2_b32 v{vPW}, v{s+4}, v{s+5} offset0:0 offset1:64")
        a.I(f"s_mov_b64 exec, {mL0}"); a.I(f"ds_write_b32 v{vRW}, v{vM} offset:{ML_LDS}"); a.I(f"s_mov_b64 exec, {mFULL}")
        a.I(f"v_pk_add_f32 v[{s}:{s+1}], v[{s}:{s+1}], v[{s+2}:{s+3}]")
        a.I(f"v_add_f32 v{vL}, v{s}, v{s+1}")
        a.I(f"v_mov_b32 v62, 0")
        a.wlg0()
        if early_m: self.barrier()
        order = (2, 3, 0, 1) if early_m else (0, 1, 2, 3)
        ids = {g: a.I(f"ds_read_b128 {V(PA + 4*g)}, v{vPR} offset:{g*128}") for g in order}
        return ids, self.xlane(vL, 63, "v_add_f32")
    def attn_out(self, wo=True):
        a = self.a
        for e in range(8): a.I(f"v_add_f32 v{44 + e}, v{ACC + 4*e}, v{ACC + 4*e + 1}")
        a.I(f"s_mov_b64 exec, {mLO16}")
        a.I(f"ds_write_b128 v{vAW}, {V(44)}"); a.I(f"ds_write_b128 v{vAW}, {V(48)} offset:16")
        a.I(f"s_mov_b64 exec, {mFULL}")
    def l_write(self):
        a = self.a
        a.I(f"s_mov_b64 exec, {mL0}"); a.I(f"ds_write_b32 v{vRW}, v{vL} offset:{ML_LDS + 16}"); a.I(f"s_mov_b64 exec, {mFULL}")
    def f_read(self):
        return self.a.I(f"ds_read_b128 {V(F)}, v62 offset:{ML_LDS}")
    def f_calc(self):
        L = [f"v_max3_f32 v{vM}, v{F}, v{F+1}, v{F+2}", f"v_max_f32 v{vM}, v{vM}, v{F+3}"]
        for k in range(4): L.append(f"v_sub_f32 v{F+k}, v{F+k}, v{vM}")
        for k in range(4): L.append(f"v_exp_f32 v{F+k}, v{F+k}")
        L.append(f"v_min_u32 v{vM}, -2, v{vM}")
        return L
    def perm_half(self, blk, h, t1=54, t2=55):
        a = self.a
        R = lambda s, d: blk + 8 * s + 4 * h + d
        lo = lambda dst, x, y: a.I(f"v_perm_b32 v{dst}, v{y}, v{x}, s{sPLO}")
        hi = lambda dst, x, y: a.I(f"v_perm_b32 v{dst}, v{y}, v{x}, s{sPHI}")
        for p in range(4):
            x, y = R(2*p, p), R(2*p+1, p)
            lo(t1, x, y); hi(y, x, y); a.I(f"v_mov_b32 v{x}, v{t1}")
        for p in range(4):
            for d in range(p + 1, 4):
                ax, ay = R(2*p, d), R(2*p+1, d); bx, by = R(2*d, p), R(2*d+1, p)
                lo(t1, ax, ay); hi(t2, ax, ay); lo(ax, bx, by); hi(ay, bx, by)
                a.I(f"v_mov_b32 v{bx}, v{t1}"); a.I(f"v_mov_b32 v{by}, v{t2}")

    def build(self):
        a = self.a; o = self.o
        KV = "" if o.get("kvdef") else " nt"
        WP = " nt" if o.get("wpol") else ""
        a.raw(HEADER.rstrip())
        a.raw("; @launch grid=(256,1,1) block=(256,1,1) lds=163840")
        a.raw('.amdgcn_target "amdgcn-amd-amdhsa--gfx950"')
        a.raw(".text"); a.raw(f".globl {KNAME}"); a.raw(".p2align 8"); a.raw(f".type {KNAME},@function"); a.raw(f"{KNAME}:")
        a.I("s_cmp_ge_u32 s2, 256"); a.I("s_cbranch_scc1 L_exit")
        if o.get("stamps"): a.I(("s_memtime" if o.get("cyc") else "s_memrealtime") + " s[8:9]")
        if o.get("late"): a.I("s_memrealtime s[70:71]")
        a.I("s_load_dwordx16 s[76:91], s[0:1], 0")
        a.I("s_load_dwordx8 s[92:99], s[0:1], 64")
        a.I("s_load_dwordx2 s[100:101], s[0:1], 96")
        a.I("v_lshrrev_b32 v1, 6, v0")
        a.I(f"v_readfirstlane_b32 s{sW}, v1")
        a.I("v_and_b32 v0, 63, v0")
        a.I(f"s_and_b32 s{sX}, s2, 7"); a.I(f"s_lshr_b32 s{sI}, s2, 3")
        vg, vn = 28, 29
        KD = 84; KR = 88; WD = 92
        a.I(f"v_lshrrev_b32 v{vg}, 4, v0"); a.I(f"v_and_b32 v{vn}, 15, v0")
        a.I(f"v_lshlrev_b32 v{vVO}, 4, v0")
        a.I(f"v_xor_b32 v30, v{vg}, v{vn}")
        for q in range(4):
            a.I(f"v_xor_b32 v31, {4*q}, v30"); a.I(f"v_lshlrev_b32 v31, 4, v31")
            a.I(f"v_lshl_add_u32 v31, v{vg}, 8, v31"); a.I(f"v_add_u32 v{KD+q}, {q*1024}, v31")
        a.I(f"s_bfe_u32 s{sT0}, s{sI}, 0x10002"); a.I(f"s_lshl_b32 s{sT0}, s{sT0}, 5")
        a.I(f"s_lshl_b32 s{sT1}, s{sX}, 2"); a.I(f"s_add_u32 s{sT0}, s{sT0}, s{sT1}")
        a.I(f"s_lshr_b32 s{sT1}, s{sI}, 3"); a.I(f"s_add_u32 s{sT0}, s{sT0}, s{sT1}")
        a.I(f"s_lshl_b32 s{sT0}, s{sT0}, 4")
        a.I(f"s_and_b32 s{sT1}, s{sI}, 3"); a.I(f"s_lshl_b32 s{sT1}, s{sT1}, 2"); a.I(f"s_add_u32 s{sT0}, s{sT0}, s{sT1}")
        a.I(f"s_add_u32 s{sT0}, s{sT0}, s{sW}"); a.I(f"s_lshl_b32 s{sT0}, s{sT0}, 16")
        a.I(f"s_lshl_b32 s{sROT}, s2, 2"); a.I(f"s_add_u32 s{sROT}, s{sROT}, s{sW}")
        rm = o.get("rotm", 0)
        if rm == 0:
            a.I(f"s_mul_i32 s{sROT}, s{sROT}, 0x9E3779B1"); a.I(f"s_lshr_b32 s{sROT}, s{sROT}, 28"); a.I(f"s_lshl_b32 s{sROT}, s{sROT}, 12")
        else:
            ci, cw, cx = {1: (4, 1, 3), 2: (1, 4, 2), 3: (5, 4, 1), 4: (2, 8, 1), 5: (1, 0, 0), 6: (0, 4, 1)}[rm]
            a.I(f"s_mul_i32 s{sROT}, s{sI}, {ci}"); a.I(f"s_mul_i32 s{sT1}, s{sW}, {cw}"); a.I(f"s_add_u32 s{sROT}, s{sROT}, s{sT1}")
            a.I(f"s_mul_i32 s{sT1}, s{sX}, {cx}"); a.I(f"s_add_u32 s{sROT}, s{sROT}, s{sT1}"); a.I(f"s_and_b32 s{sROT}, s{sROT}, 15"); a.I(f"s_lshl_b32 s{sROT}, s{sROT}, 12")
        a.I(f"s_mul_i32 s{sWB}, s{sW}, {WAREA}"); a.I(f"s_add_u32 s{sWB}, s{sWB}, {WBASE0}")
        a.I(f"s_mov_b32 s{rK+2}, 65536"); a.I(f"s_mov_b32 s{rK+3}, 0x20000")
        a.I("s_waitcnt lgkmcnt(0)")
        if "karg" in o.get("stamps", []): a.I("s_memrealtime s[10:11]")
        a.I(f"s_add_u32 s{rK}, s78, s{sT0}"); a.I(f"s_addc_u32 s{rK+1}, s79, 0")
        kid = {}
        nothr = {4, 5} if o.get("nq", 1) else set()
        def ktile(t):
            if t >= 6: a.I("s_waitcnt lgkmcnt(4)")
            a.I(f"s_add_u32 s{sT1}, s{sROT}, {t*4096}"); a.I(f"s_and_b32 s{sT1}, s{sT1}, 0xffff")
            for q in range(4):
                if t >= 2 and t not in nothr: self.thr("tk")
                a.I(f"s_add_u32 m0, s{sWB}, {V_OFF + (t % 6) * 4096 + q * 1024}")
                kid[t] = a.I(f"buffer_load_dwordx4 v{KD+q}, {S(rK)}, s{sT1} offen{KV} lds")
        def kread(t):
            a.wvm(kid[t])
            for j in range(4): a.I(f"ds_read_b128 {Ar(16*t+4*j)}, v{KR+j} offset:{V_OFF + (t % 6) * 4096}")
        ktile(0)
        NI = o.get("ni", 1)
        nothr |= set(range(NI))
        a.I(f"s_load_dword s{sXCC}, s[100:101], {EPO}")
        for t in range(1, NI): ktile(t)
        a.I(f"s_add_u32 s{rV}, s80, s{sT0}"); a.I(f"s_addc_u32 s{rV+1}, s81, 0")
        wsz = WS_BYTES
        for r, sz in ((rV, 65536), (rWQ, 1 << 22), (rWO, 1 << 22), (rW1, 512 * 2752), (rW2, 1376 * 1024), (rWS, wsz), (rT, 2048), (rOUT, 2048)):
            a.I(f"s_mov_b32 s{r+2}, {sz}"); a.I(f"s_mov_b32 s{r+3}, 0x20000")
        for r, p in ((rWS, 100), (rT, 76), (rWQ, 82), (rWO, 84), (rW1, 88), (rW2, 92), (rOUT, 96)):
            a.I(f"s_mov_b64 s[{r}:{r+1}], s[{p}:{p+1}]")
        self.only_w0("L_noclear")
        for r in range(4): a.I(f"v_mov_b32 v{32+r}, -1")
        a.I(f"s_lshl_b32 s{sT1}, s2, 11")
        a.I(f"buffer_store_dwordx4 {V(32)}, v{vVO}, {S(rWS)}, s{sT1} offen sc1")
        clr = a.I(f"buffer_store_dwordx4 {V(32)}, v{vVO}, {S(rWS)}, s{sT1} offen offset:1024 sc1")
        if o.get("late"):
            a.I(f"s_lshl_b32 s{sT1}, s{sX}, 5"); a.I(f"s_add_u32 s{sT1}, s{sT1}, s{sI}"); a.I(f"s_lshl_b32 s{sT1}, s{sT1}, 2"); a.I(f"s_add_u32 s{sT1}, s{sT1}, {TOK + 1024}")
            a.I("v_mov_b32 v36, s70"); a.I("s_mov_b64 exec, 1")
            clr = a.I(f"buffer_store_dword v36, v{vVO}, {S(rWS)}, s{sT1} offen sc1")
            a.I("s_mov_b64 exec, -1")
        self.end_cond("L_noclear")
        a.I("v_bfe_u32 v30, v0, 3, 2"); a.I("v_lshrrev_b32 v31, 5, v0"); a.I("v_lshl_add_u32 v30, v30, 1, v31")
        a.I("v_bfe_u32 v31, v0, 1, 2"); a.I("v_lshl_add_u32 v30, v30, 2, v31")
        a.I("v_and_b32 v31, 1, v0"); a.I("v_lshlrev_b32 v31, 4, v31")
        self.mad(WD, 30, 8192, 31); self.mad(WD + 1, 30, 1024, 31); self.mad(WD + 2, 30, 2752, 31)
        a.I(f"s_lshl_b32 s{sT0}, s{sW}, 20"); a.I(f"s_lshl_b32 s{sT1}, s{sX}, 10"); a.I(f"s_add_u32 s{sT0}, s{sT0}, s{sT1}")
        a.I(f"s_lshl_b32 s{sT1}, s{sI}, 5"); a.I(f"s_add_u32 s{sP0}, s{sT0}, s{sT1}")
        def wdma(voff, srd, sbase, goff, lds_expr):
            if goff: a.I(f"s_add_u32 s{sT0}, s{sbase}, {goff}"); sb = sT0
            else: sb = sbase
            a.I(lds_expr)
            if (o.get("nowq") and srd == rWQ) or (o.get("nowo") and srd == rWO): return xid0[0]
            return a.I(f"buffer_load_dwordx4 v{voff}, {S(srd)}, s{sb} offen{WP} lds")
        xid0 = [kid[0]]
        wq = lambda j: wdma(WD, rWQ, sP0, j * 32 * 8192, f"s_add_u32 m0, s{sWB}, {WQ_OFF + j*1024}")
        wqid = [wq(0)]
        a.I(f"v_bfe_u32 v30, v0, 4, 1")
        a.I(f"v_lshlrev_b32 v31, 1, v{vn}")
        self.mad(vPX, 30, 1024, 31); self.mad(vPH, 30, 384, 31)
        a.I("v_bfe_u32 v32, v0, 2, 2"); a.I("v_bfe_u32 v33, v0, 1, 1"); a.I("v_lshl_add_u32 v32, v33, 2, v32"); a.I("v_lshlrev_b32 v32, 2, v32")
        self.mad(vPQ, 30, 256, 32)
        a.I(f"v_add_u32 v{vR2}, v31, v30"); a.I(f"v_lshlrev_b32 v{vR2}, 2, v{vR2}")
        a.I(f"v_mul_u32_u24 v{vSQ}, 272, v30"); a.I(f"v_lshlrev_b32 v{vSM}, 4, v30"); a.I(f"v_lshlrev_b32 v{vCS}, 4, v{vn}")
        a.I(f"v_and_b32 v32, 3, v0"); a.I(f"v_lshl_add_u32 v32, v30, 2, v32"); a.I(f"v_lshlrev_b32 v{vMLG}, {self.mls}, v32")
        a.I("v_bfe_u32 v32, v0, 1, 3"); a.I(f"v_lshl_add_u32 v32, v32, 2, v{vg}"); a.I("v_lshlrev_b32 v32, 4, v32"); a.I("v_and_b32 v33, 1, v0")
        self.mad(vXG, 33, 1024, 32); self.mad(vHG, 33, 384, 32)
        for r in range(8): a.I(f"v_mov_b32 v{36 + r}, 0x3f803f80")
        a.I(f"v_cmp_gt_u32 {mN8}, 8, v{vn}"); a.I(f"v_cmp_gt_u32 {mN4}, 4, v{vn}")
        a.I(f"s_mov_b64 {mFULL}, -1")
        a.I(f"s_add_u32 s{sJ}, s{sI}, {o.get('rj', 8)}"); a.I(f"s_and_b32 s{sJ}, s{sJ}, 31")
        a.I(f"s_add_u32 s{sJ2}, s{sI}, {o.get('rj2', 16)}"); a.I(f"s_and_b32 s{sJ2}, s{sJ2}, 31")
        a.I(f"s_lshl_b32 s{sT0}, s{sW}, 8")
        a.I(f"s_mov_b64 exec, {mN8}")
        xid = a.I(f"buffer_load_dwordx4 {V(36)}, v{vXG}, {S(rT)}, s{sT0} offen")
        a.I(f"s_mov_b64 exec, {mFULL}")
        a.I(f"s_lshl_b32 s{sT0}, s{sJ}, 5")
        a.I(f"buffer_load_ushort v{vXR}, v{vPX}, {S(rT)}, s{sT0} offen")
        a.I(f"s_mov_b64 s[{rT}:{rT+1}], s[94:95]"); a.I(f"s_mov_b32 s{rT+2}, 1024")
        a.I(f"buffer_load_ushort v{vB2}, v31, {S(rT)}, s{sT0} offen")
        a.I(f"s_mul_i32 s{sP1}, s{sX}, 11"); a.I(f"s_max_u32 s{sT0}, s{sX}, 6"); a.I(f"s_sub_u32 s{sT0}, s{sT0}, 6"); a.I(f"s_sub_u32 s{sP1}, s{sP1}, s{sT0}")
        a.I(f"s_sub_u32 s{sP2}, s{sI}, {HCU0}")
        a.I(f"s_cmp_lt_u32 s{sX}, 6"); a.I(f"s_cselect_b32 s{sT0}, 11, 10")
        a.I(f"s_cselect_b32 s34, 0x0fff0fff, 0x03ff03ff") if False else None
        a.I("s_mov_b32 s35, 0x03ff03ff"); a.I("s_cselect_b32 s34, 0x0fff0fff, s35")
        a.I(f"s_cmp_lt_u32 s{sP2}, s{sT0}"); a.I(f"s_cselect_b32 s{sHCU}, 1, 0")
        a.I(f"s_add_u32 s{sP3}, s{sP1}, s{sP2}"); a.I(f"s_lshl_b32 s{sP3}, s{sP3}, 5")
        a.I(f"s_mov_b64 s[{rT}:{rT+1}], s[90:91]"); a.I(f"s_mov_b32 s{rT+2}, 2752")
        bid = a.I(f"buffer_load_ushort v{vB1}, v31, {S(rT)}, s{sP3} offen")
        if NI < 2: ktile(1)
        wqid.append(wq(1))
        if o.get("stamps"):
            for k in range(12): a.I(f"s_mov_b32 s{90+k}, 0")
            for k, x in enumerate(o["stamps"]):
                if x == "start": a.I(f"s_mov_b32 s{90+k}, s8")
        a.I(f"s_lshr_b32 s{sT0}, s{sI}, 2"); a.I(f"s_cmp_eq_u32 s{sT0}, 3"); a.I(f"s_cselect_b32 s{sBUR}, 1, 0")
        a.I(f"s_lshr_b32 s{sT0}, s{sJ}, 2"); a.I(f"s_cmp_eq_u32 s{sT0}, 3"); a.I(f"s_cselect_b32 s{sBUR}, 1, s{sBUR}")
        if o.get("bur2", 0):
            a.I(f"s_lshr_b32 s{sT0}, s{sJ2}, 2"); a.I(f"s_cmp_eq_u32 s{sT0}, 3"); a.I(f"s_cselect_b32 s{sBUR}, 1, s{sBUR}")
        a.I("v_and_b32 v32, 7, v0"); a.I("v_bfe_u32 v33, v0, 3, 1"); a.I("v_lshl_add_u32 v32, v32, 2, v33")
        a.I(f"v_lshl_add_u32 v32, v32, 2, v{vg}"); a.I(f"v_lshlrev_b32 v{vAPG}, 4, v32")
        a.I("v_bfe_u32 v32, v0, 1, 1"); a.I(f"v_lshl_add_u32 v32, v32, 2, v{vg}"); a.I("v_and_b32 v33, 1, v0"); a.I("v_lshl_add_u32 v32, v32, 1, v33"); a.I(f"v_lshlrev_b32 v{vQG}, 4, v32")
        a.I(f"v_mov_b32 v34, 0xeeee"); a.I(f"v_mov_b32 v35, 0x4444"); a.I("v_cmp_eq_u32 vcc, 1, v33"); a.I(f"v_cndmask_b32 v{vIDX}, v35, v34, vcc")
        a.I(f"v_cmp_gt_u32 vcc, 2, v{vn}"); a.I(f"v_cndmask_b32 v{vM01}, 0, -1, vcc")
        a.I(f"s_lshl_b32 s{sT0}, s{sW}, 9"); a.I(f"s_add_u32 s{sT0}, s{sT0}, {P_LDS}")
        a.I(f"v_lshl_add_u32 v32, v{vg}, 1, v33"); a.I(f"v_lshl_add_u32 v{vPR}, v32, 4, s{sT0}")
        a.I("v_lshrrev_b32 v32, 5, v0"); a.I("v_bfe_u32 v34, v0, 4, 1"); a.I("v_lshl_add_u32 v32, v32, 1, v34")
        a.I("v_bfe_u32 v34, v0, 1, 1"); a.I("v_lshl_add_u32 v32, v32, 1, v34")
        a.I("v_bfe_u32 v34, v0, 2, 1"); a.I("v_lshl_add_u32 v32, v32, 1, v34")
        a.I("v_lshl_add_u32 v32, v32, 1, v33")
        a.I("v_bfe_u32 v34, v0, 3, 1"); a.I("v_lshl_add_u32 v32, v32, 1, v34")
        a.I(f"v_lshl_add_u32 v{vPW}, v32, 2, s{sT0}")
        a.I(f"v_lshlrev_b32 v{vL4}, 2, v0"); a.I(f"v_lshlrev_b32 v{vL8}, 3, v0")
        a.I(f"s_lshl_b32 s{sT0}, s{sW}, 2"); a.I(f"v_lshl_add_u32 v{vRW}, v0, 4, s{sT0}")
        a.I(f"s_lshl_b32 s{sT0}, s{sW}, 9"); a.I(f"v_lshl_add_u32 v{vAW}, v0, 5, s{sT0}")
        a.I(f"v_lshl_add_u32 v{vTR}, v0, 3, s{sWB}"); a.I(f"v_lshl_add_u32 v{vLV}, v0, 4, s{sWB}")
        a.I(f"v_lshlrev_b32 v32, 8, v{vn}"); a.I(f"v_add_u32 v32, s{sWB}, v32")
        a.I(f"v_xor_b32 v33, v{vg}, v{vn}")
        for j in range(4):
            a.I(f"v_xor_b32 v34, {4*j}, v33"); a.I(f"v_lshl_add_u32 v{KR+j}, v34, 4, v32")
        a.I(f"s_getreg_b32 s{sT0}, hwreg(HW_REG_XCC_ID, 0, 4)")
        a.I("s_waitcnt lgkmcnt(0)")
        if "karg" in o.get("stamps", []): a.I(f"s_mov_b32 s{90 + o['stamps'].index('karg')}, s10")
        self.stamp("epo")
        a.I(f"s_and_b32 s{sXCC}, s{sXCC}, -16"); a.I(f"s_add_u32 s{sXCC}, s{sXCC}, 16"); a.I(f"s_or_b32 s{sXCC}, s{sXCC}, s{sT0}")
        self.only_w0("L_noflag")
        a.I(f"s_lshl_b32 s{sT0}, s{sX}, 7"); a.I(f"s_lshl_b32 s{sT1}, s{sI}, 2"); a.I(f"s_add_u32 s{sT0}, s{sT0}, s{sT1}"); a.I(f"s_add_u32 s{sT0}, s{sT0}, {TOK}")
        a.I(f"v_mov_b32 v32, s{sXCC}")
        a.wvm(clr)
        a.I("s_mov_b64 exec, 1")
        a.I(f"buffer_store_dword v32, v{vL4}, {S(rWS)}, s{sT0} offen sc1")

        a.I(f"s_mov_b64 exec, {mFULL}")
        self.end_cond("L_noflag")
        self.stamp("tok")
        a.I(f"s_mov_b32 s{sC}, {f2u(math.log2(math.e) / math.sqrt(128.0))}")
        k1 = -2.0 * math.sqrt(2.0 / math.pi) * math.log2(math.e)
        a.I(f"s_mov_b32 s{sK1}, {f2u(k1)}"); a.I(f"s_mov_b32 s{sK2}, {f2u(k1 * 0.044715)}")
        a.I(f"s_mov_b32 s{sINV}, {f2u(1.0 / 512)}"); a.I(f"s_mov_b32 s{sEPS}, {f2u(1e-5)}")
        a.I(f"s_mov_b32 s{sPLO}, 0x05040100"); a.I(f"s_mov_b32 s{sPHI}, 0x07060302")
        a.I("s_mov_b32 s22, -1"); a.I("s_mov_b32 s23, 0"); a.I("s_mov_b32 s24, 0x55555555"); a.I("s_mov_b32 s25, 0")
        a.I("s_mov_b32 s30, 0xffff"); a.I("s_mov_b32 s31, 0xffff"); a.I("s_mov_b64 s[32:33], 1")
        a.I("s_mov_b32 s76, 0xffff"); a.I("s_mov_b32 s77, 0")
        a.I(f"s_mul_i32 s{sREG}, s{sX}, {2*REGION}")
        a.I(f"s_lshl_b32 s{sYP}, s{sJ}, 10"); a.I(f"s_add_u32 s{sYP}, s{sYP}, {YP}")
        a.I(f"s_mov_b32 s{sPASS}, 0"); a.I(f"s_mov_b32 s{sCNT}, {o.get('timeout', 400000)}"); a.I(f"s_mov_b32 s{sMODE}, 1")
        D = o.get("kd", 2)
        def kstep(t):
            if t >= NI: ktile(t)
            if t - D >= 0: kread(t - D)
        if D == 1: kread(0)
        kstep(2); self.stamp("k0"); wqid.append(wq(2))
        kstep(3); self.stamp("k1"); wqid.append(wq(3))
        a.I(f"s_lshl_b32 s{sT0}, s{sX}, 19"); a.I(f"s_lshl_b32 s{sT1}, s{sW}, 17"); a.I(f"s_add_u32 s{sT0}, s{sT0}, s{sT1}")
        a.I(f"s_lshl_b32 s{sT1}, s{sJ}, 5"); a.I(f"s_add_u32 s{sP0}, s{sT0}, s{sT1}")
        a.I(f"s_mov_b32 s68, s{sP0}")
        wo_ = lambda j, vo=WD + 1: wdma(vo, rWO, 68, j * 32 * 1024, f"s_add_u32 m0, s{sWB}, {WO_OFF + j*1024}")
        wo = (lambda j: None) if o.get("wolate") else wo_
        kstep(4); self.stamp("k2"); wo(0)
        kstep(5)
        a.C("Q1"); self.stamp("q1in")
        a.wvm([bid, xid] + wqid)
        a.I(f"v_lshlrev_b32 v{vXR}, 16, v{vXR}"); a.I(f"v_lshlrev_b32 v{vB1}, 16, v{vB1}"); a.I(f"v_lshlrev_b32 v{vB2}, 16, v{vB2}")
        for r in range(8): a.I(f"v_mov_b32 v{self.XA + r}, v{36 + r}")
        if o.get("tok", 2) == 1:
            self.only_w0("L_tk0"); a.I("v_mov_b32 v60, 0"); a.I(f"ds_write_b32 v60, v60 offset:{ML_LDS + 64}"); self.end_cond("L_tk0")
        self.ln_prep(WQ_OFF, preset=False)
        self.ln_mm()
        self.only_w0("L_q1nf")
        self.ln_finish()
        a.I("v_mul_f32 v60, v60, v68")
        self.pack_pub(60, 27)
        self.end_cond("L_q1nf")
        self.stamp("q1done")
        kstep(6); wo(1)
        a.C("flags check")
        def flagchk():
            for r in range(4): a.I(f"v_xor_b32 v{28+r}, s{sXCC}, v{28+r}")
            a.I("v_or3_b32 v28, v28, v29, v30"); a.I("v_or_b32 v28, v28, v31")
            a.I("v_cmp_lt_u32 vcc, 15, v28")
        a.I(f"s_mov_b32 s{sP2}, {TOK}")
        fins = f"buffer_load_dwordx4 {V(28)}, v{vL16}, {S(rWS)}, s{sP2} offen sc1"
        tk = o.get("tok", 2)
        if tk == 0:
            kstep(7); a.I(f"s_mov_b32 s{sMODE}, 0")
        else:
            if tk == 1:
                self.only_w0("L_tk1"); fid = a.I(fins); self.end_cond("L_tk1")
                kstep(7)
                self.only_w0("L_tk2")
            else:
                fid = a.I(fins)
                kstep(7)
            a.wvm(fid); flagchk()
            a.I("s_cbranch_vccz L_flagok")
            a.L("L_flagpoll"); a.cond += 1
            a.I("s_sleep 8")
            a.I(fins); a.I(f"s_sub_u32 s{sCNT}, s{sCNT}, 1"); a.I("s_cbranch_scc1 L_abort")
            a.wvm0(); flagchk(); a.I("s_cbranch_vccnz L_flagpoll")
            self.end_cond("L_flagok")
            a.I("v_cmp_ne_u32 vcc, 0, v28")
            a.I(f"s_lshl_b32 s{sT0}, s{sX}, 3"); a.I(f"s_nop 0"); a.I(f"s_lshr_b64 vcc, vcc, s{sT0}"); a.I(f"s_and_b32 s{sMODE}, vcc_lo, 0xff")
            if o.get("late"): tid = a.I(f"buffer_load_dword v32, v{vL16}, {S(rWS)}, s{sP2} offen offset:1024 sc1")
            if tk == 1:
                a.I("v_mov_b32 v28, 1"); a.I("v_mov_b32 v29, 0")
                a.I(f"ds_write_b32 v29, v28 offset:{ML_LDS + 64}")
                self.end_cond("L_tk2")
        self.stamp("flagok")
        if o.get("force_slow"): a.I(f"s_mov_b32 s{sMODE}, 1")
        self.only_w0("L_q1np")
        self.q_soff()
        self.q_publish(27)
        self.end_cond("L_q1np")
        kstep(8); wo(2)
        kstep(9); wo(3)
        if o.get("late"):
            a.wvm(tid)
            a.I("v_subrev_u32 v32, s70, v32")
            a.I(f"v_cmp_gt_i32 vcc, {-o['late']}, v32")
            a.I(f"s_nop 1")
            a.I(f"s_bcnt1_i32_b64 s{sT0}, vcc"); a.I(f"s_cmp_gt_u32 s{sT0}, {o.get('latec', 28)}"); a.I(f"s_cselect_b32 s{sBUR}, 1, s{sBUR}")
        a.I(f"s_lshl_b32 s{sT0}, s{sP1}, 14"); a.I(f"s_lshl_b32 s{sT1}, s{sW}, 16"); a.I(f"s_add_u32 s{sT0}, s{sT0}, s{sT1}")
        a.I(f"s_lshl_b32 s{sT1}, s{sJ2}, 5"); a.I(f"s_add_u32 s{sP0}, s{sT0}, s{sT1}")
        a.I(f"s_mov_b32 s{sW2B}, s{sP0}")
        a.I(f"s_mul_i32 s{sT0}, s{sW}, {128*2752}"); a.I(f"s_add_u32 s{sW1B}, s{sT0}, s{sP3}")
        self.wdma = wdma; self.WD = WD
        for t in range(10, 16): kstep(t)
        def prewarm():
            a.I("v_lshrrev_b32 v52, 2, v0"); a.I("v_and_b32 v53, 3, v0"); a.I("v_lshlrev_b32 v53, 7, v53"); a.I("v_min_u32 v53, 348, v53")
            self.mad(52, 52, 2752, 53)
            a.I(f"s_lshl_b32 s{sT0}, s{sI}, 2"); a.I(f"s_add_u32 s{sT0}, s{sT0}, s{sW}")
            a.I(f"s_mul_i32 s{sT1}, s{sT0}, {4*2752}"); a.I(f"s_lshl_b32 s{sT2}, s{sT0W}, 5"); a.I(f"s_add_u32 s{sT1}, s{sT1}, s{sT2}")
            a.I(f"s_mov_b64 exec, {mLO16}")
            a.I(f"buffer_load_dword v27, v52, {S(rW1)}, s{sT1} offen")
            a.I(f"s_mul_i32 s{sT1}, s{sT0}, {12*128}"); a.I(f"s_lshl_b32 s{sT2}, s{sT0W}, 14"); a.I(f"s_add_u32 s{sT1}, s{sT1}, s{sT2}")
            a.I("v_lshlrev_b32 v52, 7, v0")
            a.I("s_mov_b64 exec, 0xfff")
            a.I(f"buffer_load_dword v27, v52, {S(rW2)}, s{sT1} offen")
            if o.get("pt", 1):
                a.I(f"s_mul_i32 s{sT1}, s{sT0}, {3*128}"); a.I(f"s_add_u32 s{sT1}, s{sT1}, s{sREG}")
                a.I("s_mov_b64 exec, 7")
                a.I(f"buffer_load_dword v27, v52, {S(rWS)}, s{sT1} offen sc1")
            a.I(f"s_mov_b64 exec, {mFULL}")
        vid = {}
        def vload(sg, k):
            h, x, b = k >> 3, (k >> 1) & 3, k & 1
            if k % 8 == 0:
                for bb in range(2):
                    a.I(f"s_add_u32 s{sT1}, s{sROT}, {(4*sg + 2*h + bb)*4096}"); a.I(f"s_and_b32 s{(sP0, sP2)[bb]}, s{sT1}, 0xffff")
            self.thr("tv", steer=(o.get("ssg", 15) >> sg) & 1)
            vid[(sg, k)] = a.I(f"buffer_load_dwordx4 {V(sgblk(sg) + 8*(2*x + b) + 4*h)}, v{vVO}, {S(rV)}, s{(sP0, sP2)[b]} offen offset:{x*1024}{KV}")
        a.C("q1 gather")
        if o.get("tok", 2) == 1:
            a.I("v_mov_b32 v29, 0")
            a.L("L_tkw")
            a.I(f"ds_read_b32 v28, v29 offset:{ML_LDS + 64}")
            a.I(f"s_sub_u32 s{sCNT}, s{sCNT}, 1"); a.I("s_cbranch_scc1 L_abort")
            a.wlg0(); a.I("v_cmp_ne_u32 vcc, 1, v28"); a.I("s_cbranch_vccnz L_tkw")
        for r in range(4): a.I(f"v_mov_b32 v{QC + r}, 0")
        a.I(f"s_lshr_b32 s{sP3}, s{sI}, 2"); a.I(f"s_lshl_b32 s{sP3}, s{sP3}, 8"); a.I(f"s_add_u32 s{sP3}, s{sP3}, s{sREG}")
        qins = f"buffer_load_dwordx4 {V(QC)}, v{vQG}, {S(rWS)}, s{sP3} offen sc1"
        a.I(f"s_mov_b64 exec, {mN4}"); qid = a.I(qins); a.I(f"s_mov_b64 exec, {mFULL}")
        for k in range(3): vload(0, k)
        kread(14)
        for k in range(3, 6): vload(0, k)
        kread(15)
        self.qk_prep(qc=False)
        a.wvm(qid)
        self.check(range(QC, QC + 4), 32)
        a.I("s_cbranch_vccz L_q1ok"); a.cond += 1
        self.poll([(mN4, qins)], range(QC, QC + 4), 32)
        self.end_cond("L_q1ok")
        self.stamp("q1ok")
        vload(0, 6)
        a.wlg0()
        def qksm(p):
            self.qk()
            ids, lsum = self.softmax(False)
            for x in lsum: p.I(x)
            self.l_write()
        self.interleave([lambda k=k: vload(0, k) for k in range(7, 16)], self.rec(qksm))
        self.stamp("sm1")
        def proc(sg):
            def fn(p):
                blk = sgblk(sg)
                p.wvm(lambda: vid[(sg, 7)])
                self.perm_half(blk, 0)
                p.wvm(lambda: vid[(sg, 15)])
                self.perm_half(blk, 1)
                if sg == 0: p.wlg0()
                for e in range(8): p.I(f"{SMF} {V(ACC + 4*e)}, {V(PA + 4*sg)}, {V(blk + 8*e, 8)}, v{vIDX}")
                if sg < 2:
                    for e in range(8 if sg == 0 else 4):
                        for hh in range(2):
                            p.I(f"ds_write_b128 v{vLV}, {V(blk + 8*e + 4*hh)} offset:{V_OFF + (16*sg + 2*e + hh)*1024}")
                    if sg == 1:
                        for r in range(32): p.I(f"v_mov_b32 v{HF + r}, v{blk + 32 + r}")
                    p.wlg0()
            return self.rec(fn)
        for sg in range(3):
            self.interleave([lambda k=k: vload(sg + 1, k) for k in range(16)], proc(sg))
            if o.get("dmae", 0) and sg == o.get("pwsg", 1): prewarm()
        if o.get("wolate"):
            a.I("v_bfe_u32 v52, v0, 3, 2"); a.I("v_lshrrev_b32 v53, 5, v0"); a.I("v_lshl_add_u32 v52, v52, 1, v53")
            a.I("v_bfe_u32 v53, v0, 1, 2"); a.I("v_lshl_add_u32 v52, v52, 2, v53")
            a.I("v_and_b32 v53, 1, v0"); a.I("v_lshlrev_b32 v53, 4, v53")
            self.mad(52, 52, 1024, 53)
            for j in range(4): wo_(j, 52)
        if o.get("dmae", 0) == 1: self.w12dma(44)
        elif not o.get("dmae", 0): prewarm()
        for sg in range(3, 4):
            blk = sgblk(sg)
            self.stamp("g6done")
            a.wlg0(); self.barrier()
            if o.get("dmae", 0) == 2: self.w12dma(44)
            fr = self.f_read()
            a.wvm(vid[(sg, 7)])
            self.perm_half(blk, 0)
            a.wlg(fr)
            for x in self.f_calc(): a.I(x)
            smf = lambda e: a.I(f"{SMF} {V(ACC + 4*e)}, {V(PA + 4*sg)}, {V(blk + 8*e, 8)}, v{vIDX}")
            if sg == 3 and o.get("fastlast", 1):
                R = lambda r, d: blk + 8 * r + 4 + d
                lo = lambda dst, x, y: a.I(f"v_perm_b32 v{dst}, v{y}, v{x}, s{sPLO}")
                hi = lambda dst, x, y: a.I(f"v_perm_b32 v{dst}, v{y}, v{x}, s{sPHI}")
                a.wvm(vid[(sg, 13)])
                for p in range(3):
                    x, y = R(2*p, p), R(2*p+1, p)
                    lo(54, x, y); hi(y, x, y); a.I(f"v_mov_b32 v{x}, v54")
                    lo(44 + p, R(2*p, 3), R(2*p+1, 3)); hi(48 + p, R(2*p, 3), R(2*p+1, 3))
                for p in range(3):
                    for d in range(p + 1, 3):
                        ax, ay = R(2*p, d), R(2*p+1, d); bx, by = R(2*d, p), R(2*d+1, p)
                        lo(54, ax, ay); hi(55, ax, ay); lo(ax, bx, by); hi(ay, bx, by)
                        a.I(f"v_mov_b32 v{bx}, v54"); a.I(f"v_mov_b32 v{by}, v55")
                if o.get("dmae", 0) == 3: self.w12dma(24 + 28)
                a.wvm(vid[(sg, 15)])
                self.stamp("vlast")
                lo(R(0, 3), R(6, 0), R(7, 0)); hi(R(1, 3), R(6, 0), R(7, 0))
                lo(R(2, 3), R(6, 1), R(7, 1)); hi(R(3, 3), R(6, 1), R(7, 1))
                smf(0)
                lo(R(4, 3), R(6, 2), R(7, 2)); hi(R(5, 3), R(6, 2), R(7, 2))
                smf(1)
                lo(47, R(6, 3), R(7, 3)); hi(R(7, 3), R(6, 3), R(7, 3))
                smf(2)
                a.I(f"v_mov_b32 v{R(6, 0)}, v44"); a.I(f"v_mov_b32 v{R(6, 1)}, v45")
                smf(3)
                a.I(f"v_mov_b32 v{R(6, 2)}, v46"); a.I(f"v_mov_b32 v{R(6, 3)}, v47")
                smf(4)
                a.I(f"v_mov_b32 v{R(7, 0)}, v48"); a.I(f"v_mov_b32 v{R(7, 1)}, v49")
                smf(5)
                a.I(f"v_mov_b32 v{R(7, 2)}, v50")
                smf(6); smf(7)
            else:
                a.wvm(vid[(sg, 15)])
                if sg == 3: self.stamp("vlast")
                self.perm_half(blk, 1)
                if sg == 0: a.wlg0()
                for e in range(8): smf(e)
        self.attn_out(wo=not o.get("wolate"))
        if o.get("pad"):
            a.I("s_branch L_fin"); a.raw(f".fill {o['pad'] // 4}, 4, 0xbf800000")
        self.tail()
        for ls, ins, ld in self.ool:
            a.L(ls)
            for x in ins: a.I(x)
            a.I(f"s_branch {ld}")
        for lr, l in self.ool2:
            a.L(lr); a.I(f"s_sleep {o['bo']}"); a.I(f"s_branch {l}")
        a.L("L_abort"); self.stamp_out(); a.L("L_exit"); a.I("s_endpgm")
        a.raw('.section .rodata,"a"'); a.raw(".p2align 6"); a.raw(f".amdhsa_kernel {KNAME}")
        for s in (".amdhsa_next_free_vgpr 512", ".amdhsa_next_free_sgpr 102", ".amdhsa_accum_offset 256", ".amdhsa_group_segment_fixed_size 0",
                  ".amdhsa_kernarg_size 104", ".amdhsa_user_sgpr_count 2", ".amdhsa_user_sgpr_kernarg_segment_ptr 1", ".amdhsa_system_sgpr_workgroup_id_x 1"):
            a.raw("  " + s)
        a.raw(".end_amdhsa_kernel")
        return a.text()

    def w12dma(self, t):
        a = self.a
        a.I(f"v_bfe_u32 v{t}, v0, 3, 2"); a.I(f"v_lshrrev_b32 v{t+1}, 5, v0"); a.I(f"v_lshl_add_u32 v{t}, v{t}, 1, v{t+1}")
        a.I(f"v_bfe_u32 v{t+1}, v0, 1, 2"); a.I(f"v_lshl_add_u32 v{t}, v{t}, 2, v{t+1}")
        a.I(f"v_and_b32 v{t+1}, 1, v0"); a.I(f"v_lshlrev_b32 v{t+1}, 4, v{t+1}")
        self.mad(t + 2, t, 1024, t + 1); self.mad(t + 3, t, 2752, t + 1)
        a.I(f"s_cmp_eq_u32 s{sHCU}, 0"); a.I("s_cbranch_scc1 L_now1"); a.cond += 1
        for j in range(4): self.wdma(t + 3, rW1, sW1B, j * 32 * 2752, f"s_add_u32 m0, s{sWB}, {W1_OFF + j*1024}")
        self.end_cond("L_now1")
        a.I(f"s_lshl_b32 s{sT1}, s{sW}, 11")
        for j in range(2): self.wdma(t + 2, rW2, sW2B, j * 32 * 1024, f"s_add_u32 m0, s{sT1}, {W2_LDS + j*1024}")
    def q_soff(self):
        a = self.a
        a.I(f"s_lshr_b32 s{sT0}, s{sI}, 3"); a.I(f"s_lshl_b32 s{sT0}, s{sT0}, 9")
        a.I(f"s_and_b32 s{sT1}, s{sI}, 7"); a.I(f"s_lshl_b32 s{sT1}, s{sT1}, 5")
        a.I(f"s_add_u32 s{sT0}, s{sT0}, s{sT1}"); a.I(f"s_add_u32 s{sT0}, s{sT0}, s{sREG}")
    def q_publish(self, pv):
        a = self.a
        a.I(f"s_mov_b64 exec, {mEVEN}")
        self.publish(f"buffer_store_dword v{pv}, v{vPQ}, {S(rWS)}, s{sT0} offen")
        a.I(f"s_mov_b64 exec, {mFULL}")

    def rstage(self, name, voff, ypoff, xs, addb2):
        a = self.a
        a.I(f"s_lshl_b32 s{sT1}, s{sJ}, 5"); a.I(f"s_add_u32 s{sT0}, s{sT1}, s{sREG}"); a.I(f"s_add_u32 s{sT0}, s{sT0}, {xs}")
        for r in range(8): a.I(f"v_mov_b32 v{80+r}, 0")
        if addb2: a.I(f"v_add_f32 v{vXR}, v{vXR}, v{vB2}")
        if ypoff: a.I(f"s_add_u32 s{sT2}, s{sYP}, {ypoff}"); sb = sT2
        else: sb = sYP
        self.sleep("d_c2", 9) if addb2 else self.sleep("d_c0", 9)
        self.poll([(mLO32, f"buffer_load_dword v{80+x}, v{voff}, {S(rWS)}, s{sb} offen offset:{x*128} sc1") for x in range(8)], range(80, 88), 36,
                  depth=self.o.get("p_c", 1), gap=self.o.get("gapc", 3))
        self.stamp(name)
        a.I("v_pk_add_f32 v[88:89], v[80:81], v[82:83]"); a.I("v_pk_add_f32 v[90:91], v[84:85], v[86:87]")
        a.I(f"v_add_f32 v88, v88, v{vXR}")
        a.I("v_pk_add_f32 v[88:89], v[88:89], v[90:91]")
        a.I("v_add_f32 v88, v88, v89")
        self.pack_pub(88, 89)
        a.I(f"s_mov_b64 exec, {mEVEN}")
        if addb2:
            a.I(f"s_cmp_lg_u32 s{sPASS}, 0"); a.I("s_cbranch_scc1 L_final")
        self.publish(f"buffer_store_dword v89, v{vPX}, {S(rWS)}, s{sT0} offen")
        a.I(f"s_mov_b64 exec, {mFULL}")
        a.I(f"v_cvt_pk_bf16_f32 v{vXR}, v88, v88"); a.I(f"v_and_b32 v{vXR}, 0xffff0000, v{vXR}")

    def tail(self):
        a = self.a; o = self.o
        a.L("L_fin")
        a.C("attention finish"); self.stamp("fin")
        a.I(f"s_lshl_b32 s{sT0}, s{sI}, 8"); a.I(f"s_add_u32 s{sT0}, s{sT0}, s{sREG}"); a.I(f"s_add_u32 s{sT0}, s{sT0}, {AP}")
        a.I(f"s_lshl_b32 s{sT1}, s{sI}, {self.mls}"); a.I(f"s_add_u32 s{sT1}, s{sT1}, s{sREG}"); a.I(f"s_add_u32 s{sT1}, s{sT1}, 16384")
        a.wlg0(); self.barrier()
        self.only_w0("L_fin_done")
        ids = [a.I(f"ds_read_b64 {V(28+2*w, 2)}, v{vL8} offset:{w*512}") for w in range(2)]
        lid = a.I(f"ds_read_b128 {V(36)}, v62 offset:{ML_LDS + 16}")
        ids += [a.I(f"ds_read_b64 {V(28+2*w, 2)}, v{vL8} offset:{w*512}") for w in range(2, 4)]
        a.I(f"s_cmp_lg_u32 s{sMODE}, 0")
        a.wlg(ids[0])
        a.I(f"v_mul_f32 v28, v{F}, v28"); a.I(f"v_mul_f32 v29, v{F}, v29")
        a.wlg(ids[1])
        a.I(f"v_fmac_f32 v28, v{F+1}, v30"); a.I(f"v_fmac_f32 v29, v{F+1}, v31")
        a.wlg(lid)
        a.I(f"v_mul_f32 v{vL}, v{F}, v36"); a.I(f"v_fmac_f32 v{vL}, v{F+1}, v37")
        a.wlg(ids[2])
        a.I(f"v_fmac_f32 v28, v{F+2}, v32"); a.I(f"v_fmac_f32 v29, v{F+2}, v33"); a.I(f"v_fmac_f32 v{vL}, v{F+2}, v38")
        a.wlg(ids[3])
        a.I(f"v_fmac_f32 v28, v{F+3}, v34"); a.I(f"v_fmac_f32 v29, v{F+3}, v35"); a.I(f"v_fmac_f32 v{vL}, v{F+3}, v39")
        a.I("v_cvt_pk_bf16_f32 v28, v28, v29"); a.I(f"v_min_u32 v{vL}, -2, v{vL}"); a.I("v_min_u32 v28, -2, v28")
        self.publish([f"buffer_store_dword v28, v{vL4}, {S(rWS)}, s{sT0} offen", f"s_mov_b64 exec, {mL0}",
                      f"buffer_store_dwordx2 v[{vM}:{vL}], v{vL4}, {S(rWS)}, s{sT1} offen", f"s_mov_b64 exec, {mFULL}"], precmp=True)
        self.end_cond("L_fin_done")
        self.stamp("finpub")
        a.C("stage O")
        a.I(f"s_lshl_b32 s{sT0}, s{sW}, 11"); a.I(f"s_add_u32 s{sT0}, s{sT0}, s{sREG}"); a.I(f"s_add_u32 s{sT0}, s{sT0}, {AP}")
        a.I(f"s_lshl_b32 s{sT1}, s{sW}, {self.mls + 3}"); a.I(f"s_add_u32 s{sT1}, s{sT1}, s{sREG}"); a.I(f"s_add_u32 s{sT1}, s{sT1}, 16384")
        for j in range(4): self.trread(WOP + 4 * j, vTR, WO_OFF + j * 1024)
        a.wlg0()
        if o.get("b_o", 1): self.barrier()
        self.sleep("d_e1", 1)
        def ospec():
            if o.get("wolate"):
                l = self.nl("wol")
                a.I(f"s_cmp_lg_u32 s{sPASS}, 0"); a.I(f"s_cbranch_scc1 {l}")
                for j in range(4): self.trread(WOP + 4 * j, vTR, WO_OFF + j * 1024)
                a.wlg0(); a.L(l)
            a.I(f"{MF} {V(40)}, {V(28)}, {V(WOP)}, 0")
            a.I(f"{MF} {V(40)}, {V(32)}, {V(WOP+8)}, {V(40)}")
        self.poll([(None, f"buffer_load_dwordx2 v[36:37], v{vMLG}, {S(rWS)}, s{sT1} offen sc1"),
                   (None, f"buffer_load_dwordx4 {V(28)}, v{vAPG}, {S(rWS)}, s{sT0} offen sc1"),
                   (None, f"buffer_load_dwordx4 {V(32)}, v{vAPG}, {S(rWS)}, s{sT0} offen offset:128 sc1")],
                  [36, 37] + list(range(28, 36)), 38, spec=ospec)
        self.stamp("e1")
        a.I(f"v_max_f32_dpp v38, v36, v36 quad_perm:[1,0,3,2] {DPP}")
        for r in range(4): a.I(f"v_mov_b32_dpp v{44+r}, v{28+r} row_shl:8 {DPP}")
        a.I(f"v_max_f32_dpp v38, v38, v38 quad_perm:[2,3,0,1] {DPP}")
        a.I(f"v_mov_b32_dpp v48, v32 row_shl:8 {DPP}")
        a.I(f"{MF} {V(40)}, {V(44)}, {V(WOP+4)}, {V(40)}")
        for r in range(1, 4): a.I(f"v_mov_b32_dpp v{48+r}, v{32+r} row_shl:8 {DPP}")
        a.I("v_sub_f32 v38, v36, v38")
        a.I("v_exp_f32 v38, v38")
        a.I(f"{MF} {V(40)}, {V(48)}, {V(WOP+12)}, {V(40)}")
        a.I("v_mul_f32 v39, v38, v37")
        a.I(f"s_lshl_b32 s{sT0}, s{sX}, 7"); a.I(f"s_add_u32 s{sT0}, s{sT0}, s{sYP}")
        a.I(f"v_add_f32_dpp v39, v39, v39 quad_perm:[1,0,3,2] {DPP}")
        a.I(f"v_add_f32_dpp v39, v39, v39 quad_perm:[2,3,0,1] {DPP}")
        a.I("v_rcp_f32 v39, v39")
        a.I("v_mul_f32 v38, v38, v39")
        a.I(f"v_mul_f32_dpp v52, v38, v40 quad_perm:[0,0,0,0] {DPP}")
        for r in range(1, 4): a.I(f"v_fmac_f32_dpp v52, v38, v{40+r} quad_perm:[{r},{r},{r},{r}] {DPP}")
        a.I(f"s_mov_b64 exec, {mLO32}")
        a.I(f"ds_write_b32 v{vRW}, v52 offset:{ORED}")
        a.I(f"s_mov_b64 exec, {mFULL}")
        a.wlg0(); self.barrier()
        self.only_w0("L_o_done")
        a.I(f"ds_read_b128 {V(40)}, v{vL16} offset:{ORED}"); a.wlg0()
        a.I("v_pk_add_f32 v[40:41], v[40:41], v[42:43]"); a.I("v_add_f32 v40, v40, v41"); a.I("v_min_u32 v40, -2, v40")
        a.I(f"s_mov_b64 exec, {mLO32}")
        a.I(f"buffer_store_dword v40, v{vL4}, {S(rWS)}, s{sT0} offen sc1")
        a.I(f"s_mov_b64 exec, {mFULL}")
        self.end_cond("L_o_done")
        self.stamp("opub")
        if not o.get("dmae", 0):
            a.I(f"s_cmp_lg_u32 s{sPASS}, 0"); a.I("s_cbranch_scc1 L_nodma"); a.cond += 1
            self.w12dma(44)
            self.end_cond("L_nodma")
        a.C("stage R")
        self.only_w0("L_r_done")
        self.rstage("e2a", vL4, 0, XSA, False)
        self.end_cond("L_r_done")
        self.stamp("rpub")
        a.C("stage H")
        a.I(f"s_cmp_eq_u32 s{sW}, 0"); a.I("s_cbranch_scc1 L_nowait"); a.wvm0(); a.L("L_nowait")
        self.ln_prep(W1_OFF)
        a.I(f"s_lshl_b32 s{sT0}, s{sW}, 8"); a.I(f"s_add_u32 s{sT0}, s{sT0}, s{sREG}"); a.I(f"s_add_u32 s{sT0}, s{sT0}, {XSA}")
        a.wlg0(); self.barrier()
        a.I(f"s_cmp_eq_u32 s{sHCU}, 0"); a.I("s_cbranch_scc1 L_h_done"); a.cond += 1
        self.sleep("d_x", 0)
        self.poll([(mN8, f"buffer_load_dwordx4 {V(self.XA)}, v{vXG}, {S(rWS)}, s{sT0} offen sc1")], range(self.XA, self.XA + 4), 60, spec=self.ln_head)
        self.stamp("e2b")
        a.I(f"s_sub_u32 s{sT0}, s{sI}, {HCU0}"); a.I(f"s_lshl_b32 s{sT0}, s{sT0}, 5"); a.I(f"s_add_u32 s{sT0}, s{sT0}, s{sREG}"); a.I(f"s_add_u32 s{sT0}, s{sT0}, {HS}")
        self.ln_mm(head=False)
        a.I(f"s_cmp_lg_u32 s{sW}, 0"); a.I("s_cbranch_scc1 L_h_done")
        self.ln_finish()
        a.I(f"v_fma_f32 v60, v60, v68, v{vB1}")
        a.I(f"v_mov_b32 v62, s{sK1}")
        a.I("v_mul_f32 v61, v60, v60")
        a.I(f"v_fma_f32 v61, v61, s{sK2}, v62")
        a.I("v_mul_f32 v61, v61, v60")
        a.I("v_exp_f32 v61, v61")
        a.I("v_add_f32 v61, 1.0, v61")
        a.I("v_rcp_f32 v61, v61")
        a.I("v_mul_f32 v60, v60, v61")
        self.pack_pub(60, 61)
        a.I(f"s_mov_b64 exec, {mEVEN}")
        self.publish(f"buffer_store_dword v61, v{vPH}, {S(rWS)}, s{sT0} offen")
        a.I(f"s_mov_b64 exec, {mFULL}")
        self.end_cond("L_h_done")
        self.stamp("hpub")
        a.C("stage X2")
        self.only_w0("L_x2_done")
        for r in range(4): a.I(f"v_mov_b32 v{92 + r}, 0")
        rd = [self.trread(44 + 4 * k, vL8, W2_LDS + k * 1024) for k in range(6)]
        a.I(f"s_add_u32 s{sT0}, s{sREG}, {HS}")
        a.I(f"s_lshl_b32 s{sT1}, s{sJ2}, 10"); a.I(f"s_lshl_b32 s{sT2}, s{sX}, 7"); a.I(f"s_add_u32 s{sT1}, s{sT1}, s{sT2}")
        a.I(f"s_lshl_b32 s{sT2}, s{sPASS}, 15"); a.I(f"s_add_u32 s{sT1}, s{sT1}, s{sT2}"); a.I(f"s_add_u32 s{sT1}, s{sT1}, {YP2}")
        self.sleep("d_h", 0)
        a.wlg0()
        self.poll([(mH, f"buffer_load_dwordx4 {V(92)}, v{vHG}, {S(rWS)}, s{sT0} offen sc1")], range(92, 96), 40,
                  spec=lambda: a.I(f"{MF} {V(36)}, {V(92)}, {V(44)}, 0"))
        self.stamp("e3")
        for k in range(1, 6):
            cur = (32, 40)[k % 2]
            for r in range(4): a.I(f"v_mov_b32_dpp v{cur + r}, v{92 + r} row_shl:{2*k} {DPP}")
            if k >= 2: a.I(f"{MF} {V(36)}, {V((32, 40)[(k-1) % 2])}, {V(44 + 4*(k-1))}, {V(36)}")
        a.I(f"{MF} {V(36)}, {V(40)}, {V(64)}, {V(36)}")
        a.I(f"s_mov_b64 exec, {mLO16}")
        a.I("v_min_u32 v36, -2, v36"); a.I("v_min_u32 v37, -2, v37")
        a.I(f"buffer_store_dwordx2 v[36:37], v{vL8}, {S(rWS)}, s{sT1} offen sc1")
        a.I(f"s_mov_b64 exec, {mFULL}")
        self.stamp("xpub")
        a.I(f"s_mul_i32 s{sT0}, s{sPASS}, s{sX}"); a.I(f"s_cmp_lg_u32 s{sT0}, 0"); a.I("s_cbranch_scc1 L_abort")
        a.C("stage R2")
        self.rstage("e3b", vR2, YP2 - YP, XSB, True)
        self.end_cond("L_x2_done")
        self.stamp("r2pub")
        a.I(f"s_cmp_lg_u32 s{sPASS}, 0"); a.I("s_cbranch_scc1 L_abort")
        a.C("stage Q2")
        self.ln_prep(WQ_OFF)
        a.I(f"s_lshl_b32 s{sP0}, s{sW}, 8"); a.I(f"s_add_u32 s{sP0}, s{sP0}, s{sREG}"); a.I(f"s_add_u32 s{sP0}, s{sP0}, {XSB}")
        a.I(f"s_mov_b32 s{sPASS}, 1"); a.I(f"s_add_u32 s{sREG}, s{sREG}, {REGION}"); a.I(f"s_add_u32 s{sYP}, s{sYP}, 32768")
        self.q_soff()
        a.I(f"s_lshr_b32 s{sP3}, s{sI}, 2"); a.I(f"s_lshl_b32 s{sP3}, s{sP3}, 8"); a.I(f"s_add_u32 s{sP3}, s{sP3}, s{sREG}")
        a.wlg0(); self.barrier()
        self.sleep("d_x", 0)
        self.poll([(mN8, f"buffer_load_dwordx4 {V(self.XA)}, v{vXG}, {S(rWS)}, s{sP0} offen sc1")], range(self.XA, self.XA + 4), 60, spec=self.ln_head)
        self.stamp("e4")
        self.ln_mm(head=False)
        self.only_w0("L_q2_done")
        self.ln_finish()
        a.I("v_mul_f32 v60, v60, v68")
        self.pack_pub(60, 61)
        self.q_publish(61)
        self.end_cond("L_q2_done")
        self.stamp("qpub")
        a.C("attention 2")
        self.qk_prep()
        if o.get("b_q", 1): self.barrier()
        self.sleep("d_q", 0)
        self.poll([(mN4, f"buffer_load_dwordx4 {V(QC)}, v{vQG}, {S(rWS)}, s{sP3} offen sc1")], range(QC, QC + 4), 32, depth=o.get("p_x", 1), gap=o.get("gap", 2))
        self.stamp("e5")
        lv = []
        landmap = [0, 8, 16, 24, 128, 136, 144, 152, 32, 40, 48, 56]
        land = lambda op: landmap[op]
        def fillv(n):
            if n >= 2:
                for _ in range(2):
                    k = len(lv)
                    lv.append(a.I(f"ds_read_b128 {Ar(land(k >> 1) + 4*(k & 1))}, v{vLV} offset:{V_OFF + k*1024}"))
        self.qk(fill=fillv)
        self.stamp("qk2")
        ids, post = self.softmax(True)
        fr = self.f_read()
        self.stamp("sm2")
        def opnd(sg, e):
            if sg == 0: return Ar(land(e), 8)
            if sg == 1: return Ar(land(8 + e), 8) if e < 4 else V(HF + 8 * (e - 4), 8)
            return V(sgblk(sg) + 8 * e, 8)
        for gi, sg in enumerate((2, 3, 0, 1)):
            a.wlg(ids[sg])
            if gi == 2: a.wlg(fr); post = post + self.f_calc()
            for e in range(8):
                a.I(f"{SMF} {V(ACC + 4*e)}, {V(PA + 4*sg)}, {opnd(sg, e)}, v{vIDX}")
                if post: a.I(post.pop(0))
                if gi == 1 and e == 7: self.l_write()
        assert not post
        self.attn_out()
        a.I("s_branch L_fin")
        a.L("L_final")
        a.I(f"buffer_store_dword v89, v{vPX}, {S(rOUT)}, s{sT1} offen")
        a.I(f"s_cmp_lg_u32 s{sI}, 0"); a.I("s_cbranch_scc1 L_noepo")
        a.I(f"v_mov_b32 v30, s{sXCC}"); a.I(f"s_mov_b32 s{sT0}, {EPO}"); a.I("s_mov_b64 exec, 1")
        a.I(f"buffer_store_dword v30, v{vL4}, {S(rWS)}, s{sT0} offen")
        a.L("L_noepo")
        if o.get("stamps"):
            a.wvm0(); self.stamp("end")
            if o.get("amp"):
                a.I("s_sub_u32 s92, s91, s90"); a.I("s_lshl_b32 s92, s92, 2"); a.I("s_add_u32 s92, s92, 4000")
                a.L("L_spin"); a.I("s_memrealtime s[64:65]"); a.I("s_waitcnt lgkmcnt(0)"); a.I("s_sub_u32 s64, s64, s90")
                a.I(f"s_cmp_lt_u32 s64, s92"); a.I("s_cbranch_scc1 L_spin")
            a.I("s_branch L_abort")
        a.I("s_endpgm")

if __name__ == "__main__":
    opt = {}
    out = sys.argv[1]
    for kv in sys.argv[2:]:
        k, v = kv.split("="); opt[k] = v.split(",") if k == "stamps" else int(v)
    g = Gen(opt)
    t = g.build()
    open(out, "w").write(t)
    print("lines", t.count("\n"), "auto nops", g.a.nops)
```

```python
import sys, math, struct
from asmlib import Asm
KNAME = "interleave_layers__gqa_block_cached__dense_activation_gelu__decode_kernel"
HEADER = open("interleave_layers__gqa_block_cached__dense_activation_gelu__decode.s.ref").read().split("; Override launch")[0]

DOC = """
One persistent launch, one 4-wave workgroup per CU (256 workgroups, 512 registers per lane, 160 KiB LDS).
Workgroup (X = id & 7, i = id >> 3) owns 1024 keys of (batch (i>>2)&1, head 4X + (i>>3)); its K and V rows are read from
memory exactly once and stay in registers / LDS for both attention layers.  K: LDS-DMA ring -> AGPRs, V: registers (+LDS).
QK^T and PV use v_smfmac (q / p are the 2:4-sparse operand, split over two rows); the GEMVs use v_mfma with the
LayerNorm folded in ((x @ W - mean * colsum(W)) * rstd; sums come from a Gram MFMA).
Hand-offs between workgroups go through d_ws words that this launch first sets to 0xFFFFFFFF (never a payload value);
consumers poll with sc1 loads until no such word is left.  A token per workgroup (launch epoch + XCC id) says that its
part of the clearing is done and tells whether the 32 workgroups of a group X really share one XCD: only then do
hand-offs inside the group use plain stores (L2), otherwise sc1 stores.  Hand-offs between groups always use sc1.
Chain per layer pair: attention partials -> (wo) -> x1 -> (w1, gelu) -> h -> (w2) -> x2 -> (wq) -> q.
"""
MISC = 0; ML_LDS = 2048; W2_LDS = 5120; WBASE0 = 13312; WAREA = 36864
WQ_OFF = 0; WO_OFF = 4096; W1_OFF = 8192; V_OFF = 12288
REGION = 24576; QS = 0; AP = 2048; ML = 10240; XSA = 10496; XSB = 12544; HS = 14592
YP = 393216; YP2 = 458752; TOK = 0xA0000; EPO = 0xA0800; WS_BYTES = 0xA0900
sW, sX, sI, sREG, sYP, sMODE, sPASS, sCNT, sWB = 3, 4, 5, 6, 7, 9, 10, 11, 12
sT0, sT1, sT2, sPLO, sPHI, sJ, sROT = 13, 14, 15, 16, 17, 18, 19
mFULL, mLO32, mEVEN, mN8, mN4, mG02, mL0, mH, mLO16 = "s[20:21]", "s[22:23]", "s[24:25]", "s[26:27]", "s[28:29]", "s[30:31]", "s[32:33]", "s[34:35]", "s[76:77]"
rK, rV, rWQ, rWO, rW1, rW2, rWS, rT, rDBG, rOUT = 36, 40, 44, 48, 52, 56, 60, 64, 68, 72
sC, sXCC, sHCU, sJ2 = 78, 79, 80, 81
sK1, sK2, sINV, sEPS = 82, 83, 84, 85
sBUR = 8; sBST = 94
sW2B, sW1B, sT0W = 66, 67, 87
sP0, sP1, sP2, sP3 = 86, 87, 88, 89
def S(r): return f"s[{r}:{r+3}]"
def V(r, n=4): return f"v[{r}:{r+n-1}]"
def Ar(r, n=4): return f"a[{r}:{r+n-1}]"
DPP = "row_mask:0xf bank_mask:0xf"
MF = "v_mfma_f32_16x16x32_bf16"
vTR, vB1, vB2, vXR, vXG, vPX, vPQ, vPH, vAPG, vMLG, vQG, vHG, vL4, vR2, vL8, vL16, vRW, vAW, vCS, vSQ, vSM, vLV, vIDX, vPW, vPR, vM01 = range(1, 27)
vVO = vL16
QC = 28; QB = (32, 36); RB = (40, 44); SC = 48; vM, vL = 56, 57; PA = 28; F = 58; FL = 48; ACC = 64; WOP = 64
BLKA, BLKB, HF = 96, 160, 224
P_LDS = 2560
ORED = 4608
SMF = "v_smfmac_f32_16x16x64_bf16"
HCU0 = 16
f2u = lambda x: "0x%08x" % struct.unpack("<I", struct.pack("<f", x))[0]
def sgblk(sg): return (BLKA, BLKB)[sg & 1]

class Gen:
    def __init__(self, opt):
        self.a = Asm(); self.o = opt; self.mls = opt.get('mls', 3); self.lab = 0; self.ool = []; self.ool2 = []
    def nl(self, p):
        self.lab += 1; return f"L_{p}_{self.lab}"
    def stamp(self, name):
        st = self.o.get("stamps", [])
        a = self.a
        hits = [k for k, x in enumerate(st) if x.split("@")[0] == name]
        if not hits: return
        a.I(("s_memtime" if self.o.get("cyc") else "s_memrealtime") + " s[64:65]"); a.I("s_waitcnt lgkmcnt(0)")
        for k in hits:
            if "@" in st[k]:
                a.I(f"s_cmp_eq_u32 s{sPASS}, {st[k].split('@')[1]}"); a.I(f"s_cselect_b32 s{90+k}, s64, s{90+k}")
            else:
                a.I(f"s_mov_b32 s{90+k}, s64")
    def stamp_out(self):
        if not self.o.get("stamps"): return
        a = self.a
        a.I("s_mov_b64 exec, 1")
        a.I(f"s_lshl_b32 s64, s2, 2"); a.I(f"s_add_u32 s64, s64, s{sW}"); a.I("s_lshl_b32 s64, s64, 6"); a.I("s_add_u32 s64, s64, 0x80000")
        a.I("v_mov_b32 v44, 0")
        for k in range(12): a.I(f"v_mov_b32 v{28+k}, s{90+k}")
        for k in range(3): a.I(f"buffer_store_dwordx4 {V(28+4*k)}, v44, {S(rWS)}, s64 offen offset:{16*k}")
        if self.o.get("dbgst"):
            a.I(f"s_lshl_b32 s64, s2, 2"); a.I(f"s_add_u32 s64, s64, s{sW}"); a.I("s_cmp_lg_u32 s64, 0"); a.I("s_cbranch_scc1 L_exit")
            a.I("s_nop 1")
            for k in range(1, 12): a.I(f"v_subrev_u32 v{28+k}, s90, v{28+k}")
            for k in range(3): a.I(f"buffer_store_dwordx4 {V(28+4*k)}, v44, {S(rDBG)}, 0 offen offset:{16*k}")

    def publish(self, instr, precmp=False):
        a = self.a
        if isinstance(instr, str): instr = [instr]
        ls, ld = self.nl("slow"), self.nl("pubd")
        if not precmp: a.I(f"s_cmp_lg_u32 s{sMODE}, 0")
        a.I(f"s_cbranch_scc1 {ls}")
        a.cond += 1
        for x in instr: a.I(x)
        a.cond -= 1
        a.L(ld)
        self.ool.append((ls, [x + (" sc1" if x.startswith("buffer_store") else "") for x in instr], ld))
    def thr(self, key, steer=True):
        a = self.a; T = self.o.get(key, 0); TB = self.o.get(key + "b", T)
        if not steer: TB = T
        if not T: return
        if TB == T:
            a.I(f"s_waitcnt vmcnt({T})"); return
        l = self.nl("thr")
        if TB: a.I(f"s_waitcnt vmcnt({TB})")
        a.I(f"s_cmp_lg_u32 s{sBUR}, 0"); a.I(f"s_cbranch_scc1 {l}"); a.I(f"s_waitcnt vmcnt({T})"); a.L(l)
    def rec(self, fn):
        real = self.a; items = []
        class Proxy:
            cond = 0
            grp = None
            def I(p, t):
                if t.startswith("s_mov_b64 exec") and mFULL not in t: p.grp = []
                if p.grp is not None:
                    p.grp.append(t)
                    if t.startswith("s_mov_b64 exec") and mFULL in t:
                        g = p.grp; p.grp = None
                        items.append(lambda: [real.I(x) for x in g])
                    return None
                items.append(lambda: real.I(t)); return None
            def wvm(p, ids): items.append(lambda: real.wvm(ids() if callable(ids) else ids))
            def wlg(p, ids): items.append(lambda: real.wlg0())
            def wlg0(p): items.append(lambda: real.wlg0())
            def C(p, t): pass
        self.a = Proxy()
        fn(self.a)
        self.a = real
        return items
    def interleave(self, loads, work, start=0):
        n = len(loads) - start; k = 0
        for i, ld in enumerate(loads):
            ld()
            if i >= start:
                tgt = (i - start + 1) * len(work) // n
                while k < tgt: work[k](); k += 1
    def barrier(self): self.a.I("s_barrier")
    def only_w0(self, lab):
        a = self.a
        a.I(f"s_cmp_lg_u32 s{sW}, 0"); a.I(f"s_cbranch_scc1 {lab}"); a.cond += 1
    def end_cond(self, lab):
        self.a.cond -= 1; self.a.L(lab)
    def poll(self, loads, regs, vt, depth=1, gap=2, spec=None):
        a = self.a
        def issue():
            cur = None
            for m, ins in loads:
                if m != cur: a.I(f"s_mov_b64 exec, {m or mFULL}"); cur = m
                a.I(ins)
            if cur is not None: a.I(f"s_mov_b64 exec, {mFULL}")
        for _ in range(depth - 1):
            issue()
            if gap: a.I(f"s_sleep {gap}")
        l = self.nl("poll"); a.L(l)
        issue()
        a.I(f"s_sub_u32 s{sCNT}, s{sCNT}, 1"); a.I("s_cbranch_scc1 L_abort")
        a.I(f"s_waitcnt vmcnt({(depth - 1) * len(loads)})")
        if spec and self.o.get("spec", 1): spec()
        self.check(regs, vt)
        post = (spec and not self.o.get("spec", 1))
        if self.o.get("bo"):
            lr = self.nl("retry")
            a.I(f"s_cbranch_vccnz {lr}")
            self.ool2.append((lr, l))
        else:
            a.I(f"s_cbranch_vccnz {l}")
        if post: spec()
    def check(self, regs, vt):
        a = self.a; r = list(regs)
        if len(r) % 2 == 1: a.I(f"v_max3_u32 v{vt}, v{r[0]}, v{r[1]}, v{r[2]}"); r = r[3:]
        else: a.I(f"v_max_u32 v{vt}, v{r[0]}, v{r[1]}"); r = r[2:]
        for k in range(0, len(r), 2): a.I(f"v_max3_u32 v{vt}, v{r[k]}, v{r[k+1]}, v{vt}")
        a.I(f"v_cmp_eq_u32 vcc, -1, v{vt}")
    def sleep(self, key, dflt):
        n = self.o.get(key, dflt)
        if n: self.a.I(f"s_sleep {n}")
    def sleep2(self, k0, d0, k1, d1):
        a = self.a; n0 = self.o.get(k0, d0); n1 = self.o.get(k1, d1)
        m = min(n0, n1)
        if n0 != n1:
            l = self.nl("sl")
            a.I(f"s_cmp_eq_u32 s{sPASS}, {0 if n0 < n1 else 1}"); a.I(f"s_cbranch_scc1 {l}"); a.I(f"s_sleep {max(n0, n1) - m}"); a.L(l)
        if m: a.I(f"s_sleep {m}")
    def trread(self, dst, addr, off):
        a = self.a
        a.I(f"ds_read_b64_tr_b16 {V(dst,2)}, v{addr} offset:{off}")
        return a.I(f"ds_read_b64_tr_b16 {V(dst+2,2)}, v{addr} offset:{off+512}")
    def pack_pub(self, val, tmp):
        a = self.a
        a.I(f"v_mov_b32_dpp v{tmp}, v{val} quad_perm:[1,1,3,3] {DPP}")
        a.I(f"v_cvt_pk_bf16_f32 v{tmp}, v{val}, v{tmp}")
        a.I(f"v_min_u32 v{tmp}, -2, v{tmp}")
    def mad(self, dst, x, c, y):
        a = self.a
        a.I(f"s_movk_i32 s{sT2}, {c}"); a.I(f"v_mad_u32_u24 v{dst}, v{x}, s{sT2}, v{y}")

    XA, XT, GA, TA, WB, XU = 28, 32, 36, 40, 44, 76
    RED = 0
    def ln_prep(self, off, preset=True):
        a = self.a
        if preset:
            for r in range(8): a.I(f"v_mov_b32 v{self.XA + r}, 0x3f803f80")
        for r in range(4): a.I(f"v_mov_b32 v{self.XU + r}, 0x3f803f80")
        self.rd = [self.trread(self.WB + 4 * j, vTR, off + j * 1024) for j in range(4)]
    def ln_head(self):
        a = self.a
        a.I(f"{MF} {V(self.TA)}, {V(self.XA)}, {V(self.WB)}, 0")
        a.I(f"{MF} {V(self.GA)}, {V(self.XA)}, {V(self.XA)}, 0")
    def ln_mm(self, head=True):
        a = self.a
        regs = [self.XA, self.XT, self.XU, self.XT]
        base = self.RED // 256
        if head: a.wlg0(); self.ln_head()
        for r in range(4): a.I(f"v_mov_b32_dpp v{self.XT + r}, v{self.XA + r} row_shl:2 {DPP}")
        for r in range(2): a.I(f"v_mov_b32_dpp v{self.XU + r}, v{self.XA + r} row_shl:4 {DPP}")
        for j in range(1, 4):
            cur = regs[j]
            a.I(f"{MF} {V(self.TA)}, {V(cur)}, {V(self.WB + 4*j)}, {V(self.TA)}")
            if j == 1:
                for r in range(2, 4): a.I(f"v_mov_b32_dpp v{self.XU + r}, v{self.XA + r} row_shl:4 {DPP}")
            a.I(f"{MF} {V(self.GA)}, {V(cur)}, {V(cur)}, {V(self.GA)}")
            if j == 1:
                for r in range(4): a.I(f"v_mov_b32_dpp v{self.XT + r}, v{self.XA + r} row_shl:6 {DPP}")
        a.I(f"s_mov_b64 exec, {mG02}")
        a.I(f"ds_write2st64_b32 v{vRW}, v{self.TA}, v{self.TA+1} offset0:{base} offset1:{base+1}")
        a.I(f"ds_write2st64_b32 v{vRW}, v{self.GA}, v{self.GA+1} offset0:{base+4} offset1:{base+5}")
        a.I(f"s_mov_b64 exec, {mFULL}")
        a.wlg0(); self.barrier()
    def ln_finish(self):
        a = self.a
        i_sq = a.I(f"ds_read_b128 {V(68)}, v{vSQ} offset:1024")
        i_sm = a.I(f"ds_read_b128 {V(72)}, v{vSM} offset:{1024+512}")
        i_raw = a.I(f"ds_read_b128 {V(60)}, v{vL16}")
        i_cs = a.I(f"ds_read_b128 {V(64)}, v{vCS} offset:512")
        a.I(f"v_mov_b32 v44, s{sEPS}")
        a.wlg(i_sm)
        a.I("v_pk_add_f32 v[68:69], v[68:69], v[70:71]")
        a.I("v_pk_add_f32 v[72:73], v[72:73], v[74:75]")
        a.I("v_add_f32 v68, v68, v69")
        a.I("v_add_f32 v72, v72, v73")
        a.I(f"v_mul_f32 v72, s{sINV}, v72")
        a.I(f"v_fma_f32 v68, v68, s{sINV}, v44")
        a.I("v_fma_f32 v68, -v72, v72, v68")
        a.I(f"v_max_f32 v68, s{sEPS}, v68")
        a.I("v_rsq_f32 v68, v68")
        a.wlg(i_cs)
        a.I("v_pk_add_f32 v[60:61], v[60:61], v[62:63]")
        a.I("v_pk_add_f32 v[64:65], v[64:65], v[66:67]")
        a.I("v_add_f32 v60, v60, v61")
        a.I("v_add_f32 v64, v64, v65")
        a.I("v_fma_f32 v60, -v72, v64, v60")

    def qk_prep(self, qc=True):
        a = self.a
        if qc:
            for r in range(4): a.I(f"v_mov_b32 v{QC + r}, 0")
        for u in range(4):
            for r in range(2): a.I(f"v_mov_b32 v{SC + 4*u + r}, 0")
        for e in range(8):
            for r in range(2): a.I(f"v_mov_b32 v{ACC + 4*e + r}, 0")
    def qk(self, fill=None):
        a = self.a
        def base(H, rs):
            for r in rs: a.I(f"v_and_b32_dpp v{QB[H]+r}, v{QC+r}, v{vM01} quad_perm:[{2*H},{2*H+1},0,0] {DPP}")
        base(0, range(4))
        steps = [(G, H) for G in range(4) for H in range(2)]
        def reg(n):
            G, H = steps[n]
            return QB[H] if G == 0 else RB[n % 2]
        def bld(n, rs):
            G, H = steps[n]
            if G == 0: base(1, rs); return
            for r in rs: a.I(f"v_mov_b32_dpp v{RB[n%2]+r}, v{QB[H]+r} row_shr:{4*G} {DPP} bound_ctrl:0")
        for n, (G, H) in enumerate(steps):
            for u in range(4):
                t = 8 * (u >> 1) + 2 * G + (u & 1)
                a.I(f"{SMF} {V(SC+4*u)}, {V(reg(n))}, {Ar(16*t + 8*H, 8)}, v{vIDX}")
                if n + 1 < 8 and u < 2: bld(n + 1, (0, 1) if u == 0 else (2, 3))
                if fill and u >= 2: fill(n)
    def xlane(self, r, t, op):
        L = []
        L.append(f"{op}_dpp v{r}, v{r}, v{r} quad_perm:[1,0,3,2] {DPP}")
        L.append(f"{op}_dpp v{r}, v{r}, v{r} quad_perm:[2,3,0,1] {DPP}")
        L.append(f"{op}_dpp v{r}, v{r}, v{r} row_ror:4 {DPP}")
        L.append(f"{op}_dpp v{r}, v{r}, v{r} row_ror:8 {DPP}")
        L.append(f"v_mov_b32 v{t}, v{r}")
        L.append(f"v_permlane32_swap_b32 v{t}, v{r}")
        L.append(f"{op} v{r}, v{r}, v{t}")
        L.append(f"v_mov_b32 v{t}, v{r}")
        L.append(f"v_permlane16_swap_b32 v{t}, v{r}")
        L.append(f"{op} v{r}, v{r}, v{t}")
        return L
    def softmax(self, early_m):
        a = self.a; s = SC
        for u in range(4): a.I(f"v_add_f32 v{s+u}, v{s+4*u}, v{s+4*u+1}")
        a.I(f"v_max_f32 v{vM}, v{s}, v{s+1}")
        a.I(f"v_max3_f32 v{vM}, v{s+2}, v{s+3}, v{vM}")
        for x in self.xlane(vM, vL, "v_max_f32"): a.I(x)
        a.I(f"v_mul_f32 v{vM}, s{sC}, v{vM}")
        for k in range(4): a.I(f"v_fma_f32 v{s+k}, v{s+k}, s{sC}, -v{vM}")
        for k in range(4): a.I(f"v_exp_f32 v{s+k}, v{s+k}")
        a.I(f"v_cvt_pk_bf16_f32 v{s+4}, v{s}, v{s+1}"); a.I(f"v_cvt_pk_bf16_f32 v{s+5}, v{s+2}, v{s+3}")
        a.I(f"ds_write2_b32 v{vPW}, v{s+4}, v{s+5} offset0:0 offset1:64")
        a.I(f"s_mov_b64 exec, {mL0}"); a.I(f"ds_write_b32 v{vRW}, v{vM} offset:{ML_LDS}"); a.I(f"s_mov_b64 exec, {mFULL}")
        a.I(f"v_pk_add_f32 v[{s}:{s+1}], v[{s}:{s+1}], v[{s+2}:{s+3}]")
        a.I(f"v_add_f32 v{vL}, v{s}, v{s+1}")
        a.I(f"v_mov_b32 v62, 0")
        a.wlg0()
        if early_m: self.barrier()
        order = (2, 3, 0, 1) if early_m else (0, 1, 2, 3)
        ids = {g: a.I(f"ds_read_b128 {V(PA + 4*g)}, v{vPR} offset:{g*128}") for g in order}
        return ids, self.xlane(vL, 63, "v_add_f32")
    def attn_out(self, wo=True):
        a = self.a
        for e in range(8): a.I(f"v_add_f32 v{44 + e}, v{ACC + 4*e}, v{ACC + 4*e + 1}")
        a.I(f"s_mov_b64 exec, {mLO16}")
        a.I(f"ds_write_b128 v{vAW}, {V(44)}"); a.I(f"ds_write_b128 v{vAW}, {V(48)} offset:16")
        a.I(f"s_mov_b64 exec, {mFULL}")
    def l_write(self):
        a = self.a
        a.I(f"s_mov_b64 exec, {mL0}"); a.I(f"ds_write_b32 v{vRW}, v{vL} offset:{ML_LDS + 16}"); a.I(f"s_mov_b64 exec, {mFULL}")
    def f_read(self):
        return self.a.I(f"ds_read_b128 {V(F)}, v62 offset:{ML_LDS}")
    def f_calc(self):
        L = [f"v_max3_f32 v{vM}, v{F}, v{F+1}, v{F+2}", f"v_max_f32 v{vM}, v{vM}, v{F+3}"]
        for k in range(4): L.append(f"v_sub_f32 v{F+k}, v{F+k}, v{vM}")
        for k in range(4): L.append(f"v_exp_f32 v{F+k}, v{F+k}")
        L.append(f"v_min_u32 v{vM}, -2, v{vM}")
        return L
    def perm_half(self, blk, h, t1=54, t2=55):
        a = self.a
        R = lambda s, d: blk + 8 * s + 4 * h + d
        lo = lambda dst, x, y: a.I(f"v_perm_b32 v{dst}, v{y}, v{x}, s{sPLO}")
        hi = lambda dst, x, y: a.I(f"v_perm_b32 v{dst}, v{y}, v{x}, s{sPHI}")
        for p in range(4):
            x, y = R(2*p, p), R(2*p+1, p)
            lo(t1, x, y); hi(y, x, y); a.I(f"v_mov_b32 v{x}, v{t1}")
        for p in range(4):
            for d in range(p + 1, 4):
                ax, ay = R(2*p, d), R(2*p+1, d); bx, by = R(2*d, p), R(2*d+1, p)
                lo(t1, ax, ay); hi(t2, ax, ay); lo(ax, bx, by); hi(ay, bx, by)
                a.I(f"v_mov_b32 v{bx}, v{t1}"); a.I(f"v_mov_b32 v{by}, v{t2}")

    def build(self):
        a = self.a; o = self.o
        KV = "" if o.get("kvdef") else " nt"
        WP = " nt" if o.get("wpol") else ""
        a.raw(HEADER.rstrip())
        for line in DOC.strip().split("\n"): a.raw("; " + line)
        a.raw("; @launch grid=(256,1,1) block=(256,1,1) lds=163840")
        a.raw('.amdgcn_target "amdgcn-amd-amdhsa--gfx950"')
        a.raw(".text"); a.raw(f".globl {KNAME}"); a.raw(".p2align 8"); a.raw(f".type {KNAME},@function"); a.raw(f"{KNAME}:")
        a.I("s_cmp_ge_u32 s2, 256"); a.I("s_cbranch_scc1 L_exit")
        if o.get("stamps"): a.I(("s_memtime" if o.get("cyc") else "s_memrealtime") + " s[8:9]")
        if o.get("late"): a.I("s_memrealtime s[70:71]")
        a.I("s_load_dwordx16 s[76:91], s[0:1], 0")
        a.I("s_load_dwordx8 s[92:99], s[0:1], 64")
        a.I("s_load_dwordx2 s[100:101], s[0:1], 96")
        a.I("v_lshrrev_b32 v1, 6, v0")
        a.I(f"v_readfirstlane_b32 s{sW}, v1")
        a.I("v_and_b32 v0, 63, v0")
        a.I(f"s_and_b32 s{sX}, s2, 7"); a.I(f"s_lshr_b32 s{sI}, s2, 3")
        vg, vn = 28, 29
        KD = 84; KR = 88; WD = 92
        a.I(f"v_lshrrev_b32 v{vg}, 4, v0"); a.I(f"v_and_b32 v{vn}, 15, v0")
        a.I(f"v_lshlrev_b32 v{vVO}, 4, v0")
        a.I(f"v_xor_b32 v30, v{vg}, v{vn}")
        for q in range(4):
            a.I(f"v_xor_b32 v31, {4*q}, v30"); a.I(f"v_lshlrev_b32 v31, 4, v31")
            a.I(f"v_lshl_add_u32 v31, v{vg}, 8, v31"); a.I(f"v_add_u32 v{KD+q}, {q*1024}, v31")
        a.I(f"s_bfe_u32 s{sT0}, s{sI}, 0x10002"); a.I(f"s_lshl_b32 s{sT0}, s{sT0}, 5")
        a.I(f"s_lshl_b32 s{sT1}, s{sX}, 2"); a.I(f"s_add_u32 s{sT0}, s{sT0}, s{sT1}")
        a.I(f"s_lshr_b32 s{sT1}, s{sI}, 3"); a.I(f"s_add_u32 s{sT0}, s{sT0}, s{sT1}")
        a.I(f"s_lshl_b32 s{sT0}, s{sT0}, 4")
        a.I(f"s_and_b32 s{sT1}, s{sI}, 3"); a.I(f"s_lshl_b32 s{sT1}, s{sT1}, 2"); a.I(f"s_add_u32 s{sT0}, s{sT0}, s{sT1}")
        CL = o.get("clay", 0)
        TS = 16384 if CL else 4096; TM = 0x3ffff if CL else 0xffff; TSH = 14 if CL else 12
        if CL:
            a.I(f"s_lshl_b32 s{sT0}, s{sT0}, 16"); a.I(f"s_lshl_b32 s{sT1}, s{sW}, 12"); a.I(f"s_add_u32 s{sT0}, s{sT0}, s{sT1}")
            if CL == 1: a.I(f"s_mov_b32 s{sROT}, s2")
            else: a.I(f"s_lshl_b32 s{sROT}, s2, 2"); a.I(f"s_add_u32 s{sROT}, s{sROT}, s{sW}")
        else:
            a.I(f"s_add_u32 s{sT0}, s{sT0}, s{sW}"); a.I(f"s_lshl_b32 s{sT0}, s{sT0}, 16")
            a.I(f"s_lshl_b32 s{sROT}, s2, 2"); a.I(f"s_add_u32 s{sROT}, s{sROT}, s{sW}")
        rm = o.get("rotm", 0)
        if rm == 0:
            a.I(f"s_mul_i32 s{sROT}, s{sROT}, 0x9E3779B1"); a.I(f"s_lshr_b32 s{sROT}, s{sROT}, 28"); a.I(f"s_lshl_b32 s{sROT}, s{sROT}, {TSH}")
        else:
            ci, cw, cx = {1: (4, 1, 3), 2: (1, 4, 2), 3: (5, 4, 1), 4: (2, 8, 1), 5: (1, 0, 0), 6: (0, 4, 1)}[rm]
            a.I(f"s_mul_i32 s{sROT}, s{sI}, {ci}"); a.I(f"s_mul_i32 s{sT1}, s{sW}, {cw}"); a.I(f"s_add_u32 s{sROT}, s{sROT}, s{sT1}")
            a.I(f"s_mul_i32 s{sT1}, s{sX}, {cx}"); a.I(f"s_add_u32 s{sROT}, s{sROT}, s{sT1}"); a.I(f"s_and_b32 s{sROT}, s{sROT}, 15"); a.I(f"s_lshl_b32 s{sROT}, s{sROT}, 12")
        a.I(f"s_mul_i32 s{sWB}, s{sW}, {WAREA}"); a.I(f"s_add_u32 s{sWB}, s{sWB}, {WBASE0}")
        a.I(f"s_mov_b32 s{rK+2}, {(15 * TS + 4096)}"); a.I(f"s_mov_b32 s{rK+3}, 0x20000")
        a.I("s_waitcnt lgkmcnt(0)")
        if "karg" in o.get("stamps", []): a.I("s_memrealtime s[10:11]")
        a.I(f"s_add_u32 s{rK}, s78, s{sT0}"); a.I(f"s_addc_u32 s{rK+1}, s79, 0")
        kid = {}
        nothr = {t for t in range(16) if (o.get("nqm", 0x30) >> t) & 1}
        def ktile(t):
            if t >= 6: a.I("s_waitcnt lgkmcnt(4)")
            a.I(f"s_add_u32 s{sT1}, s{sROT}, {t*TS}"); a.I(f"s_and_b32 s{sT1}, s{sT1}, {TM}")
            for q in range(4):
                if t >= 2 and t not in nothr: self.thr("tk")
                a.I(f"s_add_u32 m0, s{sWB}, {V_OFF + (t % 6) * 4096 + q * 1024}")
                kid[t] = a.I(f"buffer_load_dwordx4 v{KD+q}, {S(rK)}, s{sT1} offen{KV} lds")
        def kread(t):
            a.wvm(kid[t])
            for j in range(4): a.I(f"ds_read_b128 {Ar(16*t+4*j)}, v{KR+j} offset:{V_OFF + (t % 6) * 4096}")
        ktile(0)
        NI = o.get("ni", 1)
        nothr |= set(range(NI))
        a.I(f"s_load_dword s{sXCC}, s[100:101], {EPO}")
        for t in range(1, NI): ktile(t)
        a.I(f"s_add_u32 s{rV}, s80, s{sT0}"); a.I(f"s_addc_u32 s{rV+1}, s81, 0")
        wsz = WS_BYTES
        for r, sz in ((rV, 15 * TS + 4096), (rWQ, 1 << 22), (rWO, 1 << 22), (rW1, 512 * 2752), (rW2, 1376 * 1024), (rWS, wsz), (rT, 2048), (rOUT, 2048)):
            a.I(f"s_mov_b32 s{r+2}, {sz}"); a.I(f"s_mov_b32 s{r+3}, 0x20000")
        for r, p in ((rWS, 100), (rT, 76), (rWQ, 82), (rWO, 84), (rW1, 88), (rW2, 92), (rOUT, 96)):
            a.I(f"s_mov_b64 s[{r}:{r+1}], s[{p}:{p+1}]")
        self.only_w0("L_noclear")
        for r in range(4): a.I(f"v_mov_b32 v{32+r}, -1")
        a.I(f"s_lshl_b32 s{sT1}, s2, 11")
        a.I(f"buffer_store_dwordx4 {V(32)}, v{vVO}, {S(rWS)}, s{sT1} offen sc1")
        clr = a.I(f"buffer_store_dwordx4 {V(32)}, v{vVO}, {S(rWS)}, s{sT1} offen offset:1024 sc1")
        if o.get("late"):
            a.I(f"s_lshl_b32 s{sT1}, s{sX}, 5"); a.I(f"s_add_u32 s{sT1}, s{sT1}, s{sI}"); a.I(f"s_lshl_b32 s{sT1}, s{sT1}, 2"); a.I(f"s_add_u32 s{sT1}, s{sT1}, {TOK + 1024}")
            a.I("v_mov_b32 v36, s70"); a.I("s_mov_b64 exec, 1")
            clr = a.I(f"buffer_store_dword v36, v{vVO}, {S(rWS)}, s{sT1} offen sc1")
            a.I("s_mov_b64 exec, -1")
        self.end_cond("L_noclear")
        a.I("v_bfe_u32 v30, v0, 3, 2"); a.I("v_lshrrev_b32 v31, 5, v0"); a.I("v_lshl_add_u32 v30, v30, 1, v31")
        a.I("v_bfe_u32 v31, v0, 1, 2"); a.I("v_lshl_add_u32 v30, v30, 2, v31")
        a.I("v_and_b32 v31, 1, v0"); a.I("v_lshlrev_b32 v31, 4, v31")
        self.mad(WD, 30, 8192, 31); self.mad(WD + 1, 30, 1024, 31); self.mad(WD + 2, 30, 2752, 31)
        a.I(f"s_lshl_b32 s{sT0}, s{sW}, 20"); a.I(f"s_lshl_b32 s{sT1}, s{sX}, 10"); a.I(f"s_add_u32 s{sT0}, s{sT0}, s{sT1}")
        a.I(f"s_lshl_b32 s{sT1}, s{sI}, 5"); a.I(f"s_add_u32 s{sP0}, s{sT0}, s{sT1}")
        def wdma(voff, srd, sbase, goff, lds_expr):
            if goff: a.I(f"s_add_u32 s{sT0}, s{sbase}, {goff}"); sb = sT0
            else: sb = sbase
            a.I(lds_expr)
            if (o.get("nowq") and srd == rWQ) or (o.get("nowo") and srd == rWO): return xid0[0]
            return a.I(f"buffer_load_dwordx4 v{voff}, {S(srd)}, s{sb} offen{WP} lds")
        xid0 = [kid[0]]
        wq = lambda j: wdma(WD, rWQ, sP0, j * 32 * 8192, f"s_add_u32 m0, s{sWB}, {WQ_OFF + j*1024}")
        wqid = [wq(0)]
        a.I(f"v_bfe_u32 v30, v0, 4, 1")
        a.I(f"v_lshlrev_b32 v31, 1, v{vn}")
        self.mad(vPX, 30, 1024, 31); self.mad(vPH, 30, 384, 31)
        a.I("v_bfe_u32 v32, v0, 2, 2"); a.I("v_bfe_u32 v33, v0, 1, 1"); a.I("v_lshl_add_u32 v32, v33, 2, v32"); a.I("v_lshlrev_b32 v32, 2, v32")
        self.mad(vPQ, 30, 256, 32)
        a.I(f"v_add_u32 v{vR2}, v31, v30"); a.I(f"v_lshlrev_b32 v{vR2}, 2, v{vR2}")
        a.I(f"v_mul_u32_u24 v{vSQ}, 272, v30"); a.I(f"v_lshlrev_b32 v{vSM}, 4, v30"); a.I(f"v_lshlrev_b32 v{vCS}, 4, v{vn}")
        a.I(f"v_and_b32 v32, 3, v0"); a.I(f"v_lshl_add_u32 v32, v30, 2, v32"); a.I(f"v_lshlrev_b32 v{vMLG}, {self.mls}, v32")
        a.I("v_bfe_u32 v32, v0, 1, 3"); a.I(f"v_lshl_add_u32 v32, v32, 2, v{vg}"); a.I("v_lshlrev_b32 v32, 4, v32"); a.I("v_and_b32 v33, 1, v0")
        self.mad(vXG, 33, 1024, 32); self.mad(vHG, 33, 384, 32)
        for r in range(8): a.I(f"v_mov_b32 v{36 + r}, 0x3f803f80")
        a.I(f"v_cmp_gt_u32 {mN8}, 8, v{vn}"); a.I(f"v_cmp_gt_u32 {mN4}, 4, v{vn}")
        a.I(f"s_mov_b64 {mFULL}, -1")
        a.I(f"s_add_u32 s{sJ}, s{sI}, {o.get('rj', 8)}"); a.I(f"s_and_b32 s{sJ}, s{sJ}, 31")
        a.I(f"s_add_u32 s{sJ2}, s{sI}, {o.get('rj2', 16)}"); a.I(f"s_and_b32 s{sJ2}, s{sJ2}, 31")
        a.I(f"s_lshl_b32 s{sT0}, s{sW}, 8")
        a.I(f"s_mov_b64 exec, {mN8}")
        xid = a.I(f"buffer_load_dwordx4 {V(36)}, v{vXG}, {S(rT)}, s{sT0} offen")
        a.I(f"s_mov_b64 exec, {mFULL}")
        a.I(f"s_lshl_b32 s{sT0}, s{sJ}, 5")
        a.I(f"buffer_load_ushort v{vXR}, v{vPX}, {S(rT)}, s{sT0} offen")
        a.I(f"s_mov_b64 s[{rT}:{rT+1}], s[94:95]"); a.I(f"s_mov_b32 s{rT+2}, 1024")
        a.I(f"buffer_load_ushort v{vB2}, v31, {S(rT)}, s{sT0} offen")
        a.I(f"s_mul_i32 s{sP1}, s{sX}, 11"); a.I(f"s_max_u32 s{sT0}, s{sX}, 6"); a.I(f"s_sub_u32 s{sT0}, s{sT0}, 6"); a.I(f"s_sub_u32 s{sP1}, s{sP1}, s{sT0}")
        a.I(f"s_sub_u32 s{sP2}, s{sI}, {HCU0}")
        a.I(f"s_cmp_lt_u32 s{sX}, 6"); a.I(f"s_cselect_b32 s{sT0}, 11, 10")
        a.I(f"s_cselect_b32 s34, 0x0fff0fff, 0x03ff03ff") if False else None
        a.I("s_mov_b32 s35, 0x03ff03ff"); a.I("s_cselect_b32 s34, 0x0fff0fff, s35")
        a.I(f"s_cmp_lt_u32 s{sP2}, s{sT0}"); a.I(f"s_cselect_b32 s{sHCU}, 1, 0")
        a.I(f"s_add_u32 s{sP3}, s{sP1}, s{sP2}"); a.I(f"s_lshl_b32 s{sP3}, s{sP3}, 5")
        a.I(f"s_mov_b64 s[{rT}:{rT+1}], s[90:91]"); a.I(f"s_mov_b32 s{rT+2}, 2752")
        bid = a.I(f"buffer_load_ushort v{vB1}, v31, {S(rT)}, s{sP3} offen")
        if NI < 2: ktile(1)
        wqid.append(wq(1))
        if o.get("stamps"):
            for k in range(12): a.I(f"s_mov_b32 s{90+k}, 0")
            for k, x in enumerate(o["stamps"]):
                if x == "start": a.I(f"s_mov_b32 s{90+k}, s8")
        a.I(f"s_lshr_b32 s{sT0}, s{sI}, 2"); a.I(f"s_cmp_eq_u32 s{sT0}, 3"); a.I(f"s_cselect_b32 s{sBUR}, 1, 0")
        a.I(f"s_lshr_b32 s{sT0}, s{sJ}, 2"); a.I(f"s_cmp_eq_u32 s{sT0}, 3"); a.I(f"s_cselect_b32 s{sBUR}, 1, s{sBUR}")
        if o.get("bur2", 0):
            a.I(f"s_lshr_b32 s{sT0}, s{sJ2}, 2"); a.I(f"s_cmp_eq_u32 s{sT0}, 3"); a.I(f"s_cselect_b32 s{sBUR}, 1, s{sBUR}")
        a.I("v_and_b32 v32, 7, v0"); a.I("v_bfe_u32 v33, v0, 3, 1"); a.I("v_lshl_add_u32 v32, v32, 2, v33")
        a.I(f"v_lshl_add_u32 v32, v32, 2, v{vg}"); a.I(f"v_lshlrev_b32 v{vAPG}, 4, v32")
        a.I("v_bfe_u32 v32, v0, 1, 1"); a.I(f"v_lshl_add_u32 v32, v32, 2, v{vg}"); a.I("v_and_b32 v33, 1, v0"); a.I("v_lshl_add_u32 v32, v32, 1, v33"); a.I(f"v_lshlrev_b32 v{vQG}, 4, v32")
        a.I(f"v_mov_b32 v34, 0xeeee"); a.I(f"v_mov_b32 v35, 0x4444"); a.I("v_cmp_eq_u32 vcc, 1, v33"); a.I(f"v_cndmask_b32 v{vIDX}, v35, v34, vcc")
        a.I(f"v_cmp_gt_u32 vcc, 2, v{vn}"); a.I(f"v_cndmask_b32 v{vM01}, 0, -1, vcc")
        a.I(f"s_lshl_b32 s{sT0}, s{sW}, 9"); a.I(f"s_add_u32 s{sT0}, s{sT0}, {P_LDS}")
        a.I(f"v_lshl_add_u32 v32, v{vg}, 1, v33"); a.I(f"v_lshl_add_u32 v{vPR}, v32, 4, s{sT0}")
        a.I("v_lshrrev_b32 v32, 5, v0"); a.I("v_bfe_u32 v34, v0, 4, 1"); a.I("v_lshl_add_u32 v32, v32, 1, v34")
        a.I("v_bfe_u32 v34, v0, 1, 1"); a.I("v_lshl_add_u32 v32, v32, 1, v34")
        a.I("v_bfe_u32 v34, v0, 2, 1"); a.I("v_lshl_add_u32 v32, v32, 1, v34")
        a.I("v_lshl_add_u32 v32, v32, 1, v33")
        a.I("v_bfe_u32 v34, v0, 3, 1"); a.I("v_lshl_add_u32 v32, v32, 1, v34")
        a.I(f"v_lshl_add_u32 v{vPW}, v32, 2, s{sT0}")
        a.I(f"v_lshlrev_b32 v{vL4}, 2, v0"); a.I(f"v_lshlrev_b32 v{vL8}, 3, v0")
        a.I(f"s_lshl_b32 s{sT0}, s{sW}, 2"); a.I(f"v_lshl_add_u32 v{vRW}, v0, 4, s{sT0}")
        a.I(f"s_lshl_b32 s{sT0}, s{sW}, 9"); a.I(f"v_lshl_add_u32 v{vAW}, v0, 5, s{sT0}")
        a.I(f"v_lshl_add_u32 v{vTR}, v0, 3, s{sWB}"); a.I(f"v_lshl_add_u32 v{vLV}, v0, 4, s{sWB}")
        a.I(f"v_lshlrev_b32 v32, 8, v{vn}"); a.I(f"v_add_u32 v32, s{sWB}, v32")
        a.I(f"v_xor_b32 v33, v{vg}, v{vn}")
        for j in range(4):
            a.I(f"v_xor_b32 v34, {4*j}, v33"); a.I(f"v_lshl_add_u32 v{KR+j}, v34, 4, v32")
        a.I(f"s_getreg_b32 s{sT0}, hwreg(HW_REG_XCC_ID, 0, 4)")
        a.I("s_waitcnt lgkmcnt(0)")
        if "karg" in o.get("stamps", []): a.I(f"s_mov_b32 s{90 + o['stamps'].index('karg')}, s10")
        self.stamp("epo")
        a.I(f"s_and_b32 s{sXCC}, s{sXCC}, -16"); a.I(f"s_add_u32 s{sXCC}, s{sXCC}, 16"); a.I(f"s_or_b32 s{sXCC}, s{sXCC}, s{sT0}")
        self.only_w0("L_noflag")
        a.I(f"s_lshl_b32 s{sT0}, s{sX}, 7"); a.I(f"s_lshl_b32 s{sT1}, s{sI}, 2"); a.I(f"s_add_u32 s{sT0}, s{sT0}, s{sT1}"); a.I(f"s_add_u32 s{sT0}, s{sT0}, {TOK}")
        a.I(f"v_mov_b32 v32, s{sXCC}")
        a.wvm(clr)
        a.I("s_mov_b64 exec, 1")
        a.I(f"buffer_store_dword v32, v{vL4}, {S(rWS)}, s{sT0} offen sc1")

        a.I(f"s_mov_b64 exec, {mFULL}")
        self.end_cond("L_noflag")
        self.stamp("tok")
        a.I(f"s_mov_b32 s{sC}, {f2u(math.log2(math.e) / math.sqrt(128.0))}")
        k1 = -2.0 * math.sqrt(2.0 / math.pi) * math.log2(math.e)
        a.I(f"s_mov_b32 s{sK1}, {f2u(k1)}"); a.I(f"s_mov_b32 s{sK2}, {f2u(k1 * 0.044715)}")
        a.I(f"s_mov_b32 s{sINV}, {f2u(1.0 / 512)}"); a.I(f"s_mov_b32 s{sEPS}, {f2u(1e-5)}")
        a.I(f"s_mov_b32 s{sPLO}, 0x05040100"); a.I(f"s_mov_b32 s{sPHI}, 0x07060302")
        a.I("s_mov_b32 s22, -1"); a.I("s_mov_b32 s23, 0"); a.I("s_mov_b32 s24, 0x55555555"); a.I("s_mov_b32 s25, 0")
        a.I("s_mov_b32 s30, 0xffff"); a.I("s_mov_b32 s31, 0xffff"); a.I("s_mov_b64 s[32:33], 1")
        a.I("s_mov_b32 s76, 0xffff"); a.I("s_mov_b32 s77, 0")
        a.I(f"s_mul_i32 s{sREG}, s{sX}, {2*REGION}")
        a.I(f"s_lshl_b32 s{sYP}, s{sJ}, 10"); a.I(f"s_add_u32 s{sYP}, s{sYP}, {YP}")
        a.I(f"s_mov_b32 s{sPASS}, 0"); a.I(f"s_mov_b32 s{sCNT}, {o.get('timeout', 400000)}"); a.I(f"s_mov_b32 s{sMODE}, 1")
        D = o.get("kd", 2)
        def kstep(t):
            if t >= NI: ktile(t)
            if t - D >= 0: kread(t - D)
        if D == 1: kread(0)
        kstep(2); self.stamp("k0"); wqid.append(wq(2))
        kstep(3); self.stamp("k1"); wqid.append(wq(3))
        a.I(f"s_lshl_b32 s{sT0}, s{sX}, 19"); a.I(f"s_lshl_b32 s{sT1}, s{sW}, 17"); a.I(f"s_add_u32 s{sT0}, s{sT0}, s{sT1}")
        a.I(f"s_lshl_b32 s{sT1}, s{sJ}, 5"); a.I(f"s_add_u32 s{sP0}, s{sT0}, s{sT1}")
        a.I(f"s_mov_b32 s68, s{sP0}")
        wo_ = lambda j, vo=WD + 1: wdma(vo, rWO, 68, j * 32 * 1024, f"s_add_u32 m0, s{sWB}, {WO_OFF + j*1024}")
        wo = (lambda j: None) if o.get("wolate") else wo_
        kstep(4); self.stamp("k2"); wo(0)
        kstep(5)
        a.C("Q1"); self.stamp("q1in")
        a.wvm([bid, xid] + wqid)
        a.I(f"v_lshlrev_b32 v{vXR}, 16, v{vXR}"); a.I(f"v_lshlrev_b32 v{vB1}, 16, v{vB1}"); a.I(f"v_lshlrev_b32 v{vB2}, 16, v{vB2}")
        for r in range(8): a.I(f"v_mov_b32 v{self.XA + r}, v{36 + r}")
        if o.get("tok", 2) == 1:
            self.only_w0("L_tk0"); a.I("v_mov_b32 v60, 0"); a.I(f"ds_write_b32 v60, v60 offset:{ML_LDS + 64}"); self.end_cond("L_tk0")
        self.ln_prep(WQ_OFF, preset=False)
        self.ln_mm()
        self.only_w0("L_q1nf")
        self.ln_finish()
        a.I("v_mul_f32 v60, v60, v68")
        self.pack_pub(60, 27)
        self.end_cond("L_q1nf")
        self.stamp("q1done")
        kstep(6); wo(1)
        a.C("flags check")
        def flagchk():
            for r in range(4): a.I(f"v_xor_b32 v{28+r}, s{sXCC}, v{28+r}")
            a.I("v_or3_b32 v28, v28, v29, v30"); a.I("v_or_b32 v28, v28, v31")
            a.I("v_cmp_lt_u32 vcc, 15, v28")
        a.I(f"s_mov_b32 s{sP2}, {TOK}")
        fins = f"buffer_load_dwordx4 {V(28)}, v{vL16}, {S(rWS)}, s{sP2} offen sc1"
        tk = o.get("tok", 2)
        if tk == 0:
            kstep(7); a.I(f"s_mov_b32 s{sMODE}, 0")
        else:
            if tk == 1:
                self.only_w0("L_tk1"); fid = a.I(fins); self.end_cond("L_tk1")
                kstep(7)
                self.only_w0("L_tk2")
            else:
                fid = a.I(fins)
                kstep(7)
            a.wvm(fid); flagchk()
            a.I("s_cbranch_vccz L_flagok")
            a.L("L_flagpoll"); a.cond += 1
            a.I("s_sleep 8")
            a.I(fins); a.I(f"s_sub_u32 s{sCNT}, s{sCNT}, 1"); a.I("s_cbranch_scc1 L_abort")
            a.wvm0(); flagchk(); a.I("s_cbranch_vccnz L_flagpoll")
            self.end_cond("L_flagok")
            a.I("v_cmp_ne_u32 vcc, 0, v28")
            a.I(f"s_lshl_b32 s{sT0}, s{sX}, 3"); a.I(f"s_nop 0"); a.I(f"s_lshr_b64 vcc, vcc, s{sT0}"); a.I(f"s_and_b32 s{sMODE}, vcc_lo, 0xff")
            if o.get("late"): tid = a.I(f"buffer_load_dword v32, v{vL16}, {S(rWS)}, s{sP2} offen offset:1024 sc1")
            if tk == 1:
                a.I("v_mov_b32 v28, 1"); a.I("v_mov_b32 v29, 0")
                a.I(f"ds_write_b32 v29, v28 offset:{ML_LDS + 64}")
                self.end_cond("L_tk2")
        self.stamp("flagok")
        if o.get("force_slow"): a.I(f"s_mov_b32 s{sMODE}, 1")
        self.only_w0("L_q1np")
        self.q_soff()
        self.q_publish(27)
        self.end_cond("L_q1np")
        kstep(8); wo(2)
        kstep(9); wo(3)
        if o.get("late"):
            a.wvm(tid)
            a.I("v_subrev_u32 v32, s70, v32")
            a.I(f"v_cmp_gt_i32 vcc, {-o['late']}, v32")
            a.I(f"s_nop 1")
            a.I(f"s_bcnt1_i32_b64 s{sT0}, vcc"); a.I(f"s_cmp_gt_u32 s{sT0}, {o.get('latec', 28)}"); a.I(f"s_cselect_b32 s{sBUR}, 1, s{sBUR}")
        a.I(f"s_lshl_b32 s{sT0}, s{sP1}, 14"); a.I(f"s_lshl_b32 s{sT1}, s{sW}, 16"); a.I(f"s_add_u32 s{sT0}, s{sT0}, s{sT1}")
        a.I(f"s_lshl_b32 s{sT1}, s{sJ2}, 5"); a.I(f"s_add_u32 s{sP0}, s{sT0}, s{sT1}")
        a.I(f"s_mov_b32 s{sW2B}, s{sP0}")
        a.I(f"s_mul_i32 s{sT0}, s{sW}, {128*2752}"); a.I(f"s_add_u32 s{sW1B}, s{sT0}, s{sP3}")
        self.wdma = wdma; self.WD = WD
        for t in range(10, 16): kstep(t)
        def prewarm():
            a.I("v_lshrrev_b32 v52, 2, v0"); a.I("v_and_b32 v53, 3, v0"); a.I("v_lshlrev_b32 v53, 7, v53"); a.I("v_min_u32 v53, 348, v53")
            self.mad(52, 52, 2752, 53)
            a.I(f"s_lshl_b32 s{sT0}, s{sI}, 2"); a.I(f"s_add_u32 s{sT0}, s{sT0}, s{sW}")
            a.I(f"s_mul_i32 s{sT1}, s{sT0}, {4*2752}"); a.I(f"s_lshl_b32 s{sT2}, s{sT0W}, 5"); a.I(f"s_add_u32 s{sT1}, s{sT1}, s{sT2}")
            a.I(f"s_mov_b64 exec, {mLO16}")
            a.I(f"buffer_load_dword v27, v52, {S(rW1)}, s{sT1} offen")
            a.I(f"s_mul_i32 s{sT1}, s{sT0}, {12*128}"); a.I(f"s_lshl_b32 s{sT2}, s{sT0W}, 14"); a.I(f"s_add_u32 s{sT1}, s{sT1}, s{sT2}")
            a.I("v_lshlrev_b32 v52, 7, v0")
            a.I("s_mov_b64 exec, 0xfff")
            a.I(f"buffer_load_dword v27, v52, {S(rW2)}, s{sT1} offen")
            if o.get("pt", 1):
                a.I(f"s_mul_i32 s{sT1}, s{sT0}, {3*128}"); a.I(f"s_add_u32 s{sT1}, s{sT1}, s{sREG}")
                a.I("s_mov_b64 exec, 7")
                a.I(f"buffer_load_dword v27, v52, {S(rWS)}, s{sT1} offen sc1")
            if o.get("ptc", 0):
                pol = ["", " sc1"][o.get("ptc") - 1]
                a.I(f"s_mov_b64 exec, {mFULL}")
                self.only_w0("L_ptc")
                a.I("v_lshlrev_b32 v52, 15, v0"); a.I("s_mov_b64 exec, 3")
                a.I(f"s_lshl_b32 s{sT2}, s{sX}, 7"); a.I(f"s_add_u32 s{sT1}, s{sYP}, s{sT2}")
                a.I(f"buffer_load_dword v27, v52, {S(rWS)}, s{sT1} offen{pol}")
                a.I(f"s_lshl_b32 s{sT1}, s{sJ2}, 10"); a.I(f"s_add_u32 s{sT1}, s{sT1}, s{sT2}"); a.I(f"s_add_u32 s{sT1}, s{sT1}, {YP2}")
                a.I(f"buffer_load_dword v27, v52, {S(rWS)}, s{sT1} offen{pol}")
                self.end_cond("L_ptc")
            a.I(f"s_mov_b64 exec, {mFULL}")
        vid = {}
        def vload(sg, k):
            h, x, b = (k >> 3, k & 3, (k >> 2) & 1) if o.get("vord", 0) else (k >> 3, (k >> 1) & 3, k & 1)
            if k % 8 == 0:
                for bb in range(2):
                    a.I(f"s_add_u32 s{sT1}, s{sROT}, {(4*sg + 2*h + bb)*TS}"); a.I(f"s_and_b32 s{(sP0, sP2)[bb]}, s{sT1}, {TM}")
            if not (sg == 0 and k < o.get("v0n", 0)): self.thr("tv", steer=(sg > 0) if o.get("dyn") else (o.get("ssg", 15) >> sg) & 1)
            vid[(sg, k)] = a.I(f"buffer_load_dwordx4 {V(sgblk(sg) + 8*(2*x + b) + 4*h)}, v{vVO}, {S(rV)}, s{(sP0, sP2)[b]} offen offset:{x*1024}{KV}")
        a.C("q1 gather")
        if o.get("tok", 2) == 1:
            a.I("v_mov_b32 v29, 0")
            a.L("L_tkw")
            a.I(f"ds_read_b32 v28, v29 offset:{ML_LDS + 64}")
            a.I(f"s_sub_u32 s{sCNT}, s{sCNT}, 1"); a.I("s_cbranch_scc1 L_abort")
            a.wlg0(); a.I("v_cmp_ne_u32 vcc, 1, v28"); a.I("s_cbranch_vccnz L_tkw")
        for r in range(4): a.I(f"v_mov_b32 v{QC + r}, 0")
        a.I(f"s_lshr_b32 s{sP3}, s{sI}, 2"); a.I(f"s_lshl_b32 s{sP3}, s{sP3}, 8"); a.I(f"s_add_u32 s{sP3}, s{sP3}, s{sREG}")
        qins = f"buffer_load_dwordx4 {V(QC)}, v{vQG}, {S(rWS)}, s{sP3} offen sc1"
        a.I(f"s_mov_b64 exec, {mN4}"); qid = a.I(qins); a.I(f"s_mov_b64 exec, {mFULL}")
        for k in range(3): vload(0, k)
        kread(14)
        for k in range(3, 6): vload(0, k)
        kread(15)
        self.qk_prep(qc=False)
        a.wvm(qid)
        self.check(range(QC, QC + 4), 32)
        a.I("s_cbranch_vccz L_q1ok"); a.cond += 1
        self.poll([(mN4, qins)], range(QC, QC + 4), 32)
        self.end_cond("L_q1ok")
        self.stamp("q1ok")
        vload(0, 6)
        a.wlg0()
        def qksm(p):
            self.qk()
            ids, lsum = self.softmax(False)
            for x in lsum: p.I(x)
            self.l_write()
        l0 = [lambda k=k: vload(0, k) for k in range(7, 16)]
        if o.get("dyn"):
            f0 = l0[6]; l0[6] = lambda: (f0(), self.pl0())
        self.l0 = l0; self.qksm = qksm
        self.stamp("sm1")
        def proc(sg):
            def fn(p):
                blk = sgblk(sg)
                p.wvm(lambda: vid[(sg, 7)])
                self.perm_half(blk, 0)
                p.wvm(lambda: vid[(sg, 15)])
                self.perm_half(blk, 1)
                if sg == 0: p.wlg0()
                for e in range(8): p.I(f"{SMF} {V(ACC + 4*e)}, {V(PA + 4*sg)}, {V(blk + 8*e, 8)}, v{vIDX}")
                if sg < 2:
                    for e in range(8 if sg == 0 else 4):
                        for hh in range(2):
                            p.I(f"ds_write_b128 v{vLV}, {V(blk + 8*e + 4*hh)} offset:{V_OFF + (16*sg + 2*e + hh)*1024}")
                    if sg == 1:
                        for r in range(32): p.I(f"v_mov_b32 v{HF + r}, v{blk + 32 + r}")
                    p.wlg0()
            return self.rec(fn)
        DY = o.get("dyn", 0)
        pid = {}
        def ckpt(c):
            a.I("s_memrealtime s[70:71]")
            a.I(f"s_lshl_b32 s69, s{sW}, 7"); a.I(f"s_add_u32 s69, s69, s{sREG}"); a.I(f"s_add_u32 s69, s69, {20480 + c * 512}")
            a.I(f"s_lshl_b32 s{sT0}, s{sI}, 2"); a.I(f"s_add_u32 s{sT0}, s{sT0}, s69")
            a.I("s_waitcnt lgkmcnt(0)")
            a.I("s_and_b32 s70, s70, 0x7fffffff")
            a.I("v_mov_b32 v27, s70"); a.I("s_mov_b64 exec, 1")
            a.I(f"buffer_store_dword v27, v{vL4}, {S(rWS)}, s{sT0} offen")
            a.I(f"s_mov_b64 exec, {mFULL}")
        def pload(c):
            a.I(f"s_mov_b64 exec, {mLO32}")
            pid[c] = a.I(f"buffer_load_dword v47, v{vL4}, {S(rWS)}, s69 offen sc1")
            a.I(f"s_mov_b64 exec, {mFULL}")
        def peval(c):
            a.wvm(pid[c])
            a.I(f"s_sub_u32 s71, s70, {DY}")
            a.I("v_cmp_gt_u32 vcc, s71, v47")
            a.I(f"s_mov_b32 s{sT0}, s{sBST}" if (o.get("ssg", 15) >> (c + 1)) & 1 else f"s_mov_b32 s{sT0}, 0"); a.I("s_nop 0")
            a.I(f"s_bcnt1_i32_b32 s71, vcc_lo"); a.I(f"s_cmp_gt_u32 s71, {o.get('dync', 16)}"); a.I(f"s_cselect_b32 s{sBUR}, 1, s{sT0}")
        self.pl0 = lambda: pload(0)
        if DY: a.I(f"s_mov_b32 s{sBST}, s{sBUR}"); ckpt(0)
        self.interleave(self.l0, self.rec(self.qksm))
        for sg in range(3):
            lds = [lambda k=k: vload(sg + 1, k) for k in range(16)]
            if DY:
                peval(sg)
                if sg < 2:
                    ckpt(sg + 1)
                    f = lds[10]; lds[10] = (lambda f=f, c=sg + 1: (f(), pload(c)))
            self.interleave(lds, proc(sg))
            if o.get("dmae", 0) and sg == o.get("pwsg", 1): prewarm()
        if o.get("wolate"):
            a.I("v_bfe_u32 v52, v0, 3, 2"); a.I("v_lshrrev_b32 v53, 5, v0"); a.I("v_lshl_add_u32 v52, v52, 1, v53")
            a.I("v_bfe_u32 v53, v0, 1, 2"); a.I("v_lshl_add_u32 v52, v52, 2, v53")
            a.I("v_and_b32 v53, 1, v0"); a.I("v_lshlrev_b32 v53, 4, v53")
            self.mad(52, 52, 1024, 53)
            for j in range(4): wo_(j, 52)
        if o.get("dmae", 0) == 1: self.w12dma(44)
        elif not o.get("dmae", 0): prewarm()
        for sg in range(3, 4):
            blk = sgblk(sg)
            self.stamp("g6done")
            a.wlg0(); self.barrier()
            if o.get("dmae", 0) == 2: self.w12dma(44)
            fr = self.f_read()
            a.wvm(vid[(sg, 7)])
            self.perm_half(blk, 0)
            a.wlg(fr)
            for x in self.f_calc(): a.I(x)
            smf = lambda e: a.I(f"{SMF} {V(ACC + 4*e)}, {V(PA + 4*sg)}, {V(blk + 8*e, 8)}, v{vIDX}")
            if sg == 3 and o.get("fastlast", 1):
                R = lambda r, d: blk + 8 * r + 4 + d
                lo = lambda dst, x, y: a.I(f"v_perm_b32 v{dst}, v{y}, v{x}, s{sPLO}")
                hi = lambda dst, x, y: a.I(f"v_perm_b32 v{dst}, v{y}, v{x}, s{sPHI}")
                a.wvm(vid[(sg, 14 if o.get("vord", 0) else 13)])
                for p in range(3):
                    x, y = R(2*p, p), R(2*p+1, p)
                    lo(54, x, y); hi(y, x, y); a.I(f"v_mov_b32 v{x}, v54")
                    lo(44 + p, R(2*p, 3), R(2*p+1, 3)); hi(48 + p, R(2*p, 3), R(2*p+1, 3))
                for p in range(3):
                    for d in range(p + 1, 3):
                        ax, ay = R(2*p, d), R(2*p+1, d); bx, by = R(2*d, p), R(2*d+1, p)
                        lo(54, ax, ay); hi(55, ax, ay); lo(ax, bx, by); hi(ay, bx, by)
                        a.I(f"v_mov_b32 v{bx}, v54"); a.I(f"v_mov_b32 v{by}, v55")
                if o.get("dmae", 0) == 3: self.w12dma(24 + 28)
                a.wvm(vid[(sg, 15)])
                self.stamp("vlast")
                lo(R(0, 3), R(6, 0), R(7, 0)); hi(R(1, 3), R(6, 0), R(7, 0))
                lo(R(2, 3), R(6, 1), R(7, 1)); hi(R(3, 3), R(6, 1), R(7, 1))
                smf(0)
                lo(R(4, 3), R(6, 2), R(7, 2)); hi(R(5, 3), R(6, 2), R(7, 2))
                smf(1)
                lo(47, R(6, 3), R(7, 3)); hi(R(7, 3), R(6, 3), R(7, 3))
                smf(2)
                a.I(f"v_mov_b32 v{R(6, 0)}, v44"); a.I(f"v_mov_b32 v{R(6, 1)}, v45")
                smf(3)
                a.I(f"v_mov_b32 v{R(6, 2)}, v46"); a.I(f"v_mov_b32 v{R(6, 3)}, v47")
                smf(4)
                a.I(f"v_mov_b32 v{R(7, 0)}, v48"); a.I(f"v_mov_b32 v{R(7, 1)}, v49")
                smf(5)
                a.I(f"v_mov_b32 v{R(7, 2)}, v50")
                smf(6); smf(7)
            else:
                a.wvm(vid[(sg, 15)])
                if sg == 3: self.stamp("vlast")
                self.perm_half(blk, 1)
                if sg == 0: a.wlg0()
                for e in range(8): smf(e)
        self.attn_out(wo=not o.get("wolate"))
        if o.get("pad"):
            a.I("s_branch L_fin"); a.raw(f".fill {o['pad'] // 4}, 4, 0xbf800000")
        self.tail()
        for ls, ins, ld in self.ool:
            a.L(ls)
            for x in ins: a.I(x)
            a.I(f"s_branch {ld}")
        for lr, l in self.ool2:
            a.L(lr); a.I(f"s_sleep {o['bo']}"); a.I(f"s_branch {l}")
        a.L("L_abort"); self.stamp_out(); a.L("L_exit"); a.I("s_endpgm")
        a.raw('.section .rodata,"a"'); a.raw(".p2align 6"); a.raw(f".amdhsa_kernel {KNAME}")
        for s in (".amdhsa_next_free_vgpr 512", ".amdhsa_next_free_sgpr 102", ".amdhsa_accum_offset 256", ".amdhsa_group_segment_fixed_size 0",
                  ".amdhsa_kernarg_size 104", ".amdhsa_user_sgpr_count 2", ".amdhsa_user_sgpr_kernarg_segment_ptr 1", ".amdhsa_system_sgpr_workgroup_id_x 1"):
            a.raw("  " + s)
        a.raw(".end_amdhsa_kernel")
        return a.text()

    def w12dma(self, t):
        a = self.a
        a.I(f"v_bfe_u32 v{t}, v0, 3, 2"); a.I(f"v_lshrrev_b32 v{t+1}, 5, v0"); a.I(f"v_lshl_add_u32 v{t}, v{t}, 1, v{t+1}")
        a.I(f"v_bfe_u32 v{t+1}, v0, 1, 2"); a.I(f"v_lshl_add_u32 v{t}, v{t}, 2, v{t+1}")
        a.I(f"v_and_b32 v{t+1}, 1, v0"); a.I(f"v_lshlrev_b32 v{t+1}, 4, v{t+1}")
        self.mad(t + 2, t, 1024, t + 1); self.mad(t + 3, t, 2752, t + 1)
        a.I(f"s_cmp_eq_u32 s{sHCU}, 0"); a.I("s_cbranch_scc1 L_now1"); a.cond += 1
        for j in range(4): self.wdma(t + 3, rW1, sW1B, j * 32 * 2752, f"s_add_u32 m0, s{sWB}, {W1_OFF + j*1024}")
        self.end_cond("L_now1")
        a.I(f"s_lshl_b32 s{sT1}, s{sW}, 11")
        for j in range(2): self.wdma(t + 2, rW2, sW2B, j * 32 * 1024, f"s_add_u32 m0, s{sT1}, {W2_LDS + j*1024}")
    def q_soff(self):
        a = self.a
        a.I(f"s_lshr_b32 s{sT0}, s{sI}, 3"); a.I(f"s_lshl_b32 s{sT0}, s{sT0}, 9")
        a.I(f"s_and_b32 s{sT1}, s{sI}, 7"); a.I(f"s_lshl_b32 s{sT1}, s{sT1}, 5")
        a.I(f"s_add_u32 s{sT0}, s{sT0}, s{sT1}"); a.I(f"s_add_u32 s{sT0}, s{sT0}, s{sREG}")
    def q_publish(self, pv):
        a = self.a
        a.I(f"s_mov_b64 exec, {mEVEN}")
        self.publish(f"buffer_store_dword v{pv}, v{vPQ}, {S(rWS)}, s{sT0} offen")
        a.I(f"s_mov_b64 exec, {mFULL}")

    def rstage(self, name, voff, ypoff, xs, addb2):
        a = self.a
        a.I(f"s_lshl_b32 s{sT1}, s{sJ}, 5"); a.I(f"s_add_u32 s{sT0}, s{sT1}, s{sREG}"); a.I(f"s_add_u32 s{sT0}, s{sT0}, {xs}")
        for r in range(8): a.I(f"v_mov_b32 v{80+r}, 0")
        if addb2: a.I(f"v_add_f32 v{vXR}, v{vXR}, v{vB2}")
        if ypoff: a.I(f"s_add_u32 s{sT2}, s{sYP}, {ypoff}"); sb = sT2
        else: sb = sYP
        self.sleep2("r2a", 11, "r2b", 6) if addb2 else self.sleep2("ra", 9, "rb", 8)
        self.poll([(mLO32, f"buffer_load_dword v{80+x}, v{voff}, {S(rWS)}, s{sb} offen offset:{x*128} {['sc1', 'sc1 nt', 'sc0 sc1', 'sc0 sc1 nt'][self.o.get('cpol', 0)]}") for x in range(8)], range(80, 88), 36,
                  depth=self.o.get("p_c", 1), gap=self.o.get("gapc", 3))
        self.stamp(name)
        a.I("v_pk_add_f32 v[88:89], v[80:81], v[82:83]"); a.I("v_pk_add_f32 v[90:91], v[84:85], v[86:87]")
        a.I(f"v_add_f32 v88, v88, v{vXR}")
        a.I("v_pk_add_f32 v[88:89], v[88:89], v[90:91]")
        a.I("v_add_f32 v88, v88, v89")
        self.pack_pub(88, 89)
        a.I(f"s_mov_b64 exec, {mEVEN}")
        if addb2:
            a.I(f"s_cmp_lg_u32 s{sPASS}, 0"); a.I("s_cbranch_scc1 L_final")
        self.publish(f"buffer_store_dword v89, v{vPX}, {S(rWS)}, s{sT0} offen")
        a.I(f"s_mov_b64 exec, {mFULL}")
        a.I(f"v_cvt_pk_bf16_f32 v{vXR}, v88, v88"); a.I(f"v_and_b32 v{vXR}, 0xffff0000, v{vXR}")

    def tail(self):
        a = self.a; o = self.o
        a.L("L_fin")
        a.C("attention finish"); self.stamp("fin")
        a.I(f"s_lshl_b32 s{sT0}, s{sI}, 8"); a.I(f"s_add_u32 s{sT0}, s{sT0}, s{sREG}"); a.I(f"s_add_u32 s{sT0}, s{sT0}, {AP}")
        a.I(f"s_lshl_b32 s{sT1}, s{sI}, {self.mls}"); a.I(f"s_add_u32 s{sT1}, s{sT1}, s{sREG}"); a.I(f"s_add_u32 s{sT1}, s{sT1}, 16384")
        a.wlg0(); self.barrier()
        self.only_w0("L_fin_done")
        ids = [a.I(f"ds_read_b64 {V(28+2*w, 2)}, v{vL8} offset:{w*512}") for w in range(2)]
        lid = a.I(f"ds_read_b128 {V(36)}, v62 offset:{ML_LDS + 16}")
        ids += [a.I(f"ds_read_b64 {V(28+2*w, 2)}, v{vL8} offset:{w*512}") for w in range(2, 4)]
        a.I(f"s_cmp_lg_u32 s{sMODE}, 0")
        a.wlg(ids[0])
        a.I(f"v_mul_f32 v28, v{F}, v28"); a.I(f"v_mul_f32 v29, v{F}, v29")
        a.wlg(ids[1])
        a.I(f"v_fmac_f32 v28, v{F+1}, v30"); a.I(f"v_fmac_f32 v29, v{F+1}, v31")
        a.wlg(lid)
        a.I(f"v_mul_f32 v{vL}, v{F}, v36"); a.I(f"v_fmac_f32 v{vL}, v{F+1}, v37")
        a.wlg(ids[2])
        a.I(f"v_fmac_f32 v28, v{F+2}, v32"); a.I(f"v_fmac_f32 v29, v{F+2}, v33"); a.I(f"v_fmac_f32 v{vL}, v{F+2}, v38")
        a.wlg(ids[3])
        a.I(f"v_fmac_f32 v28, v{F+3}, v34"); a.I(f"v_fmac_f32 v29, v{F+3}, v35"); a.I(f"v_fmac_f32 v{vL}, v{F+3}, v39")
        a.I("v_cvt_pk_bf16_f32 v28, v28, v29"); a.I(f"v_min_u32 v{vL}, -2, v{vL}"); a.I("v_min_u32 v28, -2, v28")
        self.publish([f"buffer_store_dword v28, v{vL4}, {S(rWS)}, s{sT0} offen", f"s_mov_b64 exec, {mL0}",
                      f"buffer_store_dwordx2 v[{vM}:{vL}], v{vL4}, {S(rWS)}, s{sT1} offen", f"s_mov_b64 exec, {mFULL}"], precmp=True)
        self.end_cond("L_fin_done")
        self.stamp("finpub")
        a.C("stage O")
        a.I(f"s_lshl_b32 s{sT0}, s{sW}, 11"); a.I(f"s_add_u32 s{sT0}, s{sT0}, s{sREG}"); a.I(f"s_add_u32 s{sT0}, s{sT0}, {AP}")
        a.I(f"s_lshl_b32 s{sT1}, s{sW}, {self.mls + 3}"); a.I(f"s_add_u32 s{sT1}, s{sT1}, s{sREG}"); a.I(f"s_add_u32 s{sT1}, s{sT1}, 16384")
        for j in range(4): self.trread(WOP + 4 * j, vTR, WO_OFF + j * 1024)
        a.wlg0()
        if o.get("b_o", 1): self.barrier()
        self.sleep2("e1a", 1, "e1b", 2)
        def ospec():
            if o.get("wolate"):
                l = self.nl("wol")
                a.I(f"s_cmp_lg_u32 s{sPASS}, 0"); a.I(f"s_cbranch_scc1 {l}")
                for j in range(4): self.trread(WOP + 4 * j, vTR, WO_OFF + j * 1024)
                a.wlg0(); a.L(l)
            a.I(f"{MF} {V(40)}, {V(28)}, {V(WOP)}, 0")
            a.I(f"{MF} {V(40)}, {V(32)}, {V(WOP+8)}, {V(40)}")
        self.poll([(None, f"buffer_load_dwordx2 v[36:37], v{vMLG}, {S(rWS)}, s{sT1} offen sc1"),
                   (None, f"buffer_load_dwordx4 {V(28)}, v{vAPG}, {S(rWS)}, s{sT0} offen sc1"),
                   (None, f"buffer_load_dwordx4 {V(32)}, v{vAPG}, {S(rWS)}, s{sT0} offen offset:128 sc1")],
                  [36, 37] + list(range(28, 36)), 38, spec=ospec)
        self.stamp("e1")
        a.I(f"v_max_f32_dpp v38, v36, v36 quad_perm:[1,0,3,2] {DPP}")
        for r in range(4): a.I(f"v_mov_b32_dpp v{44+r}, v{28+r} row_shl:8 {DPP}")
        a.I(f"v_max_f32_dpp v38, v38, v38 quad_perm:[2,3,0,1] {DPP}")
        a.I(f"v_mov_b32_dpp v48, v32 row_shl:8 {DPP}")
        a.I(f"{MF} {V(40)}, {V(44)}, {V(WOP+4)}, {V(40)}")
        for r in range(1, 4): a.I(f"v_mov_b32_dpp v{48+r}, v{32+r} row_shl:8 {DPP}")
        a.I("v_sub_f32 v38, v36, v38")
        a.I("v_exp_f32 v38, v38")
        a.I(f"{MF} {V(40)}, {V(48)}, {V(WOP+12)}, {V(40)}")
        a.I("v_mul_f32 v39, v38, v37")
        a.I(f"s_lshl_b32 s{sT0}, s{sX}, 7"); a.I(f"s_add_u32 s{sT0}, s{sT0}, s{sYP}")
        a.I(f"v_add_f32_dpp v39, v39, v39 quad_perm:[1,0,3,2] {DPP}")
        a.I(f"v_add_f32_dpp v39, v39, v39 quad_perm:[2,3,0,1] {DPP}")
        a.I("v_rcp_f32 v39, v39")
        a.I("v_mul_f32 v38, v38, v39")
        a.I(f"v_mul_f32_dpp v52, v38, v40 quad_perm:[0,0,0,0] {DPP}")
        for r in range(1, 4): a.I(f"v_fmac_f32_dpp v52, v38, v{40+r} quad_perm:[{r},{r},{r},{r}] {DPP}")
        a.I(f"s_mov_b64 exec, {mLO32}")
        a.I(f"ds_write_b32 v{vRW}, v52 offset:{ORED}")
        a.I(f"s_mov_b64 exec, {mFULL}")
        a.wlg0(); self.barrier()
        self.only_w0("L_o_done")
        a.I(f"ds_read_b128 {V(40)}, v{vL16} offset:{ORED}"); a.wlg0()
        a.I("v_pk_add_f32 v[40:41], v[40:41], v[42:43]"); a.I("v_add_f32 v40, v40, v41"); a.I("v_min_u32 v40, -2, v40")
        a.I(f"s_mov_b64 exec, {mLO32}")
        a.I(f"buffer_store_dword v40, v{vL4}, {S(rWS)}, s{sT0} offen {['sc1', 'sc0 sc1'][o.get('spol', 0)]}")
        a.I(f"s_mov_b64 exec, {mFULL}")
        self.end_cond("L_o_done")
        self.stamp("opub")
        if not o.get("dmae", 0):
            a.I(f"s_cmp_lg_u32 s{sPASS}, 0"); a.I("s_cbranch_scc1 L_nodma"); a.cond += 1
            self.w12dma(44)
            self.end_cond("L_nodma")
        a.C("stage R")
        self.only_w0("L_r_done")
        self.rstage("e2a", vL4, 0, XSA, False)
        self.end_cond("L_r_done")
        self.stamp("rpub")
        a.C("stage H")
        a.I(f"s_cmp_eq_u32 s{sW}, 0"); a.I("s_cbranch_scc1 L_nowait"); a.wvm0(); a.L("L_nowait")
        self.ln_prep(W1_OFF)
        a.I(f"s_lshl_b32 s{sT0}, s{sW}, 8"); a.I(f"s_add_u32 s{sT0}, s{sT0}, s{sREG}"); a.I(f"s_add_u32 s{sT0}, s{sT0}, {XSA}")
        a.wlg0(); self.barrier()
        a.I(f"s_cmp_eq_u32 s{sHCU}, 0"); a.I("s_cbranch_scc1 L_h_done"); a.cond += 1
        self.sleep("d_x", 0)
        self.poll([(mN8, f"buffer_load_dwordx4 {V(self.XA)}, v{vXG}, {S(rWS)}, s{sT0} offen sc1")], range(self.XA, self.XA + 4), 60, spec=self.ln_head)
        self.stamp("e2b")
        a.I(f"s_sub_u32 s{sT0}, s{sI}, {HCU0}"); a.I(f"s_lshl_b32 s{sT0}, s{sT0}, 5"); a.I(f"s_add_u32 s{sT0}, s{sT0}, s{sREG}"); a.I(f"s_add_u32 s{sT0}, s{sT0}, {HS}")
        self.ln_mm(head=False)
        a.I(f"s_cmp_lg_u32 s{sW}, 0"); a.I("s_cbranch_scc1 L_h_done")
        self.ln_finish()
        a.I(f"v_fma_f32 v60, v60, v68, v{vB1}")
        a.I(f"v_mov_b32 v62, s{sK1}")
        a.I("v_mul_f32 v61, v60, v60")
        a.I(f"v_fma_f32 v61, v61, s{sK2}, v62")
        a.I("v_mul_f32 v61, v61, v60")
        a.I("v_exp_f32 v61, v61")
        a.I("v_add_f32 v61, 1.0, v61")
        a.I("v_rcp_f32 v61, v61")
        a.I("v_mul_f32 v60, v60, v61")
        self.pack_pub(60, 61)
        a.I(f"s_mov_b64 exec, {mEVEN}")
        self.publish(f"buffer_store_dword v61, v{vPH}, {S(rWS)}, s{sT0} offen")
        a.I(f"s_mov_b64 exec, {mFULL}")
        self.end_cond("L_h_done")
        self.stamp("hpub")
        a.C("stage X2")
        self.only_w0("L_x2_done")
        for r in range(4): a.I(f"v_mov_b32 v{92 + r}, 0")
        rd = [self.trread(44 + 4 * k, vL8, W2_LDS + k * 1024) for k in range(6)]
        a.I(f"s_add_u32 s{sT0}, s{sREG}, {HS}")
        a.I(f"s_lshl_b32 s{sT1}, s{sJ2}, 10"); a.I(f"s_lshl_b32 s{sT2}, s{sX}, 7"); a.I(f"s_add_u32 s{sT1}, s{sT1}, s{sT2}")
        a.I(f"s_lshl_b32 s{sT2}, s{sPASS}, 15"); a.I(f"s_add_u32 s{sT1}, s{sT1}, s{sT2}"); a.I(f"s_add_u32 s{sT1}, s{sT1}, {YP2}")
        self.sleep("d_h", 0)
        a.wlg0()
        self.poll([(mH, f"buffer_load_dwordx4 {V(92)}, v{vHG}, {S(rWS)}, s{sT0} offen sc1")], range(92, 96), 40,
                  spec=lambda: a.I(f"{MF} {V(36)}, {V(92)}, {V(44)}, 0"))
        self.stamp("e3")
        for k in range(1, 6):
            cur = (32, 40)[k % 2]
            for r in range(4): a.I(f"v_mov_b32_dpp v{cur + r}, v{92 + r} row_shl:{2*k} {DPP}")
            if k >= 2: a.I(f"{MF} {V(36)}, {V((32, 40)[(k-1) % 2])}, {V(44 + 4*(k-1))}, {V(36)}")
        a.I(f"{MF} {V(36)}, {V(40)}, {V(64)}, {V(36)}")
        a.I(f"s_mov_b64 exec, {mLO16}")
        a.I("v_min_u32 v36, -2, v36"); a.I("v_min_u32 v37, -2, v37")
        a.I(f"buffer_store_dwordx2 v[36:37], v{vL8}, {S(rWS)}, s{sT1} offen {['sc1', 'sc0 sc1'][o.get('spol', 0)]}")
        a.I(f"s_mov_b64 exec, {mFULL}")
        self.stamp("xpub")
        a.I(f"s_mul_i32 s{sT0}, s{sPASS}, s{sX}"); a.I(f"s_cmp_lg_u32 s{sT0}, 0"); a.I("s_cbranch_scc1 L_abort")
        a.C("stage R2")
        self.rstage("e3b", vR2, YP2 - YP, XSB, True)
        self.end_cond("L_x2_done")
        self.stamp("r2pub")
        a.I(f"s_cmp_lg_u32 s{sPASS}, 0"); a.I("s_cbranch_scc1 L_abort")
        a.C("stage Q2")
        self.ln_prep(WQ_OFF)
        a.I(f"s_lshl_b32 s{sP0}, s{sW}, 8"); a.I(f"s_add_u32 s{sP0}, s{sP0}, s{sREG}"); a.I(f"s_add_u32 s{sP0}, s{sP0}, {XSB}")
        a.I(f"s_mov_b32 s{sPASS}, 1"); a.I(f"s_add_u32 s{sREG}, s{sREG}, {REGION}"); a.I(f"s_add_u32 s{sYP}, s{sYP}, 32768")
        self.q_soff()
        a.I(f"s_lshr_b32 s{sP3}, s{sI}, 2"); a.I(f"s_lshl_b32 s{sP3}, s{sP3}, 8"); a.I(f"s_add_u32 s{sP3}, s{sP3}, s{sREG}")
        a.wlg0(); self.barrier()
        self.sleep("d_x", 0)
        self.poll([(mN8, f"buffer_load_dwordx4 {V(self.XA)}, v{vXG}, {S(rWS)}, s{sP0} offen sc1")], range(self.XA, self.XA + 4), 60, spec=self.ln_head)
        self.stamp("e4")
        self.ln_mm(head=False)
        self.only_w0("L_q2_done")
        self.ln_finish()
        a.I("v_mul_f32 v60, v60, v68")
        self.pack_pub(60, 61)
        self.q_publish(61)
        self.end_cond("L_q2_done")
        self.stamp("qpub")
        a.C("attention 2")
        self.qk_prep()
        if o.get("b_q", 1): self.barrier()
        self.sleep("d_q", 0)
        self.poll([(mN4, f"buffer_load_dwordx4 {V(QC)}, v{vQG}, {S(rWS)}, s{sP3} offen sc1")], range(QC, QC + 4), 32, depth=o.get("p_x", 1), gap=o.get("gap", 2))
        self.stamp("e5")
        lv = []
        landmap = [0, 8, 16, 24, 128, 136, 144, 152, 32, 40, 48, 56]
        land = lambda op: landmap[op]
        def fillv(n):
            if n >= 2:
                for _ in range(2):
                    k = len(lv)
                    lv.append(a.I(f"ds_read_b128 {Ar(land(k >> 1) + 4*(k & 1))}, v{vLV} offset:{V_OFF + k*1024}"))
        self.qk(fill=fillv)
        self.stamp("qk2")
        ids, post = self.softmax(True)
        fr = self.f_read()
        self.stamp("sm2")
        def opnd(sg, e):
            if sg == 0: return Ar(land(e), 8)
            if sg == 1: return Ar(land(8 + e), 8) if e < 4 else V(HF + 8 * (e - 4), 8)
            return V(sgblk(sg) + 8 * e, 8)
        for gi, sg in enumerate((2, 3, 0, 1)):
            a.wlg(ids[sg])
            if gi == 2: a.wlg(fr); post = post + self.f_calc()
            for e in range(8):
                a.I(f"{SMF} {V(ACC + 4*e)}, {V(PA + 4*sg)}, {opnd(sg, e)}, v{vIDX}")
                if post: a.I(post.pop(0))
                if gi == 1 and e == 7: self.l_write()
        assert not post
        self.attn_out()
        a.I("s_branch L_fin")
        a.L("L_final")
        a.I(f"buffer_store_dword v89, v{vPX}, {S(rOUT)}, s{sT1} offen")
        a.I(f"s_cmp_lg_u32 s{sI}, 0"); a.I("s_cbranch_scc1 L_noepo")
        a.I(f"v_mov_b32 v30, s{sXCC}"); a.I(f"s_mov_b32 s{sT0}, {EPO}"); a.I("s_mov_b64 exec, 1")
        a.I(f"buffer_store_dword v30, v{vL4}, {S(rWS)}, s{sT0} offen")
        a.L("L_noepo")
        if o.get("stamps"):
            a.wvm0(); self.stamp("end")
            if o.get("amp"):
                a.I("s_sub_u32 s92, s91, s90"); a.I("s_lshl_b32 s92, s92, 2"); a.I("s_add_u32 s92, s92, 4000")
                a.L("L_spin"); a.I("s_memrealtime s[64:65]"); a.I("s_waitcnt lgkmcnt(0)"); a.I("s_sub_u32 s64, s64, s90")
                a.I(f"s_cmp_lt_u32 s64, s92"); a.I("s_cbranch_scc1 L_spin")
            a.I("s_branch L_abort")
        a.I("s_endpgm")

if __name__ == "__main__":
    opt = {}
    out = sys.argv[1]
    for kv in sys.argv[2:]:
        k, v = kv.split("="); opt[k] = v.split(",") if k == "stamps" else int(v)
    g = Gen(opt)
    t = g.build()
    open(out, "w").write(t)
    print("lines", t.count("\n"), "auto nops", g.a.nops)
```

```python
import sys, math, struct
from asmlib import Asm
KNAME = "interleave_layers__gqa_block_cached__dense_activation_gelu__decode_kernel"
HEADER = open("interleave_layers__gqa_block_cached__dense_activation_gelu__decode.s.ref").read().split("; Override launch")[0]

DOC = """
One persistent launch, one 4-wave workgroup per CU (256 workgroups, 512 registers per lane, 160 KiB LDS).
Workgroup (X = id & 7, i = id >> 3) owns 1024 keys of (batch (i>>2)&1, head 4X + (i>>3)); its K and V rows are read from
memory exactly once and stay in registers / LDS for both attention layers.  K: LDS-DMA ring -> AGPRs, V: registers (+LDS).
QK^T and PV use v_smfmac (q / p are the 2:4-sparse operand, split over two rows); the GEMVs use v_mfma with the
LayerNorm folded in ((x @ W - mean * colsum(W)) * rstd; sums come from a Gram MFMA).
Hand-offs between workgroups go through d_ws words that this launch first sets to 0xFFFFFFFF (never a payload value);
consumers poll with sc1 loads until no such word is left.  A token per workgroup (launch epoch + XCC id) says that its
part of the clearing is done and tells whether the 32 workgroups of a group X really share one XCD: only then do
hand-offs inside the group use plain stores (L2), otherwise sc1 stores.  Hand-offs between groups always use sc1.
Chain per layer pair: attention partials -> (wo) -> x1 -> (w1, gelu) -> h -> (w2) -> x2 -> (wq) -> q.
"""
MISC = 0; ML_LDS = 2048; W2_LDS = 5120; WBASE0 = 13312; WAREA = 36864
WQ_OFF = 0; WO_OFF = 4096; W1_OFF = 8192; V_OFF = 12288
REGION = 24576; QS = 0; AP = 2048; ML = 10240; XSA = 10496; XSB = 12544; HS = 14592
YP = 393216; YP2 = 458752; TOK = 0xA0000; EPO = 0xA0800; WS_BYTES = 0xA0900
sW, sX, sI, sREG, sYP, sMODE, sPASS, sCNT, sWB = 3, 4, 5, 6, 7, 9, 10, 11, 12
sT0, sT1, sT2, sPLO, sPHI, sJ, sROT = 13, 14, 15, 16, 17, 18, 19
mFULL, mLO32, mEVEN, mN8, mN4, mG02, mL0, mH, mLO16 = "s[20:21]", "s[22:23]", "s[24:25]", "s[26:27]", "s[28:29]", "s[30:31]", "s[32:33]", "s[34:35]", "s[76:77]"
rK, rV, rWQ, rWO, rW1, rW2, rWS, rT, rDBG, rOUT = 36, 40, 44, 48, 52, 56, 60, 64, 68, 72
sC, sXCC, sHCU, sJ2 = 78, 79, 80, 81
sK1, sK2, sINV, sEPS = 82, 83, 84, 85
sBUR = 8; sBST = 94; sJR = 70; sYR = 71
sW2B, sW1B, sT0W = 66, 67, 87
sP0, sP1, sP2, sP3 = 86, 87, 88, 89
def S(r): return f"s[{r}:{r+3}]"
def V(r, n=4): return f"v[{r}:{r+n-1}]"
def Ar(r, n=4): return f"a[{r}:{r+n-1}]"
DPP = "row_mask:0xf bank_mask:0xf"
MF = "v_mfma_f32_16x16x32_bf16"
vTR, vB1, vB2, vXR, vXG, vPX, vPQ, vPH, vAPG, vMLG, vQG, vHG, vL4, vR2, vL8, vL16, vRW, vAW, vCS, vSQ, vSM, vLV, vIDX, vPW, vPR, vM01 = range(1, 27)
vVO = vL16
QC = 28; QB = (32, 36); RB = (40, 44); SC = 48; vM, vL = 56, 57; PA = 28; F = 58; FL = 48; ACC = 64; WOP = 64
BLKA, BLKB, HF = 96, 160, 224
P_LDS = 2560
ORED = 4608
SMF = "v_smfmac_f32_16x16x64_bf16"
HCU0 = 16
f2u = lambda x: "0x%08x" % struct.unpack("<I", struct.pack("<f", x))[0]
def sgblk(sg): return (BLKA, BLKB)[sg & 1]

class Gen:
    def __init__(self, opt):
        self.a = Asm(); self.o = opt; self.mls = opt.get('mls', 3); self.tadd = 0; self.lab = 0; self.ool = []; self.ool2 = []
    def nl(self, p):
        self.lab += 1; return f"L_{p}_{self.lab}"
    def stamp(self, name):
        st = self.o.get("stamps", [])
        a = self.a
        hits = [k for k, x in enumerate(st) if x.split("@")[0] == name]
        if not hits: return
        a.I(("s_memtime" if self.o.get("cyc") else "s_memrealtime") + " s[64:65]"); a.I("s_waitcnt lgkmcnt(0)")
        for k in hits:
            if "@" in st[k]:
                a.I(f"s_cmp_eq_u32 s{sPASS}, {st[k].split('@')[1]}"); a.I(f"s_cselect_b32 s{90+k}, s64, s{90+k}")
            else:
                a.I(f"s_mov_b32 s{90+k}, s64")
    def stamp_out(self):
        if not self.o.get("stamps"): return
        a = self.a
        a.I("s_mov_b64 exec, 1")
        a.I(f"s_lshl_b32 s64, s2, 2"); a.I(f"s_add_u32 s64, s64, s{sW}"); a.I("s_lshl_b32 s64, s64, 6"); a.I("s_add_u32 s64, s64, 0x80000")
        a.I("v_mov_b32 v44, 0")
        for k in range(12): a.I(f"v_mov_b32 v{28+k}, s{90+k}")
        for k in range(3): a.I(f"buffer_store_dwordx4 {V(28+4*k)}, v44, {S(rWS)}, s64 offen offset:{16*k}")
        if self.o.get("dbgst"):
            a.I(f"s_lshl_b32 s64, s2, 2"); a.I(f"s_add_u32 s64, s64, s{sW}"); a.I("s_cmp_lg_u32 s64, 0"); a.I("s_cbranch_scc1 L_exit")
            a.I("s_nop 1")
            for k in range(1, 12): a.I(f"v_subrev_u32 v{28+k}, s90, v{28+k}")
            for k in range(3): a.I(f"buffer_store_dwordx4 {V(28+4*k)}, v44, {S(rDBG)}, 0 offen offset:{16*k}")

    def publish(self, instr, precmp=False):
        a = self.a
        if isinstance(instr, str): instr = [instr]
        ls, ld = self.nl("slow"), self.nl("pubd")
        if not precmp: a.I(f"s_cmp_lg_u32 s{sMODE}, 0")
        a.I(f"s_cbranch_scc1 {ls}")
        a.cond += 1
        for x in instr: a.I(x)
        a.cond -= 1
        a.L(ld)
        self.ool.append((ls, [x + (" sc1" if x.startswith("buffer_store") else "") for x in instr], ld))
    def thr(self, key, steer=True):
        a = self.a; T = self.o.get(key, 0); TB = self.o.get(key + "b", T)
        if not steer: TB = T
        if T: T += self.tadd
        if TB: TB += self.tadd
        if not T: return
        if TB == T:
            a.I(f"s_waitcnt vmcnt({T})"); return
        l = self.nl("thr")
        if TB: a.I(f"s_waitcnt vmcnt({TB})")
        a.I(f"s_cmp_lg_u32 s{sBUR}, 0"); a.I(f"s_cbranch_scc1 {l}"); a.I(f"s_waitcnt vmcnt({T})"); a.L(l)
    def rec(self, fn):
        real = self.a; items = []
        class Proxy:
            cond = 0
            grp = None
            def I(p, t):
                if t.startswith("s_mov_b64 exec") and mFULL not in t: p.grp = []
                if p.grp is not None:
                    p.grp.append(t)
                    if t.startswith("s_mov_b64 exec") and mFULL in t:
                        g = p.grp; p.grp = None
                        items.append(lambda: [real.I(x) for x in g])
                    return None
                items.append(lambda: real.I(t)); return None
            def wvm(p, ids): items.append(lambda: real.wvm(ids() if callable(ids) else ids))
            def wlg(p, ids): items.append(lambda: real.wlg0())
            def wlg0(p): items.append(lambda: real.wlg0())
            def C(p, t): pass
        self.a = Proxy()
        fn(self.a)
        self.a = real
        return items
    def interleave(self, loads, work, start=0):
        n = len(loads) - start; k = 0
        for i, ld in enumerate(loads):
            ld()
            if i >= start:
                tgt = (i - start + 1) * len(work) // n
                while k < tgt: work[k](); k += 1
    def barrier(self): self.a.I("s_barrier")
    def only_w0(self, lab):
        a = self.a
        a.I(f"s_cmp_lg_u32 s{sW}, 0"); a.I(f"s_cbranch_scc1 {lab}"); a.cond += 1
    def end_cond(self, lab):
        self.a.cond -= 1; self.a.L(lab)
    def poll(self, loads, regs, vt, depth=1, gap=2, spec=None):
        a = self.a
        def issue():
            cur = None
            for m, ins in loads:
                if m != cur: a.I(f"s_mov_b64 exec, {m or mFULL}"); cur = m
                a.I(ins)
            if cur is not None: a.I(f"s_mov_b64 exec, {mFULL}")
        for _ in range(depth - 1):
            issue()
            if gap: a.I(f"s_sleep {gap}")
        l = self.nl("poll"); a.L(l)
        issue()
        a.I(f"s_sub_u32 s{sCNT}, s{sCNT}, 1"); a.I("s_cbranch_scc1 L_abort")
        a.I(f"s_waitcnt vmcnt({(depth - 1) * len(loads)})")
        if spec and self.o.get("spec", 1): spec()
        self.check(regs, vt)
        post = (spec and not self.o.get("spec", 1))
        if self.o.get("bo"):
            lr = self.nl("retry")
            a.I(f"s_cbranch_vccnz {lr}")
            self.ool2.append((lr, l))
        else:
            a.I(f"s_cbranch_vccnz {l}")
        if post: spec()
    def check(self, regs, vt):
        a = self.a; r = list(regs)
        if len(r) % 2 == 1: a.I(f"v_max3_u32 v{vt}, v{r[0]}, v{r[1]}, v{r[2]}"); r = r[3:]
        else: a.I(f"v_max_u32 v{vt}, v{r[0]}, v{r[1]}"); r = r[2:]
        for k in range(0, len(r), 2): a.I(f"v_max3_u32 v{vt}, v{r[k]}, v{r[k+1]}, v{vt}")
        a.I(f"v_cmp_eq_u32 vcc, -1, v{vt}")
    def sleep(self, key, dflt):
        n = self.o.get(key, dflt)
        if n: self.a.I(f"s_sleep {n}")
    def sleep2(self, k0, d0, k1, d1):
        a = self.a; n0 = self.o.get(k0, d0); n1 = self.o.get(k1, d1)
        m = min(n0, n1)
        if n0 != n1:
            l = self.nl("sl")
            a.I(f"s_cmp_eq_u32 s{sPASS}, {0 if n0 < n1 else 1}"); a.I(f"s_cbranch_scc1 {l}"); a.I(f"s_sleep {max(n0, n1) - m}"); a.L(l)
        if m: a.I(f"s_sleep {m}")
    def trread(self, dst, addr, off):
        a = self.a
        a.I(f"ds_read_b64_tr_b16 {V(dst,2)}, v{addr} offset:{off}")
        return a.I(f"ds_read_b64_tr_b16 {V(dst+2,2)}, v{addr} offset:{off+512}")
    def pack_pub(self, val, tmp):
        a = self.a
        a.I(f"v_mov_b32_dpp v{tmp}, v{val} quad_perm:[1,1,3,3] {DPP}")
        a.I(f"v_cvt_pk_bf16_f32 v{tmp}, v{val}, v{tmp}")
        a.I(f"v_min_u32 v{tmp}, -2, v{tmp}")
    def mad(self, dst, x, c, y):
        a = self.a
        a.I(f"s_movk_i32 s{sT2}, {c}"); a.I(f"v_mad_u32_u24 v{dst}, v{x}, s{sT2}, v{y}")

    XA, XT, GA, TA, WB, XU = 28, 32, 36, 40, 44, 76
    RED = 0
    def ln_prep(self, off, preset=True):
        a = self.a
        if preset:
            for r in range(8): a.I(f"v_mov_b32 v{self.XA + r}, 0x3f803f80")
        for r in range(4): a.I(f"v_mov_b32 v{self.XU + r}, 0x3f803f80")
        self.rd = [self.trread(self.WB + 4 * j, vTR, off + j * 1024) for j in range(4)]
    def ln_head(self):
        a = self.a
        if self.o.get("lw"): a.wlg0()
        a.I(f"{MF} {V(self.TA)}, {V(self.XA)}, {V(self.WB)}, 0")
        a.I(f"{MF} {V(self.GA)}, {V(self.XA)}, {V(self.XA)}, 0")
    def ln_mm(self, head=True):
        a = self.a
        regs = [self.XA, self.XT, self.XU, self.XT]
        base = self.RED // 256
        if head: a.wlg0(); self.ln_head()
        for r in range(4): a.I(f"v_mov_b32_dpp v{self.XT + r}, v{self.XA + r} row_shl:2 {DPP}")
        for r in range(2): a.I(f"v_mov_b32_dpp v{self.XU + r}, v{self.XA + r} row_shl:4 {DPP}")
        for j in range(1, 4):
            cur = regs[j]
            a.I(f"{MF} {V(self.TA)}, {V(cur)}, {V(self.WB + 4*j)}, {V(self.TA)}")
            if j == 1:
                for r in range(2, 4): a.I(f"v_mov_b32_dpp v{self.XU + r}, v{self.XA + r} row_shl:4 {DPP}")
            a.I(f"{MF} {V(self.GA)}, {V(cur)}, {V(cur)}, {V(self.GA)}")
            if j == 1:
                for r in range(4): a.I(f"v_mov_b32_dpp v{self.XT + r}, v{self.XA + r} row_shl:6 {DPP}")
        a.I(f"s_mov_b64 exec, {mG02}")
        a.I(f"ds_write2st64_b32 v{vRW}, v{self.TA}, v{self.TA+1} offset0:{base} offset1:{base+1}")
        a.I(f"ds_write2st64_b32 v{vRW}, v{self.GA}, v{self.GA+1} offset0:{base+4} offset1:{base+5}")
        a.I(f"s_mov_b64 exec, {mFULL}")
        a.wlg0(); self.barrier()
    def ln_finish(self):
        a = self.a
        i_sq = a.I(f"ds_read_b128 {V(68)}, v{vSQ} offset:1024")
        i_sm = a.I(f"ds_read_b128 {V(72)}, v{vSM} offset:{1024+512}")
        i_raw = a.I(f"ds_read_b128 {V(60)}, v{vL16}")
        i_cs = a.I(f"ds_read_b128 {V(64)}, v{vCS} offset:512")
        a.I(f"v_mov_b32 v44, s{sEPS}")
        a.wlg(i_sm)
        a.I("v_pk_add_f32 v[68:69], v[68:69], v[70:71]")
        a.I("v_pk_add_f32 v[72:73], v[72:73], v[74:75]")
        a.I("v_add_f32 v68, v68, v69")
        a.I("v_add_f32 v72, v72, v73")
        a.I(f"v_mul_f32 v72, s{sINV}, v72")
        a.I(f"v_fma_f32 v68, v68, s{sINV}, v44")
        a.I("v_fma_f32 v68, -v72, v72, v68")
        a.I(f"v_max_f32 v68, s{sEPS}, v68")
        a.I("v_rsq_f32 v68, v68")
        a.wlg(i_cs)
        a.I("v_pk_add_f32 v[60:61], v[60:61], v[62:63]")
        a.I("v_pk_add_f32 v[64:65], v[64:65], v[66:67]")
        a.I("v_add_f32 v60, v60, v61")
        a.I("v_add_f32 v64, v64, v65")
        a.I("v_fma_f32 v60, -v72, v64, v60")

    def qk_prep(self, qc=True):
        a = self.a
        if qc:
            for r in range(4): a.I(f"v_mov_b32 v{QC + r}, 0")
        for u in range(4):
            for r in range(2): a.I(f"v_mov_b32 v{SC + 4*u + r}, 0")
        for e in range(8):
            for r in range(2): a.I(f"v_mov_b32 v{ACC + 4*e + r}, 0")
    def qk(self, fill=None):
        a = self.a
        def base(H, rs):
            for r in rs: a.I(f"v_and_b32_dpp v{QB[H]+r}, v{QC+r}, v{vM01} quad_perm:[{2*H},{2*H+1},0,0] {DPP}")
        base(0, range(4))
        steps = [(G, H) for G in range(4) for H in range(2)]
        def reg(n):
            G, H = steps[n]
            return QB[H] if G == 0 else RB[n % 2]
        def bld(n, rs):
            G, H = steps[n]
            if G == 0: base(1, rs); return
            for r in rs: a.I(f"v_mov_b32_dpp v{RB[n%2]+r}, v{QB[H]+r} row_shr:{4*G} {DPP} bound_ctrl:0")
        for n, (G, H) in enumerate(steps):
            for u in range(4):
                t = 8 * (u >> 1) + 2 * G + (u & 1)
                a.I(f"{SMF} {V(SC+4*u)}, {V(reg(n))}, {Ar(16*t + 8*H, 8)}, v{vIDX}")
                if n + 1 < 8 and u < 2: bld(n + 1, (0, 1) if u == 0 else (2, 3))
                if fill and u >= 2: fill(n)
    def xlane(self, r, t, op):
        L = []
        L.append(f"{op}_dpp v{r}, v{r}, v{r} quad_perm:[1,0,3,2] {DPP}")
        L.append(f"{op}_dpp v{r}, v{r}, v{r} quad_perm:[2,3,0,1] {DPP}")
        L.append(f"{op}_dpp v{r}, v{r}, v{r} row_ror:4 {DPP}")
        L.append(f"{op}_dpp v{r}, v{r}, v{r} row_ror:8 {DPP}")
        L.append(f"v_mov_b32 v{t}, v{r}")
        L.append(f"v_permlane32_swap_b32 v{t}, v{r}")
        L.append(f"{op} v{r}, v{r}, v{t}")
        L.append(f"v_mov_b32 v{t}, v{r}")
        L.append(f"v_permlane16_swap_b32 v{t}, v{r}")
        L.append(f"{op} v{r}, v{r}, v{t}")
        return L
    def softmax(self, early_m):
        a = self.a; s = SC
        for u in range(4): a.I(f"v_add_f32 v{s+u}, v{s+4*u}, v{s+4*u+1}")
        a.I(f"v_max_f32 v{vM}, v{s}, v{s+1}")
        a.I(f"v_max3_f32 v{vM}, v{s+2}, v{s+3}, v{vM}")
        for x in self.xlane(vM, vL, "v_max_f32"): a.I(x)
        a.I(f"v_mul_f32 v{vM}, s{sC}, v{vM}")
        for k in range(4): a.I(f"v_fma_f32 v{s+k}, v{s+k}, s{sC}, -v{vM}")
        for k in range(4): a.I(f"v_exp_f32 v{s+k}, v{s+k}")
        a.I(f"v_cvt_pk_bf16_f32 v{s+4}, v{s}, v{s+1}"); a.I(f"v_cvt_pk_bf16_f32 v{s+5}, v{s+2}, v{s+3}")
        a.I(f"ds_write2_b32 v{vPW}, v{s+4}, v{s+5} offset0:0 offset1:64")
        a.I(f"s_mov_b64 exec, {mL0}"); a.I(f"ds_write_b32 v{vRW}, v{vM} offset:{ML_LDS}"); a.I(f"s_mov_b64 exec, {mFULL}")
        a.I(f"v_pk_add_f32 v[{s}:{s+1}], v[{s}:{s+1}], v[{s+2}:{s+3}]")
        a.I(f"v_add_f32 v{vL}, v{s}, v{s+1}")
        a.I(f"v_mov_b32 v62, 0")
        a.wlg0()
        if early_m: self.barrier()
        order = (2, 3, 0, 1) if early_m else (0, 1, 2, 3)
        ids = {g: a.I(f"ds_read_b128 {V(PA + 4*g)}, v{vPR} offset:{g*128}") for g in order}
        return ids, self.xlane(vL, 63, "v_add_f32")
    def attn_out(self, wo=True):
        a = self.a
        for e in range(8): a.I(f"v_add_f32 v{44 + e}, v{ACC + 4*e}, v{ACC + 4*e + 1}")
        a.I(f"s_mov_b64 exec, {mLO16}")
        a.I(f"ds_write_b128 v{vAW}, {V(44)}"); a.I(f"ds_write_b128 v{vAW}, {V(48)} offset:16")
        a.I(f"s_mov_b64 exec, {mFULL}")
    def l_write(self):
        a = self.a
        a.I(f"s_mov_b64 exec, {mL0}"); a.I(f"ds_write_b32 v{vRW}, v{vL} offset:{ML_LDS + 16}"); a.I(f"s_mov_b64 exec, {mFULL}")
    def f_read(self):
        return self.a.I(f"ds_read_b128 {V(F)}, v62 offset:{ML_LDS}")
    def f_calc(self):
        L = [f"v_max3_f32 v{vM}, v{F}, v{F+1}, v{F+2}", f"v_max_f32 v{vM}, v{vM}, v{F+3}"]
        for k in range(4): L.append(f"v_sub_f32 v{F+k}, v{F+k}, v{vM}")
        for k in range(4): L.append(f"v_exp_f32 v{F+k}, v{F+k}")
        L.append(f"v_min_u32 v{vM}, -2, v{vM}")
        return L
    def perm_half(self, blk, h, t1=54, t2=55):
        a = self.a
        R = lambda s, d: blk + 8 * s + 4 * h + d
        lo = lambda dst, x, y: a.I(f"v_perm_b32 v{dst}, v{y}, v{x}, s{sPLO}")
        hi = lambda dst, x, y: a.I(f"v_perm_b32 v{dst}, v{y}, v{x}, s{sPHI}")
        for p in range(4):
            x, y = R(2*p, p), R(2*p+1, p)
            lo(t1, x, y); hi(y, x, y); a.I(f"v_mov_b32 v{x}, v{t1}")
        for p in range(4):
            for d in range(p + 1, 4):
                ax, ay = R(2*p, d), R(2*p+1, d); bx, by = R(2*d, p), R(2*d+1, p)
                lo(t1, ax, ay); hi(t2, ax, ay); lo(ax, bx, by); hi(ay, bx, by)
                a.I(f"v_mov_b32 v{bx}, v{t1}"); a.I(f"v_mov_b32 v{by}, v{t2}")

    def build(self):
        a = self.a; o = self.o
        KV = "" if o.get("kvdef") else " nt"
        WP = " nt" if o.get("wpol") else ""
        a.raw(HEADER.rstrip())
        for line in DOC.strip().split("\n"): a.raw("; " + line)
        a.raw("; @launch grid=(256,1,1) block=(256,1,1) lds=163840")
        a.raw('.amdgcn_target "amdgcn-amd-amdhsa--gfx950"')
        a.raw(".text"); a.raw(f".globl {KNAME}"); a.raw(".p2align 8"); a.raw(f".type {KNAME},@function"); a.raw(f"{KNAME}:")
        a.I("s_cmp_ge_u32 s2, 256"); a.I("s_cbranch_scc1 L_exit")
        if o.get("stamps"): a.I(("s_memtime" if o.get("cyc") else "s_memrealtime") + " s[8:9]")
        if o.get("late"): a.I("s_memrealtime s[70:71]")
        a.I("s_load_dwordx16 s[76:91], s[0:1], 0")
        a.I("s_load_dwordx8 s[92:99], s[0:1], 64")
        a.I("s_load_dwordx2 s[100:101], s[0:1], 96")
        a.I("v_lshrrev_b32 v1, 6, v0")
        a.I(f"v_readfirstlane_b32 s{sW}, v1")
        a.I("v_and_b32 v0, 63, v0")
        a.I(f"s_and_b32 s{sX}, s2, 7"); a.I(f"s_lshr_b32 s{sI}, s2, 3")
        vg, vn = 28, 29
        KD = 84; KR = 88; WD = 92
        a.I(f"v_lshrrev_b32 v{vg}, 4, v0"); a.I(f"v_and_b32 v{vn}, 15, v0")
        a.I(f"v_lshlrev_b32 v{vVO}, 4, v0")
        a.I(f"v_xor_b32 v30, v{vg}, v{vn}")
        for q in range(4):
            a.I(f"v_xor_b32 v31, {4*q}, v30"); a.I(f"v_lshlrev_b32 v31, 4, v31")
            a.I(f"v_lshl_add_u32 v31, v{vg}, 8, v31"); a.I(f"v_add_u32 v{KD+q}, {q*1024}, v31")
        a.I(f"s_bfe_u32 s{sT0}, s{sI}, 0x10002"); a.I(f"s_lshl_b32 s{sT0}, s{sT0}, 5")
        a.I(f"s_lshl_b32 s{sT1}, s{sX}, 2"); a.I(f"s_add_u32 s{sT0}, s{sT0}, s{sT1}")
        a.I(f"s_lshr_b32 s{sT1}, s{sI}, 3"); a.I(f"s_add_u32 s{sT0}, s{sT0}, s{sT1}")
        a.I(f"s_lshl_b32 s{sT0}, s{sT0}, 4")
        a.I(f"s_and_b32 s{sT1}, s{sI}, 3"); a.I(f"s_lshl_b32 s{sT1}, s{sT1}, 2"); a.I(f"s_add_u32 s{sT0}, s{sT0}, s{sT1}")
        CL = o.get("clay", 0)
        TS = 16384 if CL else 4096; TM = 0x3ffff if CL else 0xffff; TSH = 14 if CL else 12
        if CL:
            a.I(f"s_lshl_b32 s{sT0}, s{sT0}, 16"); a.I(f"s_lshl_b32 s{sT1}, s{sW}, 12"); a.I(f"s_add_u32 s{sT0}, s{sT0}, s{sT1}")
            if CL == 1: a.I(f"s_mov_b32 s{sROT}, s2")
            else: a.I(f"s_lshl_b32 s{sROT}, s2, 2"); a.I(f"s_add_u32 s{sROT}, s{sROT}, s{sW}")
        else:
            a.I(f"s_add_u32 s{sT0}, s{sT0}, s{sW}"); a.I(f"s_lshl_b32 s{sT0}, s{sT0}, 16")
            a.I(f"s_lshl_b32 s{sROT}, s2, 2"); a.I(f"s_add_u32 s{sROT}, s{sROT}, s{sW}")
        rm = o.get("rotm", 0)
        if rm == 0:
            a.I(f"s_mul_i32 s{sROT}, s{sROT}, 0x9E3779B1"); a.I(f"s_lshr_b32 s{sROT}, s{sROT}, 28"); a.I(f"s_lshl_b32 s{sROT}, s{sROT}, {TSH}")
        else:
            ci, cw, cx = {1: (4, 1, 3), 2: (1, 4, 2), 3: (5, 4, 1), 4: (2, 8, 1), 5: (1, 0, 0), 6: (0, 4, 1)}[rm]
            a.I(f"s_mul_i32 s{sROT}, s{sI}, {ci}"); a.I(f"s_mul_i32 s{sT1}, s{sW}, {cw}"); a.I(f"s_add_u32 s{sROT}, s{sROT}, s{sT1}")
            a.I(f"s_mul_i32 s{sT1}, s{sX}, {cx}"); a.I(f"s_add_u32 s{sROT}, s{sROT}, s{sT1}"); a.I(f"s_and_b32 s{sROT}, s{sROT}, 15"); a.I(f"s_lshl_b32 s{sROT}, s{sROT}, 12")
        a.I(f"s_mul_i32 s{sWB}, s{sW}, {WAREA}"); a.I(f"s_add_u32 s{sWB}, s{sWB}, {WBASE0}")
        a.I(f"s_mov_b32 s{rK+2}, {(15 * TS + 4096)}"); a.I(f"s_mov_b32 s{rK+3}, 0x20000")
        a.I("s_waitcnt lgkmcnt(0)")
        if "karg" in o.get("stamps", []): a.I("s_memrealtime s[10:11]")
        a.I(f"s_add_u32 s{rK}, s78, s{sT0}"); a.I(f"s_addc_u32 s{rK+1}, s79, 0")
        kid = {}
        nothr = {t for t in range(16) if (o.get("nqm", 0x30) >> t) & 1}
        def ktile(t):
            if t >= 6: a.I("s_waitcnt lgkmcnt(4)")
            a.I(f"s_add_u32 s{sT1}, s{sROT}, {t*TS}"); a.I(f"s_and_b32 s{sT1}, s{sT1}, {TM}")
            for q in range(4):
                if t >= 2 and t not in nothr: self.thr("tk")
                a.I(f"s_add_u32 m0, s{sWB}, {V_OFF + (t % 6) * 4096 + q * 1024}")
                kid[t] = a.I(f"buffer_load_dwordx4 v{KD+q}, {S(rK)}, s{sT1} offen{KV} lds")
        def kread(t):
            a.wvm(kid[t])
            for j in range(4): a.I(f"ds_read_b128 {Ar(16*t+4*j)}, v{KR+j} offset:{V_OFF + (t % 6) * 4096}")
        ktile(0)
        NI = o.get("ni", 1)
        nothr |= set(range(NI))
        a.I(f"s_load_dword s{sXCC}, s[100:101], {EPO}")
        for t in range(1, NI): ktile(t)
        a.I(f"s_add_u32 s{rV}, s80, s{sT0}"); a.I(f"s_addc_u32 s{rV+1}, s81, 0")
        wsz = WS_BYTES
        for r, sz in ((rV, 15 * TS + 4096), (rWQ, 1 << 22), (rWO, 1 << 22), (rW1, 512 * 2752), (rW2, 1376 * 1024), (rWS, wsz), (rT, 2048), (rOUT, 2048)):
            a.I(f"s_mov_b32 s{r+2}, {sz}"); a.I(f"s_mov_b32 s{r+3}, 0x20000")
        for r, p in ((rWS, 100), (rT, 76), (rWQ, 82), (rWO, 84), (rW1, 88), (rW2, 92), (rOUT, 96)):
            a.I(f"s_mov_b64 s[{r}:{r+1}], s[{p}:{p+1}]")
        self.only_w0("L_noclear")
        for r in range(4): a.I(f"v_mov_b32 v{32+r}, -1")
        a.I(f"s_lshl_b32 s{sT1}, s2, 11")
        a.I(f"buffer_store_dwordx4 {V(32)}, v{vVO}, {S(rWS)}, s{sT1} offen sc1")
        clr = a.I(f"buffer_store_dwordx4 {V(32)}, v{vVO}, {S(rWS)}, s{sT1} offen offset:1024 sc1")
        if o.get("late"):
            a.I(f"s_lshl_b32 s{sT1}, s{sX}, 5"); a.I(f"s_add_u32 s{sT1}, s{sT1}, s{sI}"); a.I(f"s_lshl_b32 s{sT1}, s{sT1}, 2"); a.I(f"s_add_u32 s{sT1}, s{sT1}, {TOK + 1024}")
            a.I("v_mov_b32 v36, s70"); a.I("s_mov_b64 exec, 1")
            clr = a.I(f"buffer_store_dword v36, v{vVO}, {S(rWS)}, s{sT1} offen sc1")
            a.I("s_mov_b64 exec, -1")
        self.end_cond("L_noclear")
        a.I("v_bfe_u32 v30, v0, 3, 2"); a.I("v_lshrrev_b32 v31, 5, v0"); a.I("v_lshl_add_u32 v30, v30, 1, v31")
        a.I("v_bfe_u32 v31, v0, 1, 2"); a.I("v_lshl_add_u32 v30, v30, 2, v31")
        a.I("v_and_b32 v31, 1, v0"); a.I("v_lshlrev_b32 v31, 4, v31")
        self.mad(WD, 30, 8192, 31); self.mad(WD + 1, 30, 1024, 31); self.mad(WD + 2, 30, 2752, 31)
        a.I(f"s_lshl_b32 s{sT0}, s{sW}, 20"); a.I(f"s_lshl_b32 s{sT1}, s{sX}, 10"); a.I(f"s_add_u32 s{sT0}, s{sT0}, s{sT1}")
        a.I(f"s_lshl_b32 s{sT1}, s{sI}, 5"); a.I(f"s_add_u32 s{sP0}, s{sT0}, s{sT1}")
        def wdma(voff, srd, sbase, goff, lds_expr):
            if goff: a.I(f"s_add_u32 s{sT0}, s{sbase}, {goff}"); sb = sT0
            else: sb = sbase
            a.I(lds_expr)
            if (o.get("nowq") and srd == rWQ) or (o.get("nowo") and srd == rWO): return xid0[0]
            return a.I(f"buffer_load_dwordx4 v{voff}, {S(srd)}, s{sb} offen{WP} lds")
        xid0 = [kid[0]]
        wq = lambda j: wdma(WD, rWQ, sP0, j * 32 * 8192, f"s_add_u32 m0, s{sWB}, {WQ_OFF + j*1024}")
        wqid = [wq(0)]
        a.I(f"v_bfe_u32 v30, v0, 4, 1")
        a.I(f"v_lshlrev_b32 v31, 1, v{vn}")
        self.mad(vPX, 30, 1024, 31); self.mad(vPH, 30, 384, 31)
        a.I("v_bfe_u32 v32, v0, 2, 2"); a.I("v_bfe_u32 v33, v0, 1, 1"); a.I("v_lshl_add_u32 v32, v33, 2, v32"); a.I("v_lshlrev_b32 v32, 2, v32")
        self.mad(vPQ, 30, 256, 32)
        a.I(f"v_add_u32 v{vR2}, v31, v30"); a.I(f"v_lshlrev_b32 v{vR2}, 2, v{vR2}")
        a.I(f"v_mul_u32_u24 v{vSQ}, 272, v30"); a.I(f"v_lshlrev_b32 v{vSM}, 4, v30"); a.I(f"v_lshlrev_b32 v{vCS}, 4, v{vn}")
        a.I(f"v_and_b32 v32, 3, v0"); a.I(f"v_lshl_add_u32 v32, v30, 2, v32"); a.I(f"v_lshlrev_b32 v{vMLG}, {self.mls}, v32")
        a.I("v_bfe_u32 v32, v0, 1, 3"); a.I(f"v_lshl_add_u32 v32, v32, 2, v{vg}"); a.I("v_lshlrev_b32 v32, 4, v32"); a.I("v_and_b32 v33, 1, v0")
        self.mad(vXG, 33, 1024, 32); self.mad(vHG, 33, 384, 32)
        for r in range(8): a.I(f"v_mov_b32 v{36 + r}, 0x3f803f80")
        a.I(f"v_cmp_gt_u32 {mN8}, 8, v{vn}"); a.I(f"v_cmp_gt_u32 {mN4}, 4, v{vn}")
        a.I(f"s_mov_b64 {mFULL}, -1")
        a.I(f"s_add_u32 s{sJ}, s{sI}, {o.get('rj', 8)}"); a.I(f"s_and_b32 s{sJ}, s{sJ}, 31")
        a.I(f"s_add_u32 s{sJ2}, s{sI}, {o.get('rj2', 16)}"); a.I(f"s_and_b32 s{sJ2}, s{sJ2}, 31")
        a.I(f"s_lshl_b32 s{sT0}, s{sW}, 8")
        a.I(f"s_mov_b64 exec, {mN8}")
        xid = a.I(f"buffer_load_dwordx4 {V(36)}, v{vXG}, {S(rT)}, s{sT0} offen")
        a.I(f"s_mov_b64 exec, {mFULL}")
        a.I(f"s_sub_u32 s{sT0}, s{sI}, 11"); a.I(f"s_cmp_lt_u32 s{sI}, 16"); a.I(f"s_cselect_b32 s{sJR}, s{sI}, s{sT0}")
        a.I(f"s_mul_i32 s{sT0}, s{sW}, 21"); a.I(f"s_add_u32 s{sJR}, s{sJR}, s{sT0}")
        a.I(f"s_sub_u32 s{sT0}, s{sI}, 16"); a.I(f"s_cmp_lt_u32 s{sT0}, 11"); a.I(f"s_cselect_b32 s{sJR}, 63, s{sJR}")
        a.I(f"s_lshl_b32 s{sYR}, s{sJR}, 10"); a.I(f"s_add_u32 s{sYR}, s{sYR}, {YP}")
        a.I(f"s_lshl_b32 s{sT0}, s{sJR}, 5")
        a.I(f"buffer_load_ushort v{vXR}, v{vPX}, {S(rT)}, s{sT0} offen")
        a.I(f"s_mov_b64 s[{rT}:{rT+1}], s[94:95]"); a.I(f"s_mov_b32 s{rT+2}, 1024")
        a.I(f"buffer_load_ushort v{vB2}, v31, {S(rT)}, s{sT0} offen")
        a.I(f"s_mul_i32 s{sP1}, s{sX}, 11"); a.I(f"s_max_u32 s{sT0}, s{sX}, 6"); a.I(f"s_sub_u32 s{sT0}, s{sT0}, 6"); a.I(f"s_sub_u32 s{sP1}, s{sP1}, s{sT0}")
        a.I(f"s_sub_u32 s{sP2}, s{sI}, {HCU0}")
        a.I(f"s_cmp_lt_u32 s{sX}, 6"); a.I(f"s_cselect_b32 s{sT0}, 11, 10")
        a.I(f"s_cselect_b32 s34, 0x0fff0fff, 0x03ff03ff") if False else None
        a.I("s_mov_b32 s35, 0x03ff03ff"); a.I("s_cselect_b32 s34, 0x0fff0fff, s35")
        a.I(f"s_cmp_lt_u32 s{sP2}, s{sT0}"); a.I(f"s_cselect_b32 s{sHCU}, 1, 0")
        a.I(f"s_add_u32 s{sP3}, s{sP1}, s{sP2}"); a.I(f"s_lshl_b32 s{sP3}, s{sP3}, 5")
        a.I(f"s_mov_b64 s[{rT}:{rT+1}], s[90:91]"); a.I(f"s_mov_b32 s{rT+2}, 2752")
        bid = a.I(f"buffer_load_ushort v{vB1}, v31, {S(rT)}, s{sP3} offen")
        if NI < 2: ktile(1)
        wqid.append(wq(1))
        if o.get("stamps"):
            for k in range(12): a.I(f"s_mov_b32 s{90+k}, 0")
            for k, x in enumerate(o["stamps"]):
                if x == "start": a.I(f"s_mov_b32 s{90+k}, s8")
        a.I(f"s_lshr_b32 s{sT0}, s{sI}, 2"); a.I(f"s_cmp_eq_u32 s{sT0}, 3"); a.I(f"s_cselect_b32 s{sBUR}, 1, 0")
        a.I(f"s_lshr_b32 s{sT0}, s{sJ}, 2"); a.I(f"s_cmp_eq_u32 s{sT0}, 3"); a.I(f"s_cselect_b32 s{sBUR}, 1, s{sBUR}")
        if o.get("bur2", 0):
            a.I(f"s_lshr_b32 s{sT0}, s{sJ2}, 2"); a.I(f"s_cmp_eq_u32 s{sT0}, 3"); a.I(f"s_cselect_b32 s{sBUR}, 1, s{sBUR}")
        a.I("v_and_b32 v32, 7, v0"); a.I("v_bfe_u32 v33, v0, 3, 1"); a.I("v_lshl_add_u32 v32, v32, 2, v33")
        a.I(f"v_lshl_add_u32 v32, v32, 2, v{vg}"); a.I(f"v_lshlrev_b32 v{vAPG}, 4, v32")
        a.I("v_bfe_u32 v32, v0, 1, 1"); a.I(f"v_lshl_add_u32 v32, v32, 2, v{vg}"); a.I("v_and_b32 v33, 1, v0"); a.I("v_lshl_add_u32 v32, v32, 1, v33"); a.I(f"v_lshlrev_b32 v{vQG}, 4, v32")
        a.I(f"v_mov_b32 v34, 0xeeee"); a.I(f"v_mov_b32 v35, 0x4444"); a.I("v_cmp_eq_u32 vcc, 1, v33"); a.I(f"v_cndmask_b32 v{vIDX}, v35, v34, vcc")
        a.I(f"v_cmp_gt_u32 vcc, 2, v{vn}"); a.I(f"v_cndmask_b32 v{vM01}, 0, -1, vcc")
        a.I(f"s_lshl_b32 s{sT0}, s{sW}, 9"); a.I(f"s_add_u32 s{sT0}, s{sT0}, {P_LDS}")
        a.I(f"v_lshl_add_u32 v32, v{vg}, 1, v33"); a.I(f"v_lshl_add_u32 v{vPR}, v32, 4, s{sT0}")
        a.I("v_lshrrev_b32 v32, 5, v0"); a.I("v_bfe_u32 v34, v0, 4, 1"); a.I("v_lshl_add_u32 v32, v32, 1, v34")
        a.I("v_bfe_u32 v34, v0, 1, 1"); a.I("v_lshl_add_u32 v32, v32, 1, v34")
        a.I("v_bfe_u32 v34, v0, 2, 1"); a.I("v_lshl_add_u32 v32, v32, 1, v34")
        a.I("v_lshl_add_u32 v32, v32, 1, v33")
        a.I("v_bfe_u32 v34, v0, 3, 1"); a.I("v_lshl_add_u32 v32, v32, 1, v34")
        a.I(f"v_lshl_add_u32 v{vPW}, v32, 2, s{sT0}")
        a.I(f"v_lshlrev_b32 v{vL4}, 2, v0"); a.I(f"v_lshlrev_b32 v{vL8}, 3, v0")
        a.I(f"s_lshl_b32 s{sT0}, s{sW}, 2"); a.I(f"v_lshl_add_u32 v{vRW}, v0, 4, s{sT0}")
        a.I(f"s_lshl_b32 s{sT0}, s{sW}, 9"); a.I(f"v_lshl_add_u32 v{vAW}, v0, 5, s{sT0}")
        a.I(f"v_lshl_add_u32 v{vTR}, v0, 3, s{sWB}"); a.I(f"v_lshl_add_u32 v{vLV}, v0, 4, s{sWB}")
        a.I(f"v_lshlrev_b32 v32, 8, v{vn}"); a.I(f"v_add_u32 v32, s{sWB}, v32")
        a.I(f"v_xor_b32 v33, v{vg}, v{vn}")
        for j in range(4):
            a.I(f"v_xor_b32 v34, {4*j}, v33"); a.I(f"v_lshl_add_u32 v{KR+j}, v34, 4, v32")
        a.I(f"s_getreg_b32 s{sT0}, hwreg(HW_REG_XCC_ID, 0, 4)")
        a.I("s_waitcnt lgkmcnt(0)")
        if "karg" in o.get("stamps", []): a.I(f"s_mov_b32 s{90 + o['stamps'].index('karg')}, s10")
        self.stamp("epo")
        a.I(f"s_and_b32 s{sXCC}, s{sXCC}, -16"); a.I(f"s_add_u32 s{sXCC}, s{sXCC}, 16"); a.I(f"s_or_b32 s{sXCC}, s{sXCC}, s{sT0}")
        self.only_w0("L_noflag")
        a.I(f"s_lshl_b32 s{sT0}, s{sX}, 7"); a.I(f"s_lshl_b32 s{sT1}, s{sI}, 2"); a.I(f"s_add_u32 s{sT0}, s{sT0}, s{sT1}"); a.I(f"s_add_u32 s{sT0}, s{sT0}, {TOK}")
        a.I(f"v_mov_b32 v32, s{sXCC}")
        a.wvm(clr)
        a.I("s_mov_b64 exec, 1")
        a.I(f"buffer_store_dword v32, v{vL4}, {S(rWS)}, s{sT0} offen sc1")

        a.I(f"s_mov_b64 exec, {mFULL}")
        self.end_cond("L_noflag")
        self.stamp("tok")
        a.I(f"s_mov_b32 s{sC}, {f2u(math.log2(math.e) / math.sqrt(128.0))}")
        k1 = -2.0 * math.sqrt(2.0 / math.pi) * math.log2(math.e)
        a.I(f"s_mov_b32 s{sK1}, {f2u(k1)}"); a.I(f"s_mov_b32 s{sK2}, {f2u(k1 * 0.044715)}")
        a.I(f"s_mov_b32 s{sINV}, {f2u(1.0 / 512)}"); a.I(f"s_mov_b32 s{sEPS}, {f2u(1e-5)}")
        a.I(f"s_mov_b32 s{sPLO}, 0x05040100"); a.I(f"s_mov_b32 s{sPHI}, 0x07060302")
        a.I("s_mov_b32 s22, -1"); a.I("s_mov_b32 s23, 0"); a.I("s_mov_b32 s24, 0x55555555"); a.I("s_mov_b32 s25, 0")
        a.I("s_mov_b32 s30, 0xffff"); a.I("s_mov_b32 s31, 0xffff"); a.I("s_mov_b64 s[32:33], 1")
        a.I("s_mov_b32 s76, 0xffff"); a.I("s_mov_b32 s77, 0")
        a.I(f"s_mul_i32 s{sREG}, s{sX}, {2*REGION}")
        a.I(f"s_lshl_b32 s{sYP}, s{sJ}, 10"); a.I(f"s_add_u32 s{sYP}, s{sYP}, {YP}")
        a.I(f"s_mov_b32 s{sPASS}, 0"); a.I(f"s_mov_b32 s{sCNT}, {o.get('timeout', 400000)}"); a.I(f"s_mov_b32 s{sMODE}, 1")
        D = o.get("kd", 2)
        def kstep(t):
            if t >= NI: ktile(t)
            if t - D >= 0: kread(t - D)
        if D == 1: kread(0)
        kstep(2); self.stamp("k0"); wqid.append(wq(2))
        kstep(3); self.stamp("k1"); wqid.append(wq(3))
        a.I(f"s_lshl_b32 s{sT0}, s{sX}, 19"); a.I(f"s_lshl_b32 s{sT1}, s{sW}, 17"); a.I(f"s_add_u32 s{sT0}, s{sT0}, s{sT1}")
        a.I(f"s_lshl_b32 s{sT1}, s{sJ}, 5"); a.I(f"s_add_u32 s{sP0}, s{sT0}, s{sT1}")
        a.I(f"s_mov_b32 s68, s{sP0}")
        wo_ = lambda j, vo=WD + 1: wdma(vo, rWO, 68, j * 32 * 1024, f"s_add_u32 m0, s{sWB}, {WO_OFF + j*1024}")
        wo = (lambda j: None) if o.get("wolate") else wo_
        kstep(4); self.stamp("k2"); wo(0)
        kstep(5)
        a.C("Q1"); self.stamp("q1in")
        a.wvm([bid, xid] + wqid)
        a.I(f"v_lshlrev_b32 v{vXR}, 16, v{vXR}"); a.I(f"v_lshlrev_b32 v{vB1}, 16, v{vB1}"); a.I(f"v_lshlrev_b32 v{vB2}, 16, v{vB2}")
        for r in range(8): a.I(f"v_mov_b32 v{self.XA + r}, v{36 + r}")
        if o.get("tok", 2) == 1:
            self.only_w0("L_tk0"); a.I("v_mov_b32 v60, 0"); a.I(f"ds_write_b32 v60, v60 offset:{ML_LDS + 64}"); self.end_cond("L_tk0")
        self.ln_prep(WQ_OFF, preset=False)
        self.ln_mm()
        self.only_w0("L_q1nf")
        self.ln_finish()
        a.I("v_mul_f32 v60, v60, v68")
        self.pack_pub(60, 27)
        self.end_cond("L_q1nf")
        self.stamp("q1done")
        kstep(6); wo(1)
        a.C("flags check")
        def flagchk():
            for r in range(4): a.I(f"v_xor_b32 v{28+r}, s{sXCC}, v{28+r}")
            a.I("v_or3_b32 v28, v28, v29, v30"); a.I("v_or_b32 v28, v28, v31")
            a.I("v_cmp_lt_u32 vcc, 15, v28")
        a.I(f"s_mov_b32 s{sP2}, {TOK}")
        fins = f"buffer_load_dwordx4 {V(28)}, v{vL16}, {S(rWS)}, s{sP2} offen sc1"
        tk = o.get("tok", 2)
        if tk == 0:
            kstep(7); a.I(f"s_mov_b32 s{sMODE}, 0")
        else:
            if tk == 1:
                self.only_w0("L_tk1"); fid = a.I(fins); self.end_cond("L_tk1")
                kstep(7)
                self.only_w0("L_tk2")
            else:
                fid = a.I(fins)
                kstep(7)
            a.wvm(fid); flagchk()
            a.I("s_cbranch_vccz L_flagok")
            a.L("L_flagpoll"); a.cond += 1
            a.I("s_sleep 8")
            a.I(fins); a.I(f"s_sub_u32 s{sCNT}, s{sCNT}, 1"); a.I("s_cbranch_scc1 L_abort")
            a.wvm0(); flagchk(); a.I("s_cbranch_vccnz L_flagpoll")
            self.end_cond("L_flagok")
            a.I("v_cmp_ne_u32 vcc, 0, v28")
            a.I(f"s_lshl_b32 s{sT0}, s{sX}, 3"); a.I(f"s_nop 0"); a.I(f"s_lshr_b64 vcc, vcc, s{sT0}"); a.I(f"s_and_b32 s{sMODE}, vcc_lo, 0xff")
            if o.get("late"): tid = a.I(f"buffer_load_dword v32, v{vL16}, {S(rWS)}, s{sP2} offen offset:1024 sc1")
            if tk == 1:
                a.I("v_mov_b32 v28, 1"); a.I("v_mov_b32 v29, 0")
                a.I(f"ds_write_b32 v29, v28 offset:{ML_LDS + 64}")
                self.end_cond("L_tk2")
        self.stamp("flagok")
        if o.get("force_slow"): a.I(f"s_mov_b32 s{sMODE}, 1")
        self.only_w0("L_q1np")
        self.q_soff()
        self.q_publish(27)
        self.end_cond("L_q1np")
        kstep(8); wo(2)
        kstep(9); wo(3)
        if o.get("late"):
            a.wvm(tid)
            a.I("v_subrev_u32 v32, s70, v32")
            a.I(f"v_cmp_gt_i32 vcc, {-o['late']}, v32")
            a.I(f"s_nop 1")
            a.I(f"s_bcnt1_i32_b64 s{sT0}, vcc"); a.I(f"s_cmp_gt_u32 s{sT0}, {o.get('latec', 28)}"); a.I(f"s_cselect_b32 s{sBUR}, 1, s{sBUR}")
        a.I(f"s_lshl_b32 s{sT0}, s{sP1}, 14"); a.I(f"s_lshl_b32 s{sT1}, s{sW}, 16"); a.I(f"s_add_u32 s{sT0}, s{sT0}, s{sT1}")
        a.I(f"s_lshl_b32 s{sT1}, s{sJ2}, 5"); a.I(f"s_add_u32 s{sP0}, s{sT0}, s{sT1}")
        a.I(f"s_mov_b32 s{sW2B}, s{sP0}")
        a.I(f"s_mul_i32 s{sT0}, s{sW}, {128*2752}"); a.I(f"s_add_u32 s{sW1B}, s{sT0}, s{sP3}")
        self.wdma = wdma; self.WD = WD
        for t in range(10, 16): kstep(t)
        def prewarm():
            a.I("v_lshrrev_b32 v52, 2, v0"); a.I("v_and_b32 v53, 3, v0"); a.I("v_lshlrev_b32 v53, 7, v53"); a.I("v_min_u32 v53, 348, v53")
            self.mad(52, 52, 2752, 53)
            a.I(f"s_lshl_b32 s{sT0}, s{sI}, 2"); a.I(f"s_add_u32 s{sT0}, s{sT0}, s{sW}")
            a.I(f"s_mul_i32 s{sT1}, s{sT0}, {4*2752}"); a.I(f"s_lshl_b32 s{sT2}, s{sT0W}, 5"); a.I(f"s_add_u32 s{sT1}, s{sT1}, s{sT2}")
            a.I(f"s_mov_b64 exec, {mLO16}")
            a.I(f"buffer_load_dword v27, v52, {S(rW1)}, s{sT1} offen")
            a.I(f"s_mul_i32 s{sT1}, s{sT0}, {12*128}"); a.I(f"s_lshl_b32 s{sT2}, s{sT0W}, 14"); a.I(f"s_add_u32 s{sT1}, s{sT1}, s{sT2}")
            a.I("v_lshlrev_b32 v52, 7, v0")
            a.I("s_mov_b64 exec, 0xfff")
            a.I(f"buffer_load_dword v27, v52, {S(rW2)}, s{sT1} offen")
            if o.get("pt", 1):
                a.I(f"s_mul_i32 s{sT1}, s{sT0}, {3*128}"); a.I(f"s_add_u32 s{sT1}, s{sT1}, s{sREG}")
                a.I("s_mov_b64 exec, 7")
                a.I(f"buffer_load_dword v27, v52, {S(rWS)}, s{sT1} offen sc1")
            if o.get("ptc", 0):
                pol = ["", " sc1"][o.get("ptc") - 1]
                a.I(f"s_mov_b64 exec, {mFULL}")
                self.only_w0("L_ptc")
                a.I("v_lshlrev_b32 v52, 15, v0"); a.I("s_mov_b64 exec, 3")
                a.I(f"s_lshl_b32 s{sT2}, s{sX}, 7"); a.I(f"s_add_u32 s{sT1}, s{sYP}, s{sT2}")
                a.I(f"buffer_load_dword v27, v52, {S(rWS)}, s{sT1} offen{pol}")
                a.I(f"s_lshl_b32 s{sT1}, s{sJ2}, 10"); a.I(f"s_add_u32 s{sT1}, s{sT1}, s{sT2}"); a.I(f"s_add_u32 s{sT1}, s{sT1}, {YP2}")
                a.I(f"buffer_load_dword v27, v52, {S(rWS)}, s{sT1} offen{pol}")
                self.end_cond("L_ptc")
            a.I(f"s_mov_b64 exec, {mFULL}")
        vid = {}
        def vload(sg, k):
            h, x, b = (k >> 3, k & 3, (k >> 2) & 1) if o.get("vord", 0) else (k >> 3, (k >> 1) & 3, k & 1)
            if k % 8 == 0:
                for bb in range(2):
                    a.I(f"s_add_u32 s{sT1}, s{sROT}, {(4*sg + 2*h + bb)*TS}"); a.I(f"s_and_b32 s{(sP0, sP2)[bb]}, s{sT1}, {TM}")
            if not (sg == 0 and k < o.get("v0n", 0)): self.thr("tv", steer=(sg > 0) if o.get("dyn") else (o.get("ssg", 15) >> sg) & 1)
            vid[(sg, k)] = a.I(f"buffer_load_dwordx4 {V(sgblk(sg) + 8*(2*x + b) + 4*h)}, v{vVO}, {S(rV)}, s{(sP0, sP2)[b]} offen offset:{x*1024}{KV}")
        a.C("q1 gather")
        if o.get("tok", 2) == 1:
            a.I("v_mov_b32 v29, 0")
            a.L("L_tkw")
            a.I(f"ds_read_b32 v28, v29 offset:{ML_LDS + 64}")
            a.I(f"s_sub_u32 s{sCNT}, s{sCNT}, 1"); a.I("s_cbranch_scc1 L_abort")
            a.wlg0(); a.I("v_cmp_ne_u32 vcc, 1, v28"); a.I("s_cbranch_vccnz L_tkw")
        for r in range(4): a.I(f"v_mov_b32 v{QC + r}, 0")
        a.I(f"s_lshr_b32 s{sP3}, s{sI}, 2"); a.I(f"s_lshl_b32 s{sP3}, s{sP3}, 8"); a.I(f"s_add_u32 s{sP3}, s{sP3}, s{sREG}")
        qins = f"buffer_load_dwordx4 {V(QC)}, v{vQG}, {S(rWS)}, s{sP3} offen sc1"
        a.I(f"s_mov_b64 exec, {mN4}"); qid = a.I(qins); a.I(f"s_mov_b64 exec, {mFULL}")
        for k in range(3): vload(0, k)
        kread(14)
        for k in range(3, 6): vload(0, k)
        kread(15)
        self.qk_prep(qc=False)
        a.wvm(qid)
        self.check(range(QC, QC + 4), 32)
        a.I("s_cbranch_vccz L_q1ok"); a.cond += 1
        self.poll([(mN4, qins)], range(QC, QC + 4), 32)
        self.end_cond("L_q1ok")
        self.stamp("q1ok")
        vload(0, 6)
        a.wlg0()
        def qksm(p):
            self.qk()
            ids, lsum = self.softmax(False)
            for x in lsum: p.I(x)
            self.l_write()
        l0 = [lambda k=k: vload(0, k) for k in range(7, 16)]
        if o.get("dyn"):
            f0 = l0[6]; l0[6] = lambda: (f0(), self.pl0())
        self.l0 = l0; self.qksm = qksm
        self.stamp("sm1")
        def proc(sg):
            def fn(p):
                blk = sgblk(sg)
                p.wvm(lambda: vid[(sg, 7)])
                self.perm_half(blk, 0)
                p.wvm(lambda: vid[(sg, 15)])
                self.perm_half(blk, 1)
                if sg == 0: p.wlg0()
                for e in range(8): p.I(f"{SMF} {V(ACC + 4*e)}, {V(PA + 4*sg)}, {V(blk + 8*e, 8)}, v{vIDX}")
                if sg < 2:
                    for e in range(8 if sg == 0 else 4):
                        for hh in range(2):
                            p.I(f"ds_write_b128 v{vLV}, {V(blk + 8*e + 4*hh)} offset:{V_OFF + (16*sg + 2*e + hh)*1024}")
                    if sg == 1:
                        for r in range(32): p.I(f"v_mov_b32 v{HF + r}, v{blk + 32 + r}")
                    p.wlg0()
            return self.rec(fn)
        DY = o.get("dyn", 0)
        pid = {}
        def ckpt(c):
            a.I("s_memrealtime s[70:71]")
            a.I(f"s_lshl_b32 s69, s{sW}, 7"); a.I(f"s_add_u32 s69, s69, s{sREG}"); a.I(f"s_add_u32 s69, s69, {20480 + c * 512}")
            a.I(f"s_lshl_b32 s{sT0}, s{sI}, 2"); a.I(f"s_add_u32 s{sT0}, s{sT0}, s69")
            a.I("s_waitcnt lgkmcnt(0)")
            a.I("s_and_b32 s70, s70, 0x7fffffff")
            a.I("v_mov_b32 v27, s70"); a.I("s_mov_b64 exec, 1")
            a.I(f"buffer_store_dword v27, v{vL4}, {S(rWS)}, s{sT0} offen")
            a.I(f"s_mov_b64 exec, {mFULL}")
        def pload(c):
            a.I(f"s_mov_b64 exec, {mLO32}")
            pid[c] = a.I(f"buffer_load_dword v47, v{vL4}, {S(rWS)}, s69 offen sc1")
            a.I(f"s_mov_b64 exec, {mFULL}")
        def peval(c):
            a.wvm(pid[c])
            a.I(f"s_sub_u32 s71, s70, {DY}")
            a.I("v_cmp_gt_u32 vcc, s71, v47")
            a.I(f"s_mov_b32 s{sT0}, s{sBST}" if (o.get("ssg", 15) >> (c + 1)) & 1 else f"s_mov_b32 s{sT0}, 0"); a.I("s_nop 0")
            a.I(f"s_bcnt1_i32_b32 s71, vcc_lo"); a.I(f"s_cmp_gt_u32 s71, {o.get('dync', 16)}"); a.I(f"s_cselect_b32 s{sBUR}, 1, s{sT0}")
        self.pl0 = lambda: pload(0)
        if DY: a.I(f"s_mov_b32 s{sBST}, s{sBUR}"); ckpt(0)
        self.interleave(self.l0, self.rec(self.qksm))
        for sg in range(3):
            lds = [lambda k=k: vload(sg + 1, k) for k in range(16)]
            if DY:
                peval(sg)
                if sg < 2:
                    ckpt(sg + 1)
                    f = lds[10]; lds[10] = (lambda f=f, c=sg + 1: (f(), pload(c)))
            if o.get("dmae", 0) == 4 and sg == o.get("dsg", 1):
                t = 44
                a.I(f"v_bfe_u32 v{t}, v0, 3, 2"); a.I(f"v_lshrrev_b32 v{t+1}, 5, v0"); a.I(f"v_lshl_add_u32 v{t}, v{t}, 1, v{t+1}")
                a.I(f"v_bfe_u32 v{t+1}, v0, 1, 2"); a.I(f"v_lshl_add_u32 v{t}, v{t}, 2, v{t+1}")
                a.I(f"v_and_b32 v{t+1}, 1, v0"); a.I(f"v_lshlrev_b32 v{t+1}, 4, v{t+1}")
                self.mad(t + 2, t, 1024, t + 1); self.mad(t + 3, t, 2752, t + 1)
                a.I(f"s_lshl_b32 s69, s{sW}, 11")
                def d1(j):
                    l = self.nl("nw1")
                    a.I(f"s_cmp_eq_u32 s{sHCU}, 0"); a.I(f"s_cbranch_scc1 {l}"); a.cond += 1
                    self.wdma(t + 3, rW1, sW1B, j * 32 * 2752, f"s_add_u32 m0, s{sWB}, {W1_OFF + j*1024}")
                    self.end_cond(l)
                d2 = lambda j: self.wdma(t + 2, rW2, sW2B, j * 32 * 1024, f"s_add_u32 m0, s69, {W2_LDS + j*1024}")
                ex = {1: lambda: d1(0), 3: lambda: d2(0), 6: lambda: d1(1), 8: lambda: d1(2), 11: lambda: d2(1), 13: lambda: d1(3)}
                for k, fx in ex.items():
                    lds[k] = (lambda f=lds[k], fx=fx: (f(), fx()))
                self.tadd = o.get("tadd", 2)
            self.interleave(lds, proc(sg))
            self.tadd = 0
            if o.get("dmae", 0) and sg == o.get("pwsg", 1): prewarm()
        if o.get("wolate"):
            a.I("v_bfe_u32 v52, v0, 3, 2"); a.I("v_lshrrev_b32 v53, 5, v0"); a.I("v_lshl_add_u32 v52, v52, 1, v53")
            a.I("v_bfe_u32 v53, v0, 1, 2"); a.I("v_lshl_add_u32 v52, v52, 2, v53")
            a.I("v_and_b32 v53, 1, v0"); a.I("v_lshlrev_b32 v53, 4, v53")
            self.mad(52, 52, 1024, 53)
            for j in range(4): wo_(j, 52)
        if o.get("dmae", 0) == 1: self.w12dma(44)
        elif not o.get("dmae", 0): prewarm()
        for sg in range(3, 4):
            blk = sgblk(sg)
            self.stamp("g6done")
            a.wlg0(); self.barrier()
            if o.get("dmae", 0) == 2: self.w12dma(44)
            fr = self.f_read()
            a.wvm(vid[(sg, 7)])
            self.perm_half(blk, 0)
            a.wlg(fr)
            for x in self.f_calc(): a.I(x)
            smf = lambda e: a.I(f"{SMF} {V(ACC + 4*e)}, {V(PA + 4*sg)}, {V(blk + 8*e, 8)}, v{vIDX}")
            if sg == 3 and o.get("fastlast", 1):
                R = lambda r, d: blk + 8 * r + 4 + d
                lo = lambda dst, x, y: a.I(f"v_perm_b32 v{dst}, v{y}, v{x}, s{sPLO}")
                hi = lambda dst, x, y: a.I(f"v_perm_b32 v{dst}, v{y}, v{x}, s{sPHI}")
                a.wvm(vid[(sg, 14 if o.get("vord", 0) else 13)])
                for p in range(3):
                    x, y = R(2*p, p), R(2*p+1, p)
                    lo(54, x, y); hi(y, x, y); a.I(f"v_mov_b32 v{x}, v54")
                    lo(44 + p, R(2*p, 3), R(2*p+1, 3)); hi(48 + p, R(2*p, 3), R(2*p+1, 3))
                for p in range(3):
                    for d in range(p + 1, 3):
                        ax, ay = R(2*p, d), R(2*p+1, d); bx, by = R(2*d, p), R(2*d+1, p)
                        lo(54, ax, ay); hi(55, ax, ay); lo(ax, bx, by); hi(ay, bx, by)
                        a.I(f"v_mov_b32 v{bx}, v54"); a.I(f"v_mov_b32 v{by}, v55")
                if o.get("dmae", 0) == 3: self.w12dma(24 + 28)
                a.wvm(vid[(sg, 15)])
                self.stamp("vlast")
                lo(R(0, 3), R(6, 0), R(7, 0)); hi(R(1, 3), R(6, 0), R(7, 0))
                lo(R(2, 3), R(6, 1), R(7, 1)); hi(R(3, 3), R(6, 1), R(7, 1))
                smf(0)
                lo(R(4, 3), R(6, 2), R(7, 2)); hi(R(5, 3), R(6, 2), R(7, 2))
                smf(1)
                lo(47, R(6, 3), R(7, 3)); hi(R(7, 3), R(6, 3), R(7, 3))
                smf(2)
                a.I(f"v_mov_b32 v{R(6, 0)}, v44"); a.I(f"v_mov_b32 v{R(6, 1)}, v45")
                smf(3)
                a.I(f"v_mov_b32 v{R(6, 2)}, v46"); a.I(f"v_mov_b32 v{R(6, 3)}, v47")
                smf(4)
                a.I(f"v_mov_b32 v{R(7, 0)}, v48"); a.I(f"v_mov_b32 v{R(7, 1)}, v49")
                smf(5)
                a.I(f"v_mov_b32 v{R(7, 2)}, v50")
                smf(6); smf(7)
            else:
                a.wvm(vid[(sg, 15)])
                if sg == 3: self.stamp("vlast")
                self.perm_half(blk, 1)
                if sg == 0: a.wlg0()
                for e in range(8): smf(e)
        self.attn_out(wo=not o.get("wolate"))
        if o.get("pad"):
            a.I("s_branch L_fin"); a.raw(f".fill {o['pad'] // 4}, 4, 0xbf800000")
        self.tail()
        for ls, ins, ld in self.ool:
            a.L(ls)
            for x in ins: a.I(x)
            a.I(f"s_branch {ld}")
        for lr, l in self.ool2:
            a.L(lr); a.I(f"s_sleep {o['bo']}"); a.I(f"s_branch {l}")
        a.L("L_abort"); self.stamp_out(); a.L("L_exit"); a.I("s_endpgm")
        a.raw('.section .rodata,"a"'); a.raw(".p2align 6"); a.raw(f".amdhsa_kernel {KNAME}")
        for s in (".amdhsa_next_free_vgpr 512", ".amdhsa_next_free_sgpr 102", ".amdhsa_accum_offset 256", ".amdhsa_group_segment_fixed_size 0",
                  ".amdhsa_kernarg_size 104", ".amdhsa_user_sgpr_count 2", ".amdhsa_user_sgpr_kernarg_segment_ptr 1", ".amdhsa_system_sgpr_workgroup_id_x 1"):
            a.raw("  " + s)
        a.raw(".end_amdhsa_kernel")
        return a.text()

    def w12dma(self, t):
        a = self.a
        a.I(f"v_bfe_u32 v{t}, v0, 3, 2"); a.I(f"v_lshrrev_b32 v{t+1}, 5, v0"); a.I(f"v_lshl_add_u32 v{t}, v{t}, 1, v{t+1}")
        a.I(f"v_bfe_u32 v{t+1}, v0, 1, 2"); a.I(f"v_lshl_add_u32 v{t}, v{t}, 2, v{t+1}")
        a.I(f"v_and_b32 v{t+1}, 1, v0"); a.I(f"v_lshlrev_b32 v{t+1}, 4, v{t+1}")
        self.mad(t + 2, t, 1024, t + 1); self.mad(t + 3, t, 2752, t + 1)
        a.I(f"s_cmp_eq_u32 s{sHCU}, 0"); a.I("s_cbranch_scc1 L_now1"); a.cond += 1
        for j in range(4): self.wdma(t + 3, rW1, sW1B, j * 32 * 2752, f"s_add_u32 m0, s{sWB}, {W1_OFF + j*1024}")
        self.end_cond("L_now1")
        a.I(f"s_lshl_b32 s{sT1}, s{sW}, 11")
        for j in range(2): self.wdma(t + 2, rW2, sW2B, j * 32 * 1024, f"s_add_u32 m0, s{sT1}, {W2_LDS + j*1024}")
    def q_soff(self):
        a = self.a
        a.I(f"s_lshr_b32 s{sT0}, s{sI}, 3"); a.I(f"s_lshl_b32 s{sT0}, s{sT0}, 9")
        a.I(f"s_and_b32 s{sT1}, s{sI}, 7"); a.I(f"s_lshl_b32 s{sT1}, s{sT1}, 5")
        a.I(f"s_add_u32 s{sT0}, s{sT0}, s{sT1}"); a.I(f"s_add_u32 s{sT0}, s{sT0}, s{sREG}")
    def q_publish(self, pv):
        a = self.a
        a.I(f"s_mov_b64 exec, {mEVEN}")
        self.publish(f"buffer_store_dword v{pv}, v{vPQ}, {S(rWS)}, s{sT0} offen")
        a.I(f"s_mov_b64 exec, {mFULL}")

    def rstage(self, name, voff, ypoff, xs, addb2):
        a = self.a
        a.I(f"s_lshl_b32 s{sT1}, s{sJR}, 5"); a.I(f"s_add_u32 s{sT0}, s{sT1}, s{sREG}"); a.I(f"s_add_u32 s{sT0}, s{sT0}, {xs}")
        for r in range(8): a.I(f"v_mov_b32 v{80+r}, 0")
        if addb2: a.I(f"v_add_f32 v{vXR}, v{vXR}, v{vB2}")
        if ypoff: a.I(f"s_add_u32 s{sT2}, s{sYR}, {ypoff}"); sb = sT2
        else: sb = sYR
        self.sleep2("r2a", 11, "r2b", 6) if addb2 else self.sleep2("ra", 9, "rb", 8)
        self.poll([(mLO32, f"buffer_load_dword v{80+x}, v{voff}, {S(rWS)}, s{sb} offen offset:{x*128} {['sc1', 'sc1 nt', 'sc0 sc1', 'sc0 sc1 nt'][self.o.get('cpol', 0)]}") for x in range(8)], range(80, 88), 36,
                  depth=self.o.get("p_c", 1), gap=self.o.get("gapc", 3))
        self.stamp(name)
        a.I("v_pk_add_f32 v[88:89], v[80:81], v[82:83]"); a.I("v_pk_add_f32 v[90:91], v[84:85], v[86:87]")
        a.I(f"v_add_f32 v88, v88, v{vXR}")
        a.I("v_pk_add_f32 v[88:89], v[88:89], v[90:91]")
        a.I("v_add_f32 v88, v88, v89")
        self.pack_pub(88, 89)
        a.I(f"s_mov_b64 exec, {mEVEN}")
        if addb2:
            a.I(f"s_cmp_lg_u32 s{sPASS}, 0"); a.I("s_cbranch_scc1 L_final")
        self.publish(f"buffer_store_dword v89, v{vPX}, {S(rWS)}, s{sT0} offen")
        a.I(f"s_mov_b64 exec, {mFULL}")
        a.I(f"v_cvt_pk_bf16_f32 v{vXR}, v88, v88"); a.I(f"v_and_b32 v{vXR}, 0xffff0000, v{vXR}")

    def tail(self):
        a = self.a; o = self.o
        a.L("L_fin")
        a.C("attention finish"); self.stamp("fin")
        a.I(f"s_lshl_b32 s{sT0}, s{sI}, 8"); a.I(f"s_add_u32 s{sT0}, s{sT0}, s{sREG}"); a.I(f"s_add_u32 s{sT0}, s{sT0}, {AP}")
        a.I(f"s_lshl_b32 s{sT1}, s{sI}, {self.mls}"); a.I(f"s_add_u32 s{sT1}, s{sT1}, s{sREG}"); a.I(f"s_add_u32 s{sT1}, s{sT1}, 16384")
        a.wlg0(); self.barrier()
        self.only_w0("L_fin_done")
        ids = [a.I(f"ds_read_b64 {V(28+2*w, 2)}, v{vL8} offset:{w*512}") for w in range(2)]
        lid = a.I(f"ds_read_b128 {V(36)}, v62 offset:{ML_LDS + 16}")
        ids += [a.I(f"ds_read_b64 {V(28+2*w, 2)}, v{vL8} offset:{w*512}") for w in range(2, 4)]
        a.I(f"s_cmp_lg_u32 s{sMODE}, 0")
        a.wlg(ids[0])
        a.I(f"v_mul_f32 v28, v{F}, v28"); a.I(f"v_mul_f32 v29, v{F}, v29")
        a.wlg(ids[1])
        a.I(f"v_fmac_f32 v28, v{F+1}, v30"); a.I(f"v_fmac_f32 v29, v{F+1}, v31")
        a.wlg(lid)
        a.I(f"v_mul_f32 v{vL}, v{F}, v36"); a.I(f"v_fmac_f32 v{vL}, v{F+1}, v37")
        a.wlg(ids[2])
        a.I(f"v_fmac_f32 v28, v{F+2}, v32"); a.I(f"v_fmac_f32 v29, v{F+2}, v33"); a.I(f"v_fmac_f32 v{vL}, v{F+2}, v38")
        a.wlg(ids[3])
        a.I(f"v_fmac_f32 v28, v{F+3}, v34"); a.I(f"v_fmac_f32 v29, v{F+3}, v35"); a.I(f"v_fmac_f32 v{vL}, v{F+3}, v39")
        a.I("v_cvt_pk_bf16_f32 v28, v28, v29"); a.I(f"v_min_u32 v{vL}, -2, v{vL}"); a.I("v_min_u32 v28, -2, v28")
        self.publish([f"buffer_store_dword v28, v{vL4}, {S(rWS)}, s{sT0} offen", f"s_mov_b64 exec, {mL0}",
                      f"buffer_store_dwordx2 v[{vM}:{vL}], v{vL4}, {S(rWS)}, s{sT1} offen", f"s_mov_b64 exec, {mFULL}"], precmp=True)
        self.end_cond("L_fin_done")
        self.stamp("finpub")
        a.C("stage O")
        a.I(f"s_lshl_b32 s{sT0}, s{sW}, 11"); a.I(f"s_add_u32 s{sT0}, s{sT0}, s{sREG}"); a.I(f"s_add_u32 s{sT0}, s{sT0}, {AP}")
        a.I(f"s_lshl_b32 s{sT1}, s{sW}, {self.mls + 3}"); a.I(f"s_add_u32 s{sT1}, s{sT1}, s{sREG}"); a.I(f"s_add_u32 s{sT1}, s{sT1}, 16384")
        for j in range(4): self.trread(WOP + 4 * j, vTR, WO_OFF + j * 1024)
        a.wlg0()
        if o.get("b_o", 1): self.barrier()
        self.sleep2("e1a", 1, "e1b", 2)
        def ospec():
            if o.get("wolate"):
                l = self.nl("wol")
                a.I(f"s_cmp_lg_u32 s{sPASS}, 0"); a.I(f"s_cbranch_scc1 {l}")
                for j in range(4): self.trread(WOP + 4 * j, vTR, WO_OFF + j * 1024)
                a.wlg0(); a.L(l)
            a.I(f"{MF} {V(40)}, {V(28)}, {V(WOP)}, 0")
            a.I(f"{MF} {V(40)}, {V(32)}, {V(WOP+8)}, {V(40)}")
        self.poll([(None, f"buffer_load_dwordx2 v[36:37], v{vMLG}, {S(rWS)}, s{sT1} offen sc1"),
                   (None, f"buffer_load_dwordx4 {V(28)}, v{vAPG}, {S(rWS)}, s{sT0} offen sc1"),
                   (None, f"buffer_load_dwordx4 {V(32)}, v{vAPG}, {S(rWS)}, s{sT0} offen offset:128 sc1")],
                  [36, 37] + list(range(28, 36)), 38, spec=ospec)
        self.stamp("e1")
        a.I(f"v_max_f32_dpp v38, v36, v36 quad_perm:[1,0,3,2] {DPP}")
        for r in range(4): a.I(f"v_mov_b32_dpp v{44+r}, v{28+r} row_shl:8 {DPP}")
        a.I(f"v_max_f32_dpp v38, v38, v38 quad_perm:[2,3,0,1] {DPP}")
        a.I(f"v_mov_b32_dpp v48, v32 row_shl:8 {DPP}")
        a.I(f"{MF} {V(40)}, {V(44)}, {V(WOP+4)}, {V(40)}")
        for r in range(1, 4): a.I(f"v_mov_b32_dpp v{48+r}, v{32+r} row_shl:8 {DPP}")
        a.I("v_sub_f32 v38, v36, v38")
        a.I("v_exp_f32 v38, v38")
        a.I(f"{MF} {V(40)}, {V(48)}, {V(WOP+12)}, {V(40)}")
        a.I("v_mul_f32 v39, v38, v37")
        a.I(f"s_lshl_b32 s{sT0}, s{sX}, 7"); a.I(f"s_add_u32 s{sT0}, s{sT0}, s{sYP}")
        a.I(f"v_add_f32_dpp v39, v39, v39 quad_perm:[1,0,3,2] {DPP}")
        a.I(f"v_add_f32_dpp v39, v39, v39 quad_perm:[2,3,0,1] {DPP}")
        a.I("v_rcp_f32 v39, v39")
        a.I("v_mul_f32 v38, v38, v39")
        a.I(f"v_mul_f32_dpp v52, v38, v40 quad_perm:[0,0,0,0] {DPP}")
        for r in range(1, 4): a.I(f"v_fmac_f32_dpp v52, v38, v{40+r} quad_perm:[{r},{r},{r},{r}] {DPP}")
        a.I(f"s_mov_b64 exec, {mLO32}")
        a.I(f"ds_write_b32 v{vRW}, v52 offset:{ORED}")
        a.I(f"s_mov_b64 exec, {mFULL}")
        a.wlg0(); self.barrier()
        self.only_w0("L_o_done")
        a.I(f"ds_read_b128 {V(40)}, v{vL16} offset:{ORED}"); a.wlg0()
        a.I("v_pk_add_f32 v[40:41], v[40:41], v[42:43]"); a.I("v_add_f32 v40, v40, v41"); a.I("v_min_u32 v40, -2, v40")
        a.I(f"s_mov_b64 exec, {mLO32}")
        a.I(f"buffer_store_dword v40, v{vL4}, {S(rWS)}, s{sT0} offen {['sc1', 'sc0 sc1'][o.get('spol', 0)]}")
        a.I(f"s_mov_b64 exec, {mFULL}")
        self.end_cond("L_o_done")
        self.stamp("opub")
        if not o.get("dmae", 0):
            a.I(f"s_cmp_lg_u32 s{sPASS}, 0"); a.I("s_cbranch_scc1 L_nodma"); a.cond += 1
            self.w12dma(44)
            self.end_cond("L_nodma")
        a.C("stage R")
        a.I(f"s_cmp_ge_u32 s{sJR}, 32"); a.I("s_cbranch_scc1 L_r_done"); a.cond += 1
        self.rstage("e2a", vL4, 0, XSA, False)
        self.end_cond("L_r_done")
        self.stamp("rpub")
        a.C("stage H")
        a.wvm0()
        self.ln_prep(W1_OFF)
        a.I(f"s_lshl_b32 s{sT0}, s{sW}, 8"); a.I(f"s_add_u32 s{sT0}, s{sT0}, s{sREG}"); a.I(f"s_add_u32 s{sT0}, s{sT0}, {XSA}")
        if not o.get("lw"): a.wlg0()
        self.barrier()
        a.I(f"s_cmp_eq_u32 s{sHCU}, 0"); a.I("s_cbranch_scc1 L_h_done"); a.cond += 1
        self.sleep("d_x", 0)
        self.poll([(mN8, f"buffer_load_dwordx4 {V(self.XA)}, v{vXG}, {S(rWS)}, s{sT0} offen sc1")], range(self.XA, self.XA + 4), 60, spec=self.ln_head)
        self.stamp("e2b")
        a.I(f"s_sub_u32 s{sT0}, s{sI}, {HCU0}"); a.I(f"s_lshl_b32 s{sT0}, s{sT0}, 5"); a.I(f"s_add_u32 s{sT0}, s{sT0}, s{sREG}"); a.I(f"s_add_u32 s{sT0}, s{sT0}, {HS}")
        self.ln_mm(head=False)
        a.I(f"s_cmp_lg_u32 s{sW}, 0"); a.I("s_cbranch_scc1 L_h_done")
        self.ln_finish()
        a.I(f"v_fma_f32 v60, v60, v68, v{vB1}")
        a.I(f"v_mov_b32 v62, s{sK1}")
        a.I("v_mul_f32 v61, v60, v60")
        a.I(f"v_fma_f32 v61, v61, s{sK2}, v62")
        a.I("v_mul_f32 v61, v61, v60")
        a.I("v_exp_f32 v61, v61")
        a.I("v_add_f32 v61, 1.0, v61")
        a.I("v_rcp_f32 v61, v61")
        a.I("v_mul_f32 v60, v60, v61")
        self.pack_pub(60, 61)
        a.I(f"s_mov_b64 exec, {mEVEN}")
        self.publish(f"buffer_store_dword v61, v{vPH}, {S(rWS)}, s{sT0} offen")
        a.I(f"s_mov_b64 exec, {mFULL}")
        self.end_cond("L_h_done")
        self.stamp("hpub")
        a.C("stage X2")
        self.only_w0("L_x2_done")
        for r in range(4): a.I(f"v_mov_b32 v{92 + r}, 0")
        rd = [self.trread(44 + 4 * k, vL8, W2_LDS + k * 1024) for k in range(6)]
        a.I(f"s_add_u32 s{sT0}, s{sREG}, {HS}")
        a.I(f"s_lshl_b32 s{sT1}, s{sJ2}, 10"); a.I(f"s_lshl_b32 s{sT2}, s{sX}, 7"); a.I(f"s_add_u32 s{sT1}, s{sT1}, s{sT2}")
        a.I(f"s_lshl_b32 s{sT2}, s{sPASS}, 15"); a.I(f"s_add_u32 s{sT1}, s{sT1}, s{sT2}"); a.I(f"s_add_u32 s{sT1}, s{sT1}, {YP2}")
        self.sleep("d_h", 0)
        a.wlg0()
        self.poll([(mH, f"buffer_load_dwordx4 {V(92)}, v{vHG}, {S(rWS)}, s{sT0} offen sc1")], range(92, 96), 40,
                  spec=lambda: a.I(f"{MF} {V(36)}, {V(92)}, {V(44)}, 0"))
        self.stamp("e3")
        for k in range(1, 6):
            cur = (32, 40)[k % 2]
            for r in range(4): a.I(f"v_mov_b32_dpp v{cur + r}, v{92 + r} row_shl:{2*k} {DPP}")
            if k >= 2: a.I(f"{MF} {V(36)}, {V((32, 40)[(k-1) % 2])}, {V(44 + 4*(k-1))}, {V(36)}")
        a.I(f"{MF} {V(36)}, {V(40)}, {V(64)}, {V(36)}")
        a.I(f"s_mov_b64 exec, {mLO16}")
        a.I("v_min_u32 v36, -2, v36"); a.I("v_min_u32 v37, -2, v37")
        a.I(f"buffer_store_dwordx2 v[36:37], v{vL8}, {S(rWS)}, s{sT1} offen {['sc1', 'sc0 sc1'][o.get('spol', 0)]}")
        a.I(f"s_mov_b64 exec, {mFULL}")
        self.stamp("xpub")
        self.end_cond("L_x2_done")
        self.barrier()
        a.I(f"s_mul_i32 s{sT0}, s{sPASS}, s{sX}"); a.I(f"s_cmp_lg_u32 s{sT0}, 0"); a.I("s_cbranch_scc1 L_abort")
        a.I(f"s_cmp_ge_u32 s{sJR}, 32"); a.I("s_cbranch_scc1 L_r2_done"); a.cond += 1
        a.C("stage R2")
        self.rstage("e3b", vR2, YP2 - YP, XSB, True)
        self.end_cond("L_r2_done")
        self.stamp("r2pub")
        a.I(f"s_cmp_lg_u32 s{sPASS}, 0"); a.I("s_cbranch_scc1 L_abort")
        a.C("stage Q2")
        self.ln_prep(WQ_OFF)
        a.I(f"s_lshl_b32 s{sP0}, s{sW}, 8"); a.I(f"s_add_u32 s{sP0}, s{sP0}, s{sREG}"); a.I(f"s_add_u32 s{sP0}, s{sP0}, {XSB}")
        a.I(f"s_mov_b32 s{sPASS}, 1"); a.I(f"s_add_u32 s{sREG}, s{sREG}, {REGION}"); a.I(f"s_add_u32 s{sYP}, s{sYP}, 32768"); a.I(f"s_add_u32 s{sYR}, s{sYR}, 32768")
        self.q_soff()
        a.I(f"s_lshr_b32 s{sP3}, s{sI}, 2"); a.I(f"s_lshl_b32 s{sP3}, s{sP3}, 8"); a.I(f"s_add_u32 s{sP3}, s{sP3}, s{sREG}")
        if not o.get("lw"): a.wlg0()
        self.barrier()
        self.sleep("d_x", 0)
        self.poll([(mN8, f"buffer_load_dwordx4 {V(self.XA)}, v{vXG}, {S(rWS)}, s{sP0} offen sc1")], range(self.XA, self.XA + 4), 60, spec=self.ln_head)
        self.stamp("e4")
        self.ln_mm(head=False)
        self.only_w0("L_q2_done")
        self.ln_finish()
        a.I("v_mul_f32 v60, v60, v68")
        self.pack_pub(60, 61)
        self.q_publish(61)
        self.end_cond("L_q2_done")
        self.stamp("qpub")
        a.C("attention 2")
        self.qk_prep()
        if o.get("b_q", 1): self.barrier()
        self.sleep("d_q", 0)
        self.poll([(mN4, f"buffer_load_dwordx4 {V(QC)}, v{vQG}, {S(rWS)}, s{sP3} offen sc1")], range(QC, QC + 4), 32, depth=o.get("p_x", 1), gap=o.get("gap", 2))
        self.stamp("e5")
        lv = []
        landmap = [0, 8, 16, 24, 128, 136, 144, 152, 32, 40, 48, 56]
        land = lambda op: landmap[op]
        def fillv(n):
            if n >= 2:
                for _ in range(2):
                    k = len(lv)
                    lv.append(a.I(f"ds_read_b128 {Ar(land(k >> 1) + 4*(k & 1))}, v{vLV} offset:{V_OFF + k*1024}"))
        self.qk(fill=fillv)
        self.stamp("qk2")
        ids, post = self.softmax(True)
        fr = self.f_read()
        self.stamp("sm2")
        def opnd(sg, e):
            if sg == 0: return Ar(land(e), 8)
            if sg == 1: return Ar(land(8 + e), 8) if e < 4 else V(HF + 8 * (e - 4), 8)
            return V(sgblk(sg) + 8 * e, 8)
        for gi, sg in enumerate((2, 3, 0, 1)):
            a.wlg(ids[sg])
            if gi == 2: a.wlg(fr); post = post + self.f_calc()
            for e in range(8):
                a.I(f"{SMF} {V(ACC + 4*e)}, {V(PA + 4*sg)}, {opnd(sg, e)}, v{vIDX}")
                if post: a.I(post.pop(0))
                if gi == 1 and e == 7: self.l_write()
        assert not post
        self.attn_out()
        a.I("s_branch L_fin")
        a.L("L_final")
        a.I(f"buffer_store_dword v89, v{vPX}, {S(rOUT)}, s{sT1} offen")
        a.I(f"s_cmp_lg_u32 s{sJR}, 0"); a.I("s_cbranch_scc1 L_noepo")
        a.I(f"v_mov_b32 v30, s{sXCC}"); a.I(f"s_mov_b32 s{sT0}, {EPO}"); a.I("s_mov_b64 exec, 1")
        a.I(f"buffer_store_dword v30, v{vL4}, {S(rWS)}, s{sT0} offen")
        a.L("L_noepo")
        if o.get("stamps"):
            a.wvm0(); self.stamp("end")
            if o.get("amp"):
                a.I("s_sub_u32 s92, s91, s90"); a.I("s_lshl_b32 s92, s92, 2"); a.I("s_add_u32 s92, s92, 4000")
                a.L("L_spin"); a.I("s_memrealtime s[64:65]"); a.I("s_waitcnt lgkmcnt(0)"); a.I("s_sub_u32 s64, s64, s90")
                a.I(f"s_cmp_lt_u32 s64, s92"); a.I("s_cbranch_scc1 L_spin")
            a.I("s_branch L_abort")
        a.I("s_endpgm")

if __name__ == "__main__":
    opt = {}
    out = sys.argv[1]
    for kv in sys.argv[2:]:
        k, v = kv.split("="); opt[k] = v.split(",") if k == "stamps" else int(v)
    g = Gen(opt)
    t = g.build()
    open(out, "w").write(t)
    print("lines", t.count("\n"), "auto nops", g.a.nops)
```
